```python
import torch

def _softmax(x, axis=-1):
    return torch.softmax(x, dim=axis)
def _gelu(x):
    return torch.nn.functional.gelu(x, approximate="tanh")
def _silu(x):
    return torch.nn.functional.silu(x)
def _sigmoid(x):
    return torch.sigmoid(x)
def _layernorm(x, axis=-1, eps=1e-5):
    m = x.mean(dim=axis, keepdim=True)
    v = x.var(dim=axis, keepdim=True, unbiased=False)
    return (x - m) / torch.sqrt(v + eps)
def _scatter_add(tgt, idx, src, axis=0):
    return tgt.clone().index_add_(axis, idx, src)
def _segment_sum(src, seg, n):
    out = torch.zeros((n,) + src.shape[1:], dtype=src.dtype)
    return out.index_add_(0, seg, src)
def _pad(x, pw):
    flat = tuple(v for pair in reversed(pw) for v in pair)
    return torch.nn.functional.pad(x, flat)

kernel_name = 'gated_mix__mha_block_cached__gqa_block_cached__decode'

def setup_inputs():

    _w = (lambda a: (lambda t: t.to(torch.bfloat16) if t.is_floating_point() else t)(torch.as_tensor(a)))
    def _A_setup():
        B, Sq, D = 4, 1, 512
        H, Sk, Dh = 32, 8192, 128
        return {
            "x": _w((lambda *s: torch.randn(*s, dtype=torch.bfloat16) * 0.05)(B, Sq, D)),
            "k_cache": _w((lambda *s: torch.randn(*s, dtype=torch.bfloat16) * 6.4)(B, H, Sk, Dh)),
            "v_cache": _w((lambda *s: torch.randn(*s, dtype=torch.bfloat16) * 0.05)(B, H, Sk, Dh)),
            "wq": _w((lambda *s: torch.randn(*s, dtype=torch.bfloat16) * 6.4)(D, H * Dh) * (D ** -0.5)),
            "wo": _w((lambda *s: torch.randn(*s, dtype=torch.bfloat16) * 0.05)(H * Dh, D) * ((H * Dh) ** -0.5)),
        }
    _A_in = _A_setup()

    def _B_setup():
        B, Sq, D = 4, 1, 512
        Hq, Hkv, Sk, Dh = 32, 8, 8192, 128
        assert Hq % Hkv == 0, (Hq, Hkv)
        return {
            "x": _w((lambda *s: torch.randn(*s, dtype=torch.bfloat16) * 0.05)(B, Sq, D)),
            "k_cache": _w((lambda *s: torch.randn(*s, dtype=torch.bfloat16) * 6.4)(B, Hkv, Sk, Dh)),
            "v_cache": _w((lambda *s: torch.randn(*s, dtype=torch.bfloat16) * 0.05)(B, Hkv, Sk, Dh)),
            "wq": _w((lambda *s: torch.randn(*s, dtype=torch.bfloat16) * 6.4)(D, Hq * Dh) * (D ** -0.5)),
            "wo": _w((lambda *s: torch.randn(*s, dtype=torch.bfloat16) * 0.05)(Hq * Dh, D) * ((Hq * Dh) ** -0.5)),
        }
    _B_in = _B_setup()

    return {
        "A_x": _A_in["x"],
        "A_k_cache": _A_in["k_cache"],
        "A_v_cache": _A_in["v_cache"],
        "A_wq": _A_in["wq"],
        "A_wo": _A_in["wo"],
        "B_x": _B_in["x"],
        "B_k_cache": _B_in["k_cache"],
        "B_v_cache": _B_in["v_cache"],
        "B_wq": _B_in["wq"],
        "B_wo": _B_in["wo"],
        "gate_w": _w((lambda *s: torch.randn(*s, dtype=torch.bfloat16) * 0.1)(512) * 16.0),
    }

def reference(A_x, A_k_cache, A_v_cache, A_wq, A_wo, B_x, B_k_cache, B_v_cache, B_wq, B_wo, gate_w):
    def _A_ref(x, k_cache, v_cache, wq, wo):
        B, Sq, D = x.shape
        H, Dh = 32, 128
        q = (lambda x, *d: x.permute(*d))((x @ wq).reshape(B, Sq, H, Dh), 0, 2, 1, 3)
        scores = torch.einsum("bhqd,bhkd->bhqk", q, k_cache) * (Dh ** -0.5)
        p = _softmax(scores, axis=-1)
        o = torch.einsum("bhqk,bhkd->bhqd", p, v_cache)
        return (lambda x, *d: x.permute(*d))(o, 0, 2, 1, 3).reshape(B, Sq, H * Dh) @ wo

    def _B_ref(x, k_cache, v_cache, wq, wo):
        B, Sq, D = x.shape
        Hq, Dh = 32, 128
        Hkv = k_cache.shape[1]
        rep = Hq // Hkv
        q = (lambda x, *d: x.permute(*d))((x @ wq).reshape(B, Sq, Hq, Dh), 0, 2, 1, 3)
        k = (lambda x, n, axis: torch.repeat_interleave(x, n, dim=axis))(k_cache, rep, axis=1)
        v = (lambda x, n, axis: torch.repeat_interleave(x, n, dim=axis))(v_cache, rep, axis=1)
        scores = torch.einsum("bhqd,bhkd->bhqk", q, k) * (Dh ** -0.5)
        p = _softmax(scores, axis=-1)
        o = torch.einsum("bhqk,bhkd->bhqd", p, v)
        return (lambda x, *d: x.permute(*d))(o, 0, 2, 1, 3).reshape(B, Sq, Hq * Dh) @ wo

    x = A_x
    g = _sigmoid((x * gate_w).sum(-1, keepdims=True))
    a = _A_ref(x, A_k_cache, A_v_cache, A_wq, A_wo)
    b = _B_ref(x, B_k_cache, B_v_cache, B_wq, B_wo)
    return g * a + (1 - g) * b
```

```python
import re

TRANS = ('v_exp_f32', 'v_log_f32', 'v_rcp_f32', 'v_rsq_f32', 'v_sqrt_f32', 'v_sin_f32', 'v_cos_f32', 'v_rcp_iflag_f32')

def split_ops(s):
    out, depth, cur = [], 0, ''
    for ch in s:
        if ch == '[': depth += 1
        if ch == ']': depth -= 1
        if ch == ',' and depth == 0:
            out.append(cur.strip()); cur = ''
        else:
            cur += ch
    if cur.strip(): out.append(cur.strip())
    return out

def regs_of(tok):
    tok = tok.strip()
    t = tok.split()[0] if tok else ''
    neg = t.lstrip('-')
    m = re.fullmatch(r'abs\((.*)\)', neg)
    if m: neg = m.group(1)
    m = re.fullmatch(r'([vs])(\d+)', neg)
    if m: return {(m.group(1), int(m.group(2)))}
    m = re.fullmatch(r'([vs])\[(\d+):(\d+)\]', neg)
    if m: return {(m.group(1), i) for i in range(int(m.group(2)), int(m.group(3)) + 1)}
    if neg in ('vcc', 'vcc_lo', 'vcc_hi'): return {('vcc', 0)}
    if neg in ('exec', 'exec_lo', 'exec_hi'): return {('exec', 0)}
    if neg == 'm0': return {('m0', 0)}
    return set()

class Ins:
    __slots__ = ('text', 'op', 'cls', 'defs', 'uses', 'dpp', 'trans', 'perml', 'readlane', 'srcC', 'widestore', 'states', 'dppsrc')
    def __init__(self, text):
        self.text = text
        t = text.split(';')[0].strip()
        self.defs = set(); self.uses = set(); self.srcC = set(); self.dppsrc = set()
        self.dpp = self.trans = self.perml = self.readlane = self.widestore = False
        self.states = 1
        if not t or t.endswith(':') or t.startswith('.'):
            self.op = None; self.cls = 'none'; self.states = 0; return
        parts = t.split(None, 1)
        op = parts[0]; self.op = op
        rest = parts[1] if len(parts) > 1 else ''
        ops = split_ops(rest)
        R = [regs_of(o) for o in ops]
        if op == 's_nop':
            self.cls = 'salu'; self.states = int(ops[0], 0) + 1; return
        if op.startswith('s_'):
            self.cls = 'salu'
            if op.startswith(('s_cmp', 's_cbranch', 's_branch', 's_waitcnt', 's_barrier', 's_sleep', 's_endpgm', 's_setprio')):
                for r in R: self.uses |= r
            elif op.startswith('s_load') or op.startswith('s_memrealtime') or op.startswith('s_memtime'):
                self.defs |= R[0]
                for r in R[1:]: self.uses |= r
            else:
                if R: self.defs |= R[0]
                for r in R[1:]: self.uses |= r
                if 'saveexec' in op: self.defs.add(('exec', 0)); self.uses.add(('exec', 0))
            return
        if op.startswith('v_mfma'):
            self.cls = 'mfma'
            self.defs |= R[0]; self.uses |= R[1] | R[2] | R[3]; self.srcC = set(R[3]); return
        if op.startswith('v_'):
            self.cls = 'valu'
            self.dpp = any(k in rest for k in ('quad_perm', 'row_shl', 'row_shr', 'row_ror', 'row_newbcast', 'row_bcast', 'row_mirror', 'row_half_mirror'))
            self.trans = op.replace('_e32', '').replace('_e64', '') in TRANS
            if op.startswith('v_permlane'):
                self.perml = True
                self.defs |= R[0] | R[1]; self.uses |= R[0] | R[1]; return
            if op.startswith(('v_readfirstlane', 'v_readlane')):
                self.readlane = True
                self.defs |= R[0]
                for r in R[1:]: self.uses |= r
                return
            if op.startswith('v_cmp'):
                self.defs |= R[0]
                for r in R[1:]: self.uses |= r
                return
            self.defs |= R[0]
            k = 1
            if op.startswith(('v_add_co', 'v_sub_co', 'v_addc_co', 'v_subb_co')):
                self.defs |= R[1]; k = 2
            for r in R[k:]: self.uses |= r
            if op.startswith(('v_fmac', 'v_dot2c', 'v_mac')) or self.dpp:
                self.uses |= R[0]
            if op.startswith('v_cndmask') and len(ops) == 3:
                self.uses.add(('vcc', 0))
            if self.dpp: self.dppsrc = set(R[1])
            return
        if op.startswith(('buffer_', 'global_')):
            self.cls = 'vmem'
            is_store = 'store' in op
            is_atomic = 'atomic' in op
            if op.startswith('buffer_'):
                if is_store or (is_atomic):
                    self.uses |= R[0]
                    if is_atomic and ' sc0' in rest: self.defs |= R[0]
                else:
                    self.defs |= R[0]
                for r in R[1:]: self.uses |= r
            else:
                if is_store:
                    for r in R: self.uses |= r
                elif is_atomic:
                    if ' sc0' in rest:
                        self.defs |= R[0]
                        for r in R[1:]: self.uses |= r
                    else:
                        for r in R: self.uses |= r
                else:
                    self.defs |= R[0]
                    for r in R[1:]: self.uses |= r
            if is_store and ('x4' in op or 'x3' in op):
                self.widestore = True
            return
        if op.startswith('ds_'):
            self.cls = 'ds'
            if op.startswith('ds_read') or '_rtn' in op or 'bpermute' in op or 'swizzle' in op:
                self.defs |= R[0]
                for r in R[1:]: self.uses |= r
            else:
                for r in R: self.uses |= r
            return
        raise Exception('unknown instruction: ' + text)

def isv(r): return r[0] == 'v'
def iss(r): return r[0] in ('s', 'vcc')

def need(p, c):
    n = 0
    pv = {r for r in p.defs if isv(r)}
    ps = {r for r in p.defs if iss(r)}
    cu_v = {r for r in c.uses if isv(r)}
    cd_v = {r for r in c.defs if isv(r)}
    cu_s = {r for r in c.uses if iss(r)}
    if p.cls == 'valu':
        if c.cls == 'mfma' and pv & cu_v: n = max(n, 2)
        if c.cls == 'valu':
            if c.dpp and pv & cu_v: n = max(n, 2)
            if c.perml and pv & cu_v: n = max(n, 2)
            if c.readlane and pv & cu_v: n = max(n, 1)
            if p.trans and not c.trans and pv & cu_v: n = max(n, 1)
            if ps & cu_s: n = max(n, 4 if c.readlane else 2)
        if c.cls == 'vmem' and ps & cu_s: n = max(n, 5)
        if c.cls == 'salu' and ps & cu_s: n = max(n, 2)
    if p.cls == 'mfma':
        if c.cls == 'mfma':
            ab = cu_v - c.srcC
            if pv & ab: n = max(n, 8)
            if pv & c.srcC and pv != c.srcC: n = max(n, 6)
            if (pv & cd_v) and not (pv & c.srcC): n = max(n, 8)
        elif c.cls in ('valu', 'vmem', 'ds'):
            if pv & (cu_v | cd_v): n = max(n, 8)
        if c.cls == 'valu' and (p.srcC & cd_v): n = max(n, 3)
    if p.cls == 'vmem' and p.widestore and c.cls == 'valu':
        if {r for r in p.uses if isv(r)} & cd_v: n = max(n, 2)
    if p.cls == 'salu' and ('exec', 0) in p.defs and c.cls == 'valu' and c.dpp:
        n = max(n, 1)
    return n

def pad_hazards(lines, window=24):
    out = []
    hist = []
    npad = 0
    for text in lines:
        ins = Ins(text)
        if ins.cls == 'none':
            out.append(text); continue
        if ins.op == 's_waitcnt' and hist and hist[-1].op == 's_cbranch_vccnz':
            ins.states = 0
        dist = 0
        pad = 0
        for p in reversed(hist):
            nd = need(p, ins)
            if nd > dist: pad = max(pad, nd - dist)
            dist += p.states
            if dist >= window: break
        while pad > 0:
            k = min(pad, 16)
            nop = f"  s_nop {k-1}"
            out.append(nop); hist.append(Ins(nop)); pad -= k; npad += 1
        out.append(text); hist.append(ins)
        if len(hist) > 64: hist = hist[-40:]
    return out, npad

class Asm:
    def __init__(self):
        self.lines = []
    def __call__(self, s):
        for l in s.split('\n'):
            l = l.strip()
            if not l: continue
            if l.endswith(':') or l.startswith('.') or l.startswith(';'):
                self.lines.append(l)
            else:
                self.lines.append('  ' + l)
    def label(self, n): self.lines.append(n + ':')
    def comment(self, t): self.lines.append('; ' + t)
    def text(self):
        body = [l for l in self.lines]
        padded, n = pad_hazards(body)
        return "\n".join(padded), n
```

```python
import sys, os
sys.path.insert(0, os.path.dirname(os.path.abspath(__file__)))
from asmlib import Asm

KNAME = 'gated_mix__mha_block_cached__gqa_block_cached__decode_kernel'

class Cfg:
    D = 5
    diag = False
    dump = False
    SPIN = 200000
    name = KNAME
    kflags = 'nt'
    vflags = 'nt'

sW, sV = 2, 3
P_X, P_KA, P_VA, P_WQA, P_WOA, P_BX, P_KB, P_VB = 4, 6, 8, 10, 12, 14, 16, 18
P_WQB, P_WOB, P_GW, P_OUT = 20, 22, 24, 26
P_DBG, P_WS = 28, 30
R_KA, R_VA, R_KB, R_VB = 32, 36, 40, 44
R_WQA, R_WQB, R_WOA, R_WOB = 48, 52, 56, 60
R_X, R_GW, R_WS, R_OUT = 64, 68, 72, 76
sB = 80
sOff = 81
sJ = 82
sVal1, sVal2 = 83, 84
sT0, sT1, sT2, sT3 = 85, 86, 87, 88
sBbase = 89
sScale, sL2E, sNL2E = 90, 91, 92
sSpin = 93
sSlot = 94
sIdx = 95
sSelLo, sSelHi = 96, 97
sStamp = 98

vLane = 0
vKoff, vVoff, vKcur, vVcur = 1, 2, 3, 4
vMask0, vMask1 = 5, 6
vCnt, vOne, vClaim = 7, 8, 9
vRow, vBank, vQ, vC = 10, 11, 12, 13
vT = 14
RING = 16
QOP = 80
QB = 84
ACC = 88
ACCA = 96
vM, vL, vMA, vLA = 104, 105, 106, 107
DD = 108
Y = 124
PP = 128
WIN = 132
vAl, vAT, vNM, vMn = 138, 139, 140, 141
T0 = 142
WOA = 148
WOB = 156
TMP = 164
NVGPR = 240

L_QBOP = 0
L_MLB, L_MLA = 1024, 1280
L_OT = 1536
L_G = 3584
L_FLAG = 3648
L_QA, L_QBP = 4096, 20480
L_BM, L_AM = 36864, 53248
L_YP = L_QA
LDS_BYTES = 69632

WS_SLOT = 8192
O_Y, O_OB, O_OA, O_MLB, O_MLA = 0, 2048, 4096, 4608, 4640
WS_QB = 2 << 20
WS_CNT = 3 << 20
WS_STAMP = (3 << 20) + (512 << 10)
WS_BYTES = 4 << 20

def vr(a, n): return f"v[{a}:{a+n-1}]"
def sr(a, n): return f"s[{a}:{a+n-1}]"
def kslot(st, u): return RING + 32 * st + 4 * u
def vslot(st, u): return RING + 32 * st + 16 + 4 * u
MFMA = 'v_mfma_f32_16x16x32_bf16'
FULL = 'row_mask:0xf bank_mask:0xf'

def build(cfg):
    a = Asm()
    N = cfg.name
    D = cfg.D
    stamp_no = [0]
    def stamp(i):
        if not cfg.diag: return
        a(f"s_memrealtime s[{sStamp}:{sStamp+1}]")
        a("s_waitcnt lgkmcnt(0)")
        a(f"v_mov_b32 v{vT}, s{sStamp}")
        a(f"s_lshl_b32 s{sT3}, s{sW}, 3")
        a(f"s_add_u32 s{sT3}, s{sT3}, s{sV}")
        a(f"s_lshl_b32 s{sT3}, s{sT3}, 6")
        a(f"s_add_u32 s{sT3}, s{sT3}, {WS_STAMP + 4*i}")
        a(f"v_mov_b32 v{vT+1}, s{sT3}")
        a(f"buffer_store_dword v{vT}, v{vT+1}, {sr(R_WS,4)}, 0 offen")

    def srd(r, p, size):
        a(f"s_mov_b32 s{r}, s{p}")
        a(f"s_and_b32 s{r+1}, s{p+1}, 0xffff")
        a(f"s_mov_b32 s{r+2}, {hex(size)}")
        a(f"s_mov_b32 s{r+3}, 0x20000")

    def pv(src_lo, data, acc0, acc1, first):
        c0 = '0' if first else vr(acc0, 4)
        c1 = '0' if first else vr(acc1, 4)
        a(f"{MFMA} {vr(acc0,4)}, {vr(WIN+2,4)}, {vr(data,4)}, {c0}")
        a(f"{MFMA} {vr(acc1,4)}, {vr(WIN,4)}, {vr(data,4)}, {c1}")

    def win_from(pp):
        a(f"v_and_b32 v{WIN+2}, v{pp}, v{vMask0}")
        a(f"v_and_b32 v{WIN+3}, v{pp}, v{vMask1}")

    def xrow(op, r, t):
        a(f"v_mov_b32 v{t}, v{r}")
        a(f"v_permlane16_swap_b32 v{r}, v{t}")
        a(f"{op} v{r}, v{r}, v{t}")
        a(f"v_mov_b32 v{t}, v{r}")
        a(f"v_permlane32_swap_b32 v{r}, v{t}")
        a(f"{op} v{r}, v{r}, v{t}")

    def spin_tail(lab_loop, lab_done):
        a(f"s_add_u32 s{sSpin}, s{sSpin}, 1")
        a(f"s_cmp_gt_u32 s{sSpin}, {cfg.SPIN}")
        a(f"s_cbranch_scc1 {lab_done}")
        a("s_sleep 2")
        a(f"s_branch {lab_loop}")

    a(f".globl {N}")
    a(".p2align 8")
    a(f".type {N},@function")
    a.label(N)
    a(f"s_cmp_ge_u32 s{sW}, 256")
    a(f"s_cbranch_scc1 {N}_done")
    a(f"s_load_dwordx16 s[4:19], s[0:1], 0")
    a(f"s_load_dwordx8 s[20:27], s[0:1], 64")
    a(f"s_load_dwordx4 s[28:31], s[0:1], 96")
    a(f"v_lshrrev_b32 v1, 6, v0")
    a(f"v_and_b32 v{vLane}, 63, v0")
    a(f"v_readfirstlane_b32 s{sV}, v1")
    a(f"v_lshrrev_b32 v{vRow}, 4, v{vLane}")
    a(f"v_lshrrev_b32 v{vBank}, 2, v{vLane}")
    a(f"v_and_b32 v{vBank}, 3, v{vBank}")
    a(f"v_and_b32 v{vQ}, 3, v{vLane}")
    a(f"v_and_b32 v{vC}, 15, v{vLane}")
    a(f"v_lshlrev_b32 v{vKoff}, 8, v{vBank}")
    a(f"v_lshl_add_u32 v{vKoff}, v{vRow}, 6, v{vKoff}")
    a(f"v_lshl_add_u32 v{vKoff}, v{vQ}, 4, v{vKoff}")
    a(f"v_lshlrev_b32 v{vVoff}, 4, v{vLane}")
    a(f"v_and_b32 v{vT}, 1, v{vQ}")
    a(f"v_cmp_eq_u32 vcc, 0, v{vT}")
    a(f"v_mov_b32 v{vT}, 0xffff0000")
    a(f"v_mov_b32 v{vT+1}, 0x0000ffff")
    a(f"v_cndmask_b32 v{vT}, v{vT}, v{vT+1}, vcc")
    a(f"v_cmp_gt_u32 vcc, 2, v{vQ}")
    a(f"v_cndmask_b32 v{vMask0}, 0, v{vT}, vcc")
    a(f"v_cndmask_b32 v{vMask1}, v{vT}, 0, vcc")
    for k in (0, 1, 4, 5):
        a(f"v_mov_b32 v{WIN+k}, 0")
    a(f"v_mov_b32 v{vOne}, 1")
    a(f"s_mov_b32 s{sScale}, 0x3db504f3")
    a(f"s_mov_b32 s{sL2E}, 0x3fb8aa3b")
    a(f"s_mov_b32 s{sNL2E}, 0xbfb8aa3b")
    a(f"s_mov_b32 s{sSelLo}, 0x01000100")
    a(f"s_mov_b32 s{sSelHi}, 0x03020302")
    a(f"s_lshr_b32 s{sB}, s{sW}, 6")
    a(f"s_lshl_b32 s{sSlot}, s{sW}, 13")
    XA, XB = TMP + 72 - 12, TMP + 72 - 4
    WQA, WQBr = TMP, None
    WQB0 = 236 - 8 + 0
    vXo, vWqo, vWqo2 = T0, T0 + 1, T0 + 2
    a(f"v_lshlrev_b32 v{vXo}, 10, v{vBank}")
    a(f"s_lshl_b32 s{sT0}, s{sV}, 7")
    a(f"v_lshl_add_u32 v{vT}, v{vRow}, 5, v{vXo}")
    a(f"v_add_u32 v{vT}, s{sT0}, v{vT}")
    a(f"s_and_b32 s{sT1}, s{sW}, 7")
    a(f"s_lshl_b32 s{sT1}, s{sT1}, 7")
    a(f"s_lshl_b32 s{sT2}, s{sV}, 4")
    a(f"s_add_u32 s{sT1}, s{sT1}, s{sT2}")
    a(f"v_lshl_add_u32 v{vT+1}, v{vRow}, 2, v{vXo}")
    a(f"v_add_u32 v{vT+1}, s{sT1}, v{vT+1}")
    a(f"v_lshlrev_b32 v{vWqo}, 4, v{vC}")
    a(f"v_lshl_add_u32 v{vWqo2}, v{vRow}, 14, v{vWqo}")
    a(f"v_lshl_add_u32 v{vWqo}, v{vRow}, 17, v{vWqo}")
    a("s_waitcnt lgkmcnt(0)")
    srd(R_X, P_X, 4096)
    srd(R_WQA, P_WQA, 4 << 20)
    srd(R_WS, P_WS, WS_BYTES)
    XA = 224; XB = 232; WQB = 216
    a(f"buffer_load_dwordx4 {vr(XA,4)}, v{vT}, {sr(R_X,4)}, 0 offen")
    a(f"buffer_load_dwordx4 {vr(XA+4,4)}, v{vT}, {sr(R_X,4)}, 0 offen offset:16")
    a(f"buffer_load_dword v{XB}, v{vT+1}, {sr(R_X,4)}, 0 offen")
    WQA = 148
    a(f"s_lshr_b32 s{sT0}, s{sW}, 1")
    a(f"s_and_b32 s{sT0}, s{sT0}, 31")
    a(f"s_lshl_b32 s{sT0}, s{sT0}, 8")
    a(f"s_lshl_b32 s{sT1}, s{sV}, 19")
    a(f"s_add_u32 s{sT0}, s{sT0}, s{sT1}")
    for i in range(16):
        a(f"buffer_load_dwordx4 {vr(WQA+4*i,4)}, v{vWqo}, {sr(R_WQA,4)}, s{sT0} offen")
        if i < 15: a(f"s_add_u32 s{sT0}, s{sT0}, 8192")
    srd(R_WQB, P_WQB, 4 << 20)
    srd(R_KA, P_KA, 256 << 20)
    srd(R_VA, P_VA, 256 << 20)
    a(f"s_and_b32 s{sT1}, s{sW}, 7")
    a(f"s_lshl_b32 s{sT1}, s{sT1}, 3")
    a(f"s_add_u32 s{sT1}, s{sT1}, s{sV}")
    a(f"s_lshl_b32 s{sT1}, s{sT1}, 16")
    a(f"s_lshr_b32 s{sT2}, s{sW}, 3")
    a(f"s_lshl_b32 s{sT2}, s{sT2}, 8")
    a(f"s_add_u32 s{sT1}, s{sT1}, s{sT2}")
    a(f"buffer_load_dwordx4 {vr(WQB,4)}, v{vWqo2}, {sr(R_WQB,4)}, s{sT1} offen")
    a(f"s_add_u32 s{sT1}, s{sT1}, 8192")
    a(f"buffer_load_dwordx4 {vr(WQB+4,4)}, v{vWqo2}, {sr(R_WQB,4)}, s{sT1} offen")
    a(f"s_lshl_b32 s{sOff}, s{sW}, 20")
    a(f"s_lshl_b32 s{sT0}, s{sV}, 12")
    a(f"s_add_u32 s{sOff}, s{sOff}, s{sT0}")
    for st in range(2):
        a(f"v_add_u32 v{vKcur}, s{sOff}, v{vKoff}")
        a(f"v_add_u32 v{vVcur}, s{sOff}, v{vVoff}")
        for u in range(4):
            a(f"buffer_load_dwordx4 {vr(kslot(st,u),4)}, v{vKcur}, {sr(R_KA,4)}, 0 offen offset:{u*1024} {cfg.kflags}")
        for u in range(4):
            a(f"buffer_load_dwordx4 {vr(vslot(st,u),4)}, v{vVcur}, {sr(R_VA,4)}, 0 offen offset:{u*1024} {cfg.vflags}")
        a(f"s_add_u32 s{sOff}, s{sOff}, 32768")
    srd(R_KB, P_KB, 64 << 20)
    srd(R_VB, P_VB, 64 << 20)
    srd(R_WOA, P_WOA, 4 << 20)
    srd(R_WOB, P_WOB, 4 << 20)
    srd(R_GW, P_GW, 1024)
    srd(R_OUT, P_OUT, 4096)
    a(f"s_lshr_b32 s{sBbase}, s{sW}, 3")
    a(f"s_lshl_b32 s{sT0}, s{sBbase}, 8")
    a(f"s_add_u32 s{sT0}, s{sT0}, {WS_CNT}")
    a(f"v_mov_b32 v{vCnt}, s{sT0}")
    a(f"s_lshl_b32 s{sBbase}, s{sBbase}, 21")
    stamp(0)
    a(f"v_mov_b32 v{vT}, {L_FLAG}")
    a(f"v_mov_b32 v{vT+1}, 0")
    a(f"ds_write_b32 v{vT}, v{vT+1}")
    QA0, QA1 = DD, DD + 4
    QB0, QB1 = DD + 8, DD + 12
    for i in range(16):
        younger = (15 - i) + 2 + 16
        a(f"s_waitcnt vmcnt({younger})")
        sel = sSelLo if i % 2 == 0 else sSelHi
        x = XA + i // 2
        a(f"v_perm_b32 v{PP}, v{x}, v{x}, s{sel}")
        win_from(PP)
        pv(None, WQA + 4 * i, QA0, QA1, i == 0)
    for i in range(2):
        a(f"s_waitcnt vmcnt({(1 - i) + 16})")
        sel = sSelLo if i == 0 else sSelHi
        a(f"v_perm_b32 v{PP}, v{XB}, v{XB}, s{sel}")
        win_from(PP)
        pv(None, WQB + 4 * i, QB0, QB1, i == 0)
    a(f"s_lshl_b32 s{sT0}, s{sV}, 11")
    a(f"v_add_u32 v{vT}, s{sT0}, v{vVoff}")
    a(f"ds_write_b128 v{vT}, {vr(QA0,4)} offset:{L_QA}")
    a(f"ds_write_b128 v{vT}, {vr(QA1,4)} offset:{L_QA+1024}")
    a(f"ds_write_b128 v{vT}, {vr(QB0,4)} offset:{L_QBP}")
    a(f"ds_write_b128 v{vT}, {vr(QB1,4)} offset:{L_QBP+1024}")
    a("s_waitcnt lgkmcnt(0)")
    a("s_barrier")
    a(f"s_lshl_b32 s{sT0}, s{sB}, 8")
    a(f"v_lshlrev_b32 v{vT}, 6, v{vRow}")
    a(f"v_lshl_add_u32 v{vT}, v{vQ}, 4, v{vT}")
    a(f"v_add_u32 v{vT}, s{sT0}, v{vT}")
    S = 148
    for vv in range(8):
        for m in range(2):
            a(f"ds_read_b128 {vr(S + 8*vv + 4*m, 4)}, v{vT} offset:{L_QA + vv*2048 + m*1024}")
    a("s_waitcnt lgkmcnt(0)")
    def tree_sum8(base):
        for step in (4, 2, 1):
            for g in range(step):
                for k in range(8):
                    a(f"v_add_f32 v{base+8*g+k}, v{base+8*g+k}, v{base+8*(g+step)+k}")
    tree_sum8(S)
    for k in range(4):
        a(f"v_cvt_pk_bf16_f32 v{QOP+k}, v{S+2*k}, v{S+2*k+1}")
    a(f"s_cmp_eq_u32 s{sV}, 1")
    a(f"s_cbranch_scc0 {N}_noqb")
    for k in range(4): a(f"v_mov_b32 v{T0+2+k}, -1")
    a(f"v_add_u32 v{vT}, s{sSlot}, v{vVoff}")
    for k in range(4):
        a(f"buffer_store_dwordx4 {vr(T0+2,4)}, v{vT}, {sr(R_WS,4)}, 0 offen offset:{k*1024} sc1")
    a(f"v_add_u32 v{vT}, 4096, v{vT}")
    a(f"buffer_store_dwordx4 {vr(T0+2,4)}, v{vT}, {sr(R_WS,4)}, 0 offen sc1")
    a(f"s_and_b32 s{sT0}, s{sW}, 7")
    a(f"s_cmp_eq_u32 s{sT0}, 0")
    a(f"s_cbranch_scc0 {N}_noclr")
    a(f"v_mov_b32 v{vT+1}, 0")
    a("s_mov_b64 exec, 1")
    a(f"buffer_store_dword v{vT+1}, v{vCnt}, {sr(R_WS,4)}, 0 offen sc1")
    a("s_mov_b64 exec, -1")
    a.label(f"{N}_noclr")
    for vv in range(8):
        for m in range(2):
            a(f"ds_read_b128 {vr(S + 8*vv + 4*m, 4)}, v{vVoff} offset:{L_QBP + vv*2048 + m*1024}")
    a("s_waitcnt lgkmcnt(0)")
    tree_sum8(S)
    a(f"s_lshl_b32 s{sT0}, s{sW}, 11")
    a(f"s_add_u32 s{sT0}, s{sT0}, {WS_QB}")
    a(f"v_lshlrev_b32 v{vT}, 5, v{vC}")
    a(f"v_lshl_add_u32 v{vT}, v{vRow}, 9, v{vT}")
    a(f"v_add_u32 v{vT}, s{sT0}, v{vT}")
    a(f"buffer_store_dwordx4 {vr(S,4)}, v{vT}, {sr(R_WS,4)}, 0 offen sc1")
    a(f"buffer_store_dwordx4 {vr(S+4,4)}, v{vT}, {sr(R_WS,4)}, 0 offen offset:16 sc1")
    a("s_waitcnt vmcnt(0)")
    a(f"v_mov_b32 v{vT}, 0")
    a("s_mov_b64 exec, 1")
    a(f"global_atomic_add v{vT}, v{vOne}, s[{P_DBG}:{P_DBG+1}] sc1")
    a("s_mov_b64 exec, -1")
    a("s_nop 7")
    a.label(f"{N}_noqb")
    for k in range(8): a(f"v_mov_b32 v{ACC+k}, 0")
    a(f"v_mov_b32 v{vM}, 0xff7fffff")
    a(f"v_mov_b32 v{vL}, 0")
    stamp(1)

    def issue(st, isV, u, rk, rv):
        slot = vslot(st, u) if isV else kslot(st, u)
        r = rv if isV else rk
        va = vVcur if isV else vKcur
        fl = cfg.vflags if isV else cfg.kflags
        a(f"s_waitcnt vmcnt({D-1})")
        a(f"buffer_load_dwordx4 {vr(slot,4)}, v{va}, {sr(r,4)}, 0 offen offset:{u*1024} {fl}")

    def diag(u0, u1):
        for c in range(4):
            for u in (u0, u1):
                d = DD + 4 * u + c
                qp = f"quad_perm:[{c},{c},{c},{c}]"
                if c == 0: a(f"v_mov_b32_dpp v{Y+u}, v{d} {qp} {FULL}")
                else:      a(f"v_add_f32_dpp v{Y+u}, v{d}, v{Y+u} {qp} {FULL}")

    def round4():
        a(f"v_cvt_pk_bf16_f32 v{T0}, v{Y}, v{Y+1}")
        a(f"v_cvt_pk_bf16_f32 v{T0+1}, v{Y+2}, v{Y+3}")
        a(f"v_lshlrev_b32 v{Y}, 16, v{T0}")
        a(f"v_and_b32 v{Y+1}, 0xffff0000, v{T0}")
        a(f"v_lshlrev_b32 v{Y+2}, 16, v{T0+1}")
        a(f"v_and_b32 v{Y+3}, 0xffff0000, v{T0+1}")

    def body(st, rk, rv):
        a("s_waitcnt vmcnt(12)")
        for u in range(4):
            a(f"{MFMA} {vr(DD+4*u,4)}, {vr(kslot(st,u),4)}, {vr(QOP,4)}, 0")
        issue(st, 0, 0, rk, rv)
        diag(0, 1)
        issue(st, 0, 1, rk, rv)
        diag(2, 3)
        round4()
        issue(st, 0, 2, rk, rv)
        for u in range(4): a(f"v_mul_f32 v{Y+u}, s{sScale}, v{Y+u}")
        round4()
        a(f"v_max3_f32 v{T0+2}, v{Y}, v{Y+1}, v{Y+2}")
        a(f"v_max_f32 v{T0+2}, v{T0+2}, v{Y+3}")
        xrow('v_max_f32', T0 + 2, T0 + 3)
        a(f"v_max_f32 v{vMn}, v{vM}, v{T0+2}")
        issue(st, 0, 3, rk, rv)
        a(f"v_sub_f32 v{vAl}, v{vM}, v{vMn}")
        a(f"v_mul_f32 v{vNM}, s{sNL2E}, v{vMn}")
        a(f"v_mul_f32 v{vAl}, s{sL2E}, v{vAl}")
        for u in range(4): a(f"v_fma_f32 v{Y+u}, v{Y+u}, s{sL2E}, v{vNM}")
        a(f"v_exp_f32 v{vAl}, v{vAl}")
        for u in range(4): a(f"v_exp_f32 v{Y+u}, v{Y+u}")
        a(f"v_mov_b32 v{vM}, v{vMn}")
        for h in range(4):
            a(f"v_mov_b32_dpp v{vAT}, v{vAl} row_newbcast:{4*h} row_mask:{hex(1<<h)} bank_mask:0xf")
        a(f"v_fma_f32 v{vL}, v{vL}, v{vAl}, v{Y}")
        for u in range(4): a(f"v_cvt_pk_bf16_f32 v{PP+u}, v{Y+u}, v{Y+u}")
        a(f"v_add_f32 v{T0}, v{Y+1}, v{Y+2}")
        a(f"v_add_f32 v{vL}, v{vL}, v{Y+3}")
        a(f"v_add_f32 v{vL}, v{vL}, v{T0}")
        for k in range(8): a(f"v_mul_f32 v{ACC+k}, v{ACC+k}, v{vAT}")
        a("s_waitcnt vmcnt(12)")
        for u in range(4):
            win_from(PP + u)
            pv(None, vslot(st, u), ACC, ACC + 4, False)
            issue(st, 1, u, rk, rv)

    def top_static():
        a(f"v_add_u32 v{vKcur}, s{sOff}, v{vKoff}")
        a(f"v_add_u32 v{vVcur}, s{sOff}, v{vVoff}")
        a(f"s_add_u32 s{sOff}, s{sOff}, 32768")

    def claim():
        a("s_mov_b64 exec, 1")
        a(f"v_mov_b32 v{vClaim}, 1")
        a(f"buffer_atomic_add v{vClaim}, v{vCnt}, {sr(R_WS,4)}, 0 offen sc0 sc1")
        a("s_mov_b64 exec, -1")

    def top_dyn():
        a("s_waitcnt vmcnt(8)")
        a(f"v_readfirstlane_b32 s{sIdx}, v{vClaim}")
        claim()
        a(f"s_cmp_lt_u32 s{sIdx}, 512")
        a(f"s_cselect_b32 s{sVal2}, 1, 0")
        a(f"s_lshl_b32 s{sT0}, s{sIdx}, 12")
        a(f"s_add_u32 s{sT0}, s{sT0}, s{sBbase}")
        a(f"s_cmp_eq_u32 s{sVal2}, 0")
        a(f"s_cselect_b32 s{sT0}, 0x7f000000, s{sT0}")
        a(f"v_add_u32 v{vKcur}, s{sT0}, v{vKoff}")
        a(f"v_add_u32 v{vVcur}, s{sT0}, v{vVoff}")

    a(f"s_mov_b32 s{sJ}, 0")
    a.label(f"{N}_sloop")
    a(f"s_cmp_eq_u32 s{sJ}, 2")
    a(f"s_cbranch_scc1 {N}_job2")
    a(f"s_cmp_eq_u32 s{sJ}, 8")
    a(f"s_cbranch_scc1 {N}_job8")
    a(f"s_cmp_eq_u32 s{sJ}, 12")
    a(f"s_cbranch_scc1 {N}_job12")
    a.label(f"{N}_jobret")
    top_static(); body(0, R_KA, R_VA)
    top_static(); body(1, R_KA, R_VA)
    a(f"s_add_u32 s{sJ}, s{sJ}, 2")
    a(f"s_cmp_lt_u32 s{sJ}, 28")
    a(f"s_cbranch_scc1 {N}_sloop")
    a(f"s_mov_b32 s{sSpin}, 0")
    a(f"v_mov_b32 v{vT}, {L_FLAG}")
    a.label(f"{N}_fl")
    a(f"ds_read_b32 v{vT+1}, v{vT}")
    a("s_waitcnt lgkmcnt(0)")
    a(f"v_readfirstlane_b32 s{sT0}, v{vT+1}")
    a(f"s_cmp_eq_u32 s{sT0}, 1")
    a(f"s_cbranch_scc1 {N}_fld")
    spin_tail(f"{N}_fl", f"{N}_fld")
    a.label(f"{N}_fld")
    a(f"ds_read_b128 {vr(QB,4)}, v{vVoff} offset:{L_QBOP}")
    top_static(); body(0, R_KA, R_VA)
    top_static(); claim(); body(1, R_KA, R_VA)
    top_dyn(); body(0, R_KB, R_VB)
    a(f"s_mov_b32 s{sVal1}, s{sVal2}")
    top_dyn(); body(1, R_KB, R_VB)
    a("s_nop 7")
    for k in range(8): a(f"v_mov_b32 v{ACCA+k}, v{ACC+k}")
    a(f"v_mov_b32 v{vMA}, v{vM}")
    a(f"v_mov_b32 v{vLA}, v{vL}")
    for k in range(8): a(f"v_mov_b32 v{ACC+k}, 0")
    a(f"v_mov_b32 v{vM}, 0xff7fffff")
    a(f"v_mov_b32 v{vL}, 0")
    a("s_waitcnt lgkmcnt(0)")
    for k in range(4): a(f"v_mov_b32 v{QOP+k}, v{QB+k}")
    stamp(2)
    a(f"s_cmp_eq_u32 s{sVal1}, 0")
    a(f"s_cbranch_scc1 {N}_dend")
    a(f"s_mov_b32 s{sVal1}, s{sVal2}")
    a.label(f"{N}_dloop")
    for st in range(2):
        top_dyn(); body(st, R_KB, R_VB)
        a(f"s_cmp_eq_u32 s{sVal1}, 0")
        a(f"s_cbranch_scc1 {N}_dend")
        a(f"s_mov_b32 s{sVal1}, s{sVal2}")
    a(f"s_branch {N}_dloop")
    a.label(f"{N}_dend")
    a("s_nop 7")
    stamp(3)

    xrow('v_add_f32', vL, T0)
    xrow('v_add_f32', vLA, T0 + 1)
    a(f"s_lshl_b32 s{sT0}, s{sV}, 11")
    a(f"v_add_u32 v{vT}, s{sT0}, v{vVoff}")
    a(f"ds_write_b128 v{vT}, {vr(ACC,4)} offset:{L_BM}")
    a(f"ds_write_b128 v{vT}, {vr(ACC+4,4)} offset:{L_BM+1024}")
    a(f"ds_write_b128 v{vT}, {vr(ACCA,4)} offset:{L_AM}")
    a(f"ds_write_b128 v{vT}, {vr(ACCA+4,4)} offset:{L_AM+1024}")
    a(f"s_lshl_b32 s{sT0}, s{sV}, 5")
    a(f"v_lshlrev_b32 v{vT}, 3, v{vBank}")
    a(f"v_add_u32 v{vT}, s{sT0}, v{vT}")
    a(f"ds_write_b64 v{vT}, {vr(vM,2)} offset:{L_MLB}")
    a(f"ds_write_b64 v{vT}, {vr(vMA,2)} offset:{L_MLA}")
    a("s_waitcnt lgkmcnt(0)")
    a("s_barrier")
    stamp(4)
    vTid, vI32, vHH, vLA_, vML, vG, vGM = 164, 165, 166, 167, 168, 169, 170
    a(f"s_lshl_b32 s{sT0}, s{sV}, 6")
    a(f"v_add_u32 v{vTid}, s{sT0}, v{vLane}")
    a(f"v_and_b32 v{vI32}, 31, v{vTid}")
    a(f"v_lshrrev_b32 v{vHH}, 5, v{vTid}")
    a(f"v_and_b32 v{vHH}, 3, v{vHH}")
    a(f"v_and_b32 v{vT}, 1, v{vI32}")
    a(f"v_lshlrev_b32 v{vT}, 10, v{vT}")
    a(f"v_lshrrev_b32 v{vT+1}, 1, v{vI32}")
    a(f"v_lshl_add_u32 v{vT+1}, v{vHH}, 4, v{vT+1}")
    a(f"v_lshl_add_u32 v{vLA_}, v{vT+1}, 4, v{vT}")
    a(f"s_cmp_lt_u32 s{sV}, 3")
    a(f"s_cbranch_scc0 {N}_nomerge")
    a(f"s_cmp_eq_u32 s{sV}, 2")
    for (sr_, va, vb) in ((sT0, L_AM, L_BM), (sT1, L_MLA, L_MLB), (sT2, O_OA, O_OB), (sT3, O_MLA, O_MLB)):
        a(f"s_mov_b32 s{sr_}, {vb}")
        a(f"s_cmov_b32 s{sr_}, {va}")
    a(f"s_cselect_b32 vcc_hi, 0, -1")
    a(f"s_mov_b32 vcc_lo, -1")
    vRA = 171
    a(f"v_add_u32 v{vRA}, s{sT0}, v{vLA_}")
    a(f"v_lshlrev_b32 v{vML}, 3, v{vHH}")
    a(f"v_add_u32 v{vGM}, s{sT3}, v{vML}")
    a(f"v_add_u32 v{vGM}, s{sSlot}, v{vGM}")
    a(f"v_add_u32 v{vML}, s{sT1}, v{vML}")
    a(f"v_lshlrev_b32 v{vG}, 9, v{vHH}")
    a(f"v_lshl_add_u32 v{vG}, v{vI32}, 4, v{vG}")
    a(f"v_add_u32 v{vG}, s{sT2}, v{vG}")
    a(f"v_add_u32 v{vG}, s{sSlot}, v{vG}")
    a("s_mov_b64 exec, vcc")
    MLr, AC = 172, 188
    for vv in range(8):
        a(f"ds_read_b64 {vr(MLr+2*vv,2)}, v{vML} offset:{vv*32}")
    for vv in range(8):
        a(f"ds_read_b128 {vr(AC+4*vv,4)}, v{vRA} offset:{vv*2048}")
    a("s_waitcnt lgkmcnt(8)")
    Ms = 220
    a(f"v_max3_f32 v{Ms}, v{MLr}, v{MLr+2}, v{MLr+4}")
    a(f"v_max3_f32 v{Ms}, v{Ms}, v{MLr+6}, v{MLr+8}")
    a(f"v_max3_f32 v{Ms}, v{Ms}, v{MLr+10}, v{MLr+12}")
    a(f"v_max_f32 v{Ms}, v{Ms}, v{MLr+14}")
    for vv in range(8): a(f"v_sub_f32 v{MLr+2*vv}, v{MLr+2*vv}, v{Ms}")
    for vv in range(8): a(f"v_mul_f32 v{MLr+2*vv}, s{sL2E}, v{MLr+2*vv}")
    for vv in range(8): a(f"v_exp_f32 v{MLr+2*vv}, v{MLr+2*vv}")
    a(f"v_mul_f32 v{Ms+1}, v{MLr}, v{MLr+1}")
    for vv in range(1, 8): a(f"v_fma_f32 v{Ms+1}, v{MLr+2*vv}, v{MLr+2*vv+1}, v{Ms+1}")
    a("s_waitcnt lgkmcnt(0)")
    O4 = 224
    for r in range(4): a(f"v_mul_f32 v{O4+r}, v{MLr}, v{AC+r}")
    for vv in range(1, 8):
        for r in range(4): a(f"v_fma_f32 v{O4+r}, v{MLr+2*vv}, v{AC+4*vv+r}, v{O4+r}")
    a(f"buffer_store_dwordx4 {vr(O4,4)}, v{vG}, {sr(R_WS,4)}, 0 offen sc1")
    a(f"v_cmp_eq_u32 vcc, 0, v{vI32}")
    a("s_and_b64 exec, exec, vcc")
    a(f"buffer_store_dwordx2 {vr(Ms,2)}, v{vGM}, {sr(R_WS,4)}, 0 offen sc1")
    a("s_mov_b64 exec, -1")
    a("s_nop 7")
    a.label(f"{N}_nomerge")
    stamp(5)

    sHU, sCU = sJ, sOff
    a(f"s_and_b32 s{sT0}, s{sW}, 7")
    a(f"s_lshl_b32 s{sHU}, s{sT0}, 2")
    a(f"s_lshr_b32 s{sT1}, s{sW}, 3")
    a(f"s_and_b32 s{sT1}, s{sT1}, 3")
    a(f"s_add_u32 s{sHU}, s{sHU}, s{sT1}")
    a(f"s_lshr_b32 s{sCU}, s{sW}, 5")
    a(f"s_and_b32 s{sCU}, s{sCU}, 1")
    a(f"s_lshl_b32 s{sCU}, s{sCU}, 3")
    a(f"s_add_u32 s{sCU}, s{sCU}, s{sV}")
    vS, vMm = 172, 173
    a(f"v_lshrrev_b32 v{vS}, 1, v{vLane}")
    a(f"v_and_b32 v{vS}, 7, v{vS}")
    a(f"v_and_b32 v{vMm}, 1, v{vLane}")
    vBo, vBm, vAo, vAm = 174, 175, 176, 177
    a(f"s_lshl_b32 s{sT2}, s{sT0}, 3")
    a(f"v_lshl_add_u32 v{vT}, v{vRow}, 6, v{vS}")
    a(f"v_add_u32 v{vBm}, s{sT2}, v{vT}")
    a(f"v_lshlrev_b32 v{vBm}, 13, v{vBm}")
    a(f"s_lshl_b32 s{sT2}, s{sT1}, 9")
    a(f"s_lshl_b32 s{sT3}, s{sCU}, 5")
    a(f"s_add_u32 s{sT2}, s{sT2}, s{sT3}")
    a(f"s_add_u32 s{sT2}, s{sT2}, {O_OB}")
    a(f"v_lshl_add_u32 v{vBo}, v{vMm}, 4, v{vBm}")
    a(f"v_add_u32 v{vBo}, s{sT2}, v{vBo}")
    a(f"s_lshl_b32 s{sT2}, s{sT1}, 3")
    a(f"s_add_u32 s{sT2}, s{sT2}, {O_MLB}")
    a(f"v_add_u32 v{vBm}, s{sT2}, v{vBm}")
    a(f"s_lshl_b32 s{sT2}, s{sHU}, 1")
    a(f"v_add_u32 v{vAm}, s{sT2}, v{vT}")
    a(f"v_lshlrev_b32 v{vAm}, 13, v{vAm}")
    a(f"s_add_u32 s{sT3}, s{sT3}, {O_OA}")
    a(f"v_lshl_add_u32 v{vAo}, v{vMm}, 4, v{vAm}")
    a(f"v_add_u32 v{vAo}, s{sT3}, v{vAo}")
    a(f"v_add_u32 v{vAm}, {O_MLA}, v{vAm}")
    OB4, MLB2, OA4, MLA2 = 180, 184, 188, 192
    for k in range(4): a(f"v_mov_b32 v{OA4+k}, 0")
    a(f"v_mov_b32 v{MLA2}, 0xff7fffff")
    a(f"v_mov_b32 v{MLA2+1}, 0")
    sAm = 100
    a(f"v_cmp_gt_u32 s[{sAm}:{sAm+1}], 2, v{vS}")
    a(f"s_mov_b32 s{sSpin}, 0")
    a.label(f"{N}_p1")
    a(f"buffer_load_dwordx4 {vr(OB4,4)}, v{vBo}, {sr(R_WS,4)}, 0 offen sc1")
    a(f"buffer_load_dwordx2 {vr(MLB2,2)}, v{vBm}, {sr(R_WS,4)}, 0 offen sc1")
    a(f"s_mov_b64 exec, s[{sAm}:{sAm+1}]")
    a(f"buffer_load_dwordx4 {vr(OA4,4)}, v{vAo}, {sr(R_WS,4)}, 0 offen sc1")
    a(f"buffer_load_dwordx2 {vr(MLA2,2)}, v{vAm}, {sr(R_WS,4)}, 0 offen sc1")
    a("s_mov_b64 exec, -1")
    a("s_waitcnt vmcnt(0)")
    a(f"v_max3_u32 v{vT}, v{OB4}, v{OB4+1}, v{OB4+2}")
    a(f"v_max3_u32 v{vT}, v{vT}, v{OB4+3}, v{MLB2}")
    a(f"v_max3_u32 v{vT}, v{vT}, v{MLB2+1}, v{OA4}")
    a(f"v_max3_u32 v{vT}, v{vT}, v{OA4+1}, v{OA4+2}")
    a(f"v_max3_u32 v{vT}, v{vT}, v{OA4+3}, v{MLA2}")
    a(f"v_max_u32 v{vT}, v{vT}, v{MLA2+1}")
    a(f"v_cmp_eq_u32 vcc, -1, v{vT}")
    a("s_cmp_eq_u64 vcc, 0")
    a(f"s_cbranch_scc1 {N}_p1d")
    spin_tail(f"{N}_p1", f"{N}_p1d")
    a.label(f"{N}_p1d")
    stamp(6)
    def combine(o4, ml):
        Mx, sc = 196, 197
        a(f"v_mov_b32 v{Mx}, v{ml}")
        for n in (8, 4, 2):
            a(f"v_max_f32_dpp v{Mx}, v{Mx}, v{Mx} row_ror:{n} {FULL}")
        a(f"v_sub_f32 v{sc}, v{ml}, v{Mx}")
        a(f"v_mul_f32 v{sc}, s{sL2E}, v{sc}")
        a(f"v_exp_f32 v{sc}, v{sc}")
        a(f"v_mul_f32 v{ml+1}, v{ml+1}, v{sc}")
        for r in range(4): a(f"v_mul_f32 v{o4+r}, v{o4+r}, v{sc}")
        for n in (8, 4, 2):
            for r in [ml + 1] + [o4 + k for k in range(4)]:
                a(f"v_add_f32_dpp v{r}, v{r}, v{r} row_ror:{n} {FULL}")
        a(f"v_rcp_f32 v{sc}, v{ml+1}")
        for r in range(4): a(f"v_mul_f32 v{o4+r}, v{o4+r}, v{sc}")
    combine(OB4, MLB2)
    combine(OA4, MLA2)
    a(f"s_lshl_b32 s{sT0}, s{sV}, 8")
    a(f"v_lshlrev_b32 v{vT}, 5, v{vRow}")
    a(f"v_lshl_add_u32 v{vT}, v{vMm}, 4, v{vT}")
    a(f"v_add_u32 v{vT}, s{sT0}, v{vT}")
    a(f"ds_write_b128 v{vT}, {vr(OA4,4)} offset:{L_OT}")
    a(f"ds_write_b128 v{vT}, {vr(OB4,4)} offset:{L_OT+128}")
    a(f"v_lshlrev_b32 v{vT+1}, 5, v{vBank}")
    a(f"v_lshl_add_u32 v{vT+1}, v{vRow}, 2, v{vT+1}")
    a(f"v_add_u32 v{vT+1}, s{sT0}, v{vT+1}")
    a("s_waitcnt lgkmcnt(0)")
    XO = 200
    a(f"ds_read_b32 v{XO}, v{vT+1} offset:{L_OT}")
    a(f"ds_read_b32 v{XO+1}, v{vT+1} offset:{L_OT+16}")
    a(f"ds_read_b32 v{XO+2}, v{vT+1} offset:{L_OT+128}")
    a(f"ds_read_b32 v{XO+3}, v{vT+1} offset:{L_OT+144}")
    a(f"v_lshlrev_b32 v{vT}, 3, v{vRow}")
    GG = 204
    a(f"ds_read_b64 {vr(GG,2)}, v{vT} offset:{L_G}")
    a("s_waitcnt lgkmcnt(0)")
    for k in range(4): a(f"v_cvt_pk_bf16_f32 v{XO+k}, v{XO+k}, v{XO+k}")
    YA, YB = DD, DD + 8
    for k, (wo, acc) in enumerate(((WOA, YA), (WOA + 4, YA), (WOB, YB), (WOB + 4, YB))):
        win_from(XO + k)
        pv(None, wo, acc, acc + 4, k % 2 == 0)
    for k in range(8): a(f"v_mul_f32 v{YB+k}, v{YB+k}, v{GG+1}")
    for k in range(8): a(f"v_fma_f32 v{YA+k}, v{YA+k}, v{GG}, v{YB+k}")
    a(f"s_lshl_b32 s{sT0}, s{sV}, 11")
    a(f"v_add_u32 v{vT}, s{sT0}, v{vVoff}")
    a(f"ds_write_b128 v{vT}, {vr(YA,4)} offset:{L_YP}")
    a(f"ds_write_b128 v{vT}, {vr(YA+4,4)} offset:{L_YP+1024}")
    a("s_waitcnt lgkmcnt(0)")
    a("s_barrier")
    stamp(7)
    a(f"s_cmp_lt_u32 s{sV}, 2")
    a(f"s_cbranch_scc0 {N}_noy")
    for vv in range(8):
        a(f"ds_read_b128 {vr(AC+4*vv,4)}, v{vLA_} offset:{L_YP + vv*2048}")
    a(f"v_lshlrev_b32 v{vG}, 9, v{vHH}")
    a(f"v_lshl_add_u32 v{vG}, v{vI32}, 4, v{vG}")
    a(f"v_add_u32 v{vG}, s{sSlot}, v{vG}")
    a("s_waitcnt lgkmcnt(0)")
    for step in (4, 2, 1):
        for g in range(step):
            for r in range(4):
                a(f"v_add_f32 v{AC+4*g+r}, v{AC+4*g+r}, v{AC+4*(g+step)+r}")
    a(f"buffer_store_dwordx4 {vr(AC,4)}, v{vG}, {sr(R_WS,4)}, 0 offen offset:{O_Y} sc1")
    stamp(8)
    a(f"s_branch {N}_done")
    a.label(f"{N}_noy")
    a(f"s_cmp_eq_u32 s{sV}, 2")
    a(f"s_cbranch_scc0 {N}_done")
    a(f"s_and_b32 s{sT0}, s{sW}, 7")
    a(f"s_lshr_b32 s{sT1}, s{sW}, 3")
    a(f"s_and_b32 s{sT1}, s{sT1}, 7")
    a(f"s_lshr_b32 s{sT2}, s{sT0}, 1")
    a(f"s_lshl_b32 s{sT2}, s{sT2}, 19")
    a(f"s_lshl_b32 s{sT3}, s{sB}, 9")
    a(f"s_add_u32 s{sT2}, s{sT2}, s{sT3}")
    a(f"s_and_b32 s{sT3}, s{sT0}, 1")
    a(f"s_lshl_b32 s{sT3}, s{sT3}, 8")
    a(f"s_add_u32 s{sT2}, s{sT2}, s{sT3}")
    a(f"s_lshl_b32 s{sT3}, s{sT1}, 5")
    a(f"s_add_u32 s{sT2}, s{sT2}, s{sT3}")
    a(f"v_lshlrev_b32 v{vT}, 13, v{vLane}")
    a(f"v_add_u32 v{vT}, s{sT2}, v{vT}")
    F = 180
    a(f"s_mov_b32 s{sSpin}, 0")
    a.label(f"{N}_p2")
    a(f"buffer_load_dwordx4 {vr(F,4)}, v{vT}, {sr(R_WS,4)}, 0 offen offset:{O_Y} sc1")
    a(f"buffer_load_dwordx4 {vr(F+4,4)}, v{vT}, {sr(R_WS,4)}, 0 offen offset:{O_Y+16} sc1")
    a("s_waitcnt vmcnt(0)")
    a(f"v_max3_u32 v{vT+1}, v{F}, v{F+1}, v{F+2}")
    a(f"v_max3_u32 v{vT+1}, v{vT+1}, v{F+3}, v{F+4}")
    a(f"v_max3_u32 v{vT+1}, v{vT+1}, v{F+5}, v{F+6}")
    a(f"v_max_u32 v{vT+1}, v{vT+1}, v{F+7}")
    a(f"v_cmp_eq_u32 vcc, -1, v{vT+1}")
    a("s_cmp_eq_u64 vcc, 0")
    a(f"s_cbranch_scc1 {N}_p2d")
    spin_tail(f"{N}_p2", f"{N}_p2d")
    a.label(f"{N}_p2d")
    stamp(9)
    for k in range(4):
        a(f"v_permlane32_swap_b32 v{F+2*k}, v{F+2*k+1}")
    for k in range(4):
        a(f"v_add_f32 v{F+2*k}, v{F+2*k}, v{F+2*k+1}")
    a(f"v_permlane16_swap_b32 v{F}, v{F+2}")
    a(f"v_permlane16_swap_b32 v{F+4}, v{F+6}")
    a(f"v_add_f32 v{F}, v{F}, v{F+2}")
    a(f"v_add_f32 v{F+4}, v{F+4}, v{F+6}")
    for n in (8, 4, 2, 1):
        a(f"v_add_f32_dpp v{F}, v{F}, v{F} row_ror:{n} {FULL}")
        a(f"v_add_f32_dpp v{F+4}, v{F+4}, v{F+4} row_ror:{n} {FULL}")
    a(f"v_cvt_pk_bf16_f32 v{F}, v{F}, v{F+4}")
    a(f"v_and_b32 v{vT}, 1, v{vRow}")
    a(f"v_lshlrev_b32 v{vT}, 1, v{vT}")
    a(f"v_lshrrev_b32 v{vT+1}, 1, v{vRow}")
    a(f"v_add_u32 v{vT}, v{vT}, v{vT+1}")
    a(f"v_lshlrev_b32 v{vT}, 1, v{vT}")
    a(f"s_lshl_b32 s{sT2}, s{sB}, 10")
    a(f"s_lshl_b32 s{sT0}, s{sT0}, 7")
    a(f"s_lshl_b32 s{sT1}, s{sT1}, 4")
    a(f"s_add_u32 s{sT2}, s{sT2}, s{sT0}")
    a(f"s_add_u32 s{sT2}, s{sT2}, s{sT1}")
    a(f"v_add_u32 v{vT}, s{sT2}, v{vT}")
    a("s_mov_b32 exec_lo, 0x00010001")
    a("s_mov_b32 exec_hi, 0x00010001")
    a(f"buffer_store_short v{F}, v{vT}, {sr(R_OUT,4)}, 0 offen")
    a(f"buffer_store_short_d16_hi v{F}, v{vT}, {sr(R_OUT,4)}, 0 offen offset:8")
    a("s_mov_b64 exec, -1")
    stamp(10)
    a(f"s_branch {N}_done")

    a.label(f"{N}_job2")
    a(f"s_cmp_eq_u32 s{sV}, 3")
    a(f"s_cbranch_scc0 {N}_jobret")
    GX, GW = 164, 180
    a(f"v_lshlrev_b32 v{vT+1}, 6, v{vC}")
    a(f"v_lshl_add_u32 v{vT}, v{vRow}, 10, v{vT+1}")
    for k in range(4):
        a(f"buffer_load_dwordx4 {vr(GX+4*k,4)}, v{vT}, {sr(R_X,4)}, 0 offen offset:{16*k}")
        a(f"buffer_load_dwordx4 {vr(GW+4*k,4)}, v{vT+1}, {sr(R_GW,4)}, 0 offen offset:{16*k}")
    a("s_waitcnt vmcnt(0)")
    z, t0, t1, t2, t3 = 196, 197, 198, 199, 200
    a(f"v_mov_b32 v{z}, 0")
    for k in range(16):
        a(f"v_lshlrev_b32 v{t0}, 16, v{GX+k}")
        a(f"v_lshlrev_b32 v{t1}, 16, v{GW+k}")
        a(f"v_and_b32 v{t2}, 0xffff0000, v{GX+k}")
        a(f"v_and_b32 v{t3}, 0xffff0000, v{GW+k}")
        a(f"v_mul_f32 v{t0}, v{t0}, v{t1}")
        a(f"v_mul_f32 v{t2}, v{t2}, v{t3}")
        a(f"v_cvt_pk_bf16_f32 v{t0}, v{t0}, v{t2}")
        a(f"v_lshlrev_b32 v{t1}, 16, v{t0}")
        a(f"v_and_b32 v{t0}, 0xffff0000, v{t0}")
        a(f"v_add_f32 v{z}, v{z}, v{t1}")
        a(f"v_add_f32 v{z}, v{z}, v{t0}")
    for n in (8, 4, 2, 1):
        a(f"v_add_f32_dpp v{z}, v{z}, v{z} row_ror:{n} {FULL}")
    a(f"v_cvt_pk_bf16_f32 v{z}, v{z}, v{z}")
    a(f"v_and_b32 v{z}, 0xffff0000, v{z}")
    a(f"v_mul_f32 v{z}, s{sNL2E}, v{z}")
    a(f"v_exp_f32 v{z}, v{z}")
    a(f"v_add_f32 v{z}, 1.0, v{z}")
    a(f"v_rcp_f32 v{z}, v{z}")
    g0 = 198
    a(f"v_cvt_pk_bf16_f32 v{g0}, v{z}, v{z}")
    a(f"v_and_b32 v{g0}, 0xffff0000, v{g0}")
    a(f"v_sub_f32 v{g0+1}, 1.0, v{g0}")
    a(f"v_cvt_pk_bf16_f32 v{g0+1}, v{g0+1}, v{g0+1}")
    a(f"v_and_b32 v{g0+1}, 0xffff0000, v{g0+1}")
    a(f"v_lshlrev_b32 v{vT}, 3, v{vRow}")
    a(f"ds_write_b64 v{vT}, {vr(g0,2)} offset:{L_G}")
    a("s_waitcnt lgkmcnt(0)")
    a("s_nop 7")
    a(f"s_branch {N}_jobret")
    a.label(f"{N}_job8")
    a(f"s_cmp_eq_u32 s{sV}, 2")
    a(f"s_cbranch_scc0 {N}_jobret")
    a(f"s_mov_b32 s{sSpin}, 0")
    a(f"v_mov_b32 v{vT}, 0")
    a.label(f"{N}_c0")
    a(f"global_load_dword v{vT+1}, v{vT}, s[{P_DBG}:{P_DBG+1}] sc1")
    a("s_waitcnt vmcnt(0)")
    a(f"v_readfirstlane_b32 s{sT0}, v{vT+1}")
    a(f"s_cmp_ge_u32 s{sT0}, 256")
    a(f"s_cbranch_scc1 {N}_c0d")
    spin_tail(f"{N}_c0", f"{N}_c0d")
    a.label(f"{N}_c0d")
    a(f"s_lshr_b32 s{sT0}, s{sW}, 3")
    a(f"s_and_b32 s{sT0}, s{sT0}, 7")
    a(f"s_lshl_b32 s{sT0}, s{sT0}, 16")
    a(f"s_lshl_b32 s{sT1}, s{sB}, 9")
    a(f"s_add_u32 s{sT0}, s{sT0}, s{sT1}")
    a(f"s_add_u32 s{sT0}, s{sT0}, {WS_QB}")
    a(f"v_lshlrev_b32 v{vT}, 14, v{vBank}")
    a(f"v_lshl_add_u32 v{vT}, v{vRow}, 7, v{vT}")
    a(f"v_lshl_add_u32 v{vT}, v{vQ}, 5, v{vT}")
    a(f"v_add_u32 v{vT}, s{sT0}, v{vT}")
    S2 = 164
    for sl in range(8):
        a(f"s_mov_b32 s{sT1}, {(sl // 2) * 4096}")
        for m in range(2):
            a(f"buffer_load_dwordx4 {vr(S2 + 8*sl + 4*m, 4)}, v{vT}, {sr(R_WS,4)}, s{sT1} offen offset:{(sl % 2) * 2048 + 16*m} sc1")
    a("s_waitcnt vmcnt(0)")
    tree_sum8(S2)
    for k in range(4):
        a(f"v_cvt_pk_bf16_f32 v{S2+8+k}, v{S2+2*k}, v{S2+2*k+1}")
    a(f"ds_write_b128 v{vVoff}, {vr(S2+8,4)} offset:{L_QBOP}")
    a("s_waitcnt lgkmcnt(0)")
    a(f"v_mov_b32 v{vT}, {L_FLAG}")
    a(f"ds_write_b32 v{vT}, v{vOne}")
    a("s_waitcnt lgkmcnt(0)")
    a("s_nop 7")
    a(f"s_branch {N}_jobret")
    a.label(f"{N}_job12")
    a(f"s_and_b32 s{sT0}, s{sW}, 7")
    a(f"s_lshl_b32 s{sT0}, s{sT0}, 2")
    a(f"s_lshr_b32 s{sT1}, s{sW}, 3")
    a(f"s_and_b32 s{sT1}, s{sT1}, 3")
    a(f"s_add_u32 s{sT0}, s{sT0}, s{sT1}")
    a(f"s_lshl_b32 s{sT0}, s{sT0}, 4")
    a(f"s_lshr_b32 s{sT1}, s{sW}, 5")
    a(f"s_and_b32 s{sT1}, s{sT1}, 1")
    a(f"s_lshl_b32 s{sT1}, s{sT1}, 3")
    a(f"s_add_u32 s{sT0}, s{sT0}, s{sT1}")
    a(f"s_add_u32 s{sT0}, s{sT0}, s{sV}")
    a(f"s_lshl_b32 s{sT0}, s{sT0}, 13")
    a(f"s_lshr_b32 s{sT1}, s{sW}, 6")
    a(f"s_lshl_b32 s{sT1}, s{sT1}, 8")
    a(f"s_add_u32 s{sT0}, s{sT0}, s{sT1}")
    a(f"s_add_u32 s{sT1}, s{sT0}, 4096")
    a(f"v_lshlrev_b32 v{vT}, 4, v{vC}")
    a(f"v_lshl_add_u32 v{vT}, v{vRow}, 10, v{vT}")
    a(f"buffer_load_dwordx4 {vr(WOA,4)}, v{vT}, {sr(R_WOA,4)}, s{sT0} offen nt")
    a(f"buffer_load_dwordx4 {vr(WOA+4,4)}, v{vT}, {sr(R_WOA,4)}, s{sT1} offen nt")
    a(f"buffer_load_dwordx4 {vr(WOB,4)}, v{vT}, {sr(R_WOB,4)}, s{sT0} offen nt")
    a(f"buffer_load_dwordx4 {vr(WOB+4,4)}, v{vT}, {sr(R_WOB,4)}, s{sT1} offen nt")
    a(f"s_branch {N}_jobret")

    a.label(f"{N}_done")
    a("s_endpgm")
    body_text, npad = a.text()
    kd = f"""
.section .rodata,"a"
.p2align 6
.amdhsa_kernel {N}
  .amdhsa_next_free_vgpr {NVGPR}
  .amdhsa_next_free_sgpr 102
  .amdhsa_accum_offset {NVGPR}
  .amdhsa_group_segment_fixed_size 0
  .amdhsa_kernarg_size 112
  .amdhsa_user_sgpr_count 2
  .amdhsa_user_sgpr_kernarg_segment_ptr 1
  .amdhsa_system_sgpr_workgroup_id_x 1
  .amdhsa_float_denorm_mode_32 3
.end_amdhsa_kernel
"""
    return body_text, kd, npad

HEADER = open('gated_mix__mha_block_cached__gqa_block_cached__decode.s.ref').read().split('; Override launch geometry')[0]

def full_file(cfg):
    body, kd, npad = build(cfg)
    s = HEADER
    s += f"; @launch grid=(256,1,1) block=(512,1,1) lds={LDS_BYTES}\n"
    s += '.amdgcn_target "amdgcn-amd-amdhsa--gfx950"\n.text\n'
    s += body + "\n" + kd
    return s, npad

if __name__ == '__main__':
    cfg = Cfg()
    out = sys.argv[1]
    for kv in sys.argv[2:]:
        k, v = kv.split('=')
        cur = getattr(cfg, k)
        setattr(cfg, k, type(cur)(int(v)) if isinstance(cur, (bool, int)) else v)
    s, npad = full_file(cfg)
    open(out, 'w').write(s)
    print('written', out, len(s), 'bytes; nop pads', npad)
```

```python
import sys, os
sys.path.insert(0, os.path.dirname(os.path.abspath(__file__)))
from asmlib import Asm

KNAME = 'gated_mix__mha_block_cached__gqa_block_cached__decode_kernel'

class Cfg:
    D = 4
    NS = 14
    I0 = 8
    diag = False
    SPIN = 200000
    name = KNAME
    kflags = 'nt'
    vflags = 'nt'
    wqflags = ''
    dynA = True
    J_GATHER = 6
    tlog = False
    dummy_atomic = 0
    sclaim = True
    CA = 4
    ileave = False

sW, sV = 2, 3
P_X, P_KA, P_VA, P_WQA, P_WOA, P_BX, P_KB, P_VB = 4, 6, 8, 10, 12, 14, 16, 18
P_WQB, P_WOB, P_GW, P_OUT = 20, 22, 24, 26
P_DBG, P_WS = 28, 30
R_IK, R_IV = 4, 8
sMrg, sMl0, sS2 = 12, 14, 16
sPhase, sLim, sBase, sKc, sSpare, sBst = 18, 19, 20, 21, 22, 23
sK0, sK1, sK2 = 24, 25, 26
sClaim, sCnt, sCntB = 83, 84, 101
sRem, sStride = 0, 1
R_KA, R_VA, R_KB, R_VB = 32, 36, 40, 44
R_WQA, R_WQB, R_WOA, R_WOB = 48, 52, 56, 60
R_X, R_GW, R_WS, R_OUT = 64, 68, 72, 76
sB = 80
sOff = 81
sJ = 82
sT0, sT1, sT2, sT3 = 85, 86, 87, 88
sBbase = 89
sScale, sL2E, sNL2E = 90, 91, 92
sSpin = 93
sSlot = 94
sIdx = 95
sSelLo, sSelHi = 96, 97
sStamp = 98

vLane = 0
vKoff, vVoff, vKcur, vVcur = 1, 2, 3, 4
vMask0, vMask1 = 5, 6
vCnt, vOne, vClaim = 7, 8, 9
vRow, vBank, vQ, vC = 10, 11, 12, 13
vT = 14
RING = 16
QOP = 80
QB = 84
ACC = 88
ACCA = 96
vM, vL, vMA, vLA = 104, 105, 106, 107
DD = 108
Y = 124
PP = 128
WIN = 132
vAl, vAT, vNM, vMn = 138, 139, 140, 141
T0 = 142
WOA = 148
WOB = 156
TMP = 164
vW1, vW2, vRA, vML, vG, vGM, vBo, vBm, vAo, vAm, vS2r, vR1, vR2, vO1, vO2, vLA_, vGy, vF, vOut, vCntB, vSpare = range(228, 249)
NVGPR = 256

L_QBOP = 0
L_MLB, L_MLA = 1024, 1280
L_OT = 1536
L_G = 3584
L_FLAG = 3648
L_QA, L_QBP = 4096, 20480
L_BM, L_AM = 36864, 53248
L_YP = L_QA
L_G1B, L_G1A, L_G1MB, L_G1MA = L_QBP, L_QBP + 8192, L_QBP + 10240, L_QBP + 10496
LDS_BYTES = 69632

O_Y, O_OB, O_OA, O_MLB, O_MLA = 0, 2048, 4096, 4608, 4640
WS_QB = 2 << 20
WS_CNT = 3 << 20
WS_STAMP = (3 << 20) + (512 << 10)
WS_BYTES = 8 << 20
WS_TLOG = 4 << 20
sLog = 27

def vr(a, n): return f"v[{a}:{a+n-1}]"
def sr(a, n): return f"s[{a}:{a+n-1}]"
def kslot(st, u): return RING + 32 * st + 4 * u
def vslot(st, u): return RING + 32 * st + 16 + 4 * u
MFMA = 'v_mfma_f32_16x16x32_bf16'
FULL = 'row_mask:0xf bank_mask:0xf'

def build(cfg):
    a = Asm()
    N = cfg.name
    D = cfg.D
    NS = cfg.NS
    NAD = 512 - 16 * NS
    NADT = 64 - 2 * NS
    def stamp(i):
        if not cfg.diag: return
        a(f"s_memrealtime s[{sStamp}:{sStamp+1}]")
        a("s_waitcnt lgkmcnt(0)")
        a(f"v_mov_b32 v{vT}, s{sStamp}")
        a(f"s_lshl_b32 s{sT3}, s{sW}, 3")
        a(f"s_add_u32 s{sT3}, s{sT3}, s{sV}")
        a(f"s_lshl_b32 s{sT3}, s{sT3}, 7")
        a(f"s_add_u32 s{sT3}, s{sT3}, {WS_STAMP + 4*i}")
        a(f"v_mov_b32 v{vT+1}, s{sT3}")
        a(f"buffer_store_dword v{vT}, v{vT+1}, {sr(R_WS,4)}, 0 offen")

    def tlog():
        if not cfg.tlog: return
        a(f"s_memrealtime s[{sStamp}:{sStamp+1}]")
        a("s_waitcnt lgkmcnt(0)")
        a(f"v_mov_b32 v{vT}, s{sStamp}")
        a(f"v_mov_b32 v{vT+1}, s{sLog}")
        a("s_mov_b64 exec, 1")
        a(f"buffer_store_dword v{vT}, v{vT+1}, {sr(R_WS,4)}, 0 offen")
        a("s_mov_b64 exec, -1")
        a(f"s_add_u32 s{sLog}, s{sLog}, 4")

    def srd(r, p, size):
        a(f"s_mov_b32 s{r}, s{p}")
        a(f"s_and_b32 s{r+1}, s{p+1}, 0xffff")
        a(f"s_mov_b32 s{r+2}, {hex(size)}")
        a(f"s_mov_b32 s{r+3}, 0x20000")

    def pv(data, acc0, acc1, first):
        c0 = '0' if first else vr(acc0, 4)
        c1 = '0' if first else vr(acc1, 4)
        a(f"{MFMA} {vr(acc0,4)}, {vr(WIN+2,4)}, {vr(data,4)}, {c0}")
        a(f"{MFMA} {vr(acc1,4)}, {vr(WIN,4)}, {vr(data,4)}, {c1}")

    def win_from(pp):
        a(f"v_and_b32 v{WIN+2}, v{pp}, v{vMask0}")
        a(f"v_and_b32 v{WIN+3}, v{pp}, v{vMask1}")

    def xrow(op, r, t):
        a(f"v_mov_b32 v{t}, v{r}")
        a(f"v_permlane16_swap_b32 v{r}, v{t}")
        a(f"{op} v{r}, v{r}, v{t}")
        a(f"v_mov_b32 v{t}, v{r}")
        a(f"v_permlane32_swap_b32 v{r}, v{t}")
        a(f"{op} v{r}, v{r}, v{t}")

    def spin_tail(lab_loop, lab_done):
        a(f"s_add_u32 s{sSpin}, s{sSpin}, 1")
        a(f"s_cmp_gt_u32 s{sSpin}, {cfg.SPIN}")
        a(f"s_cbranch_scc1 {lab_done}")
        a("s_sleep 2")
        a(f"s_branch {lab_loop}")

    def tree_sum8(base):
        for step in (4, 2, 1):
            for g in range(step):
                for k in range(8):
                    a(f"v_add_f32 v{base+8*g+k}, v{base+8*g+k}, v{base+8*(g+step)+k}")

    def kv_load(st, isV, u, rk=R_KA, rv=R_VA):
        slot = vslot(st, u) if isV else kslot(st, u)
        r = rv if isV else rk
        va = vVcur if isV else vKcur
        fl = cfg.vflags if isV else cfg.kflags
        a(f"buffer_load_dwordx4 {vr(slot,4)}, v{va}, {sr(r,4)}, 0 offen offset:{u*1024} {fl}")

    a(f".globl {N}")
    a(".p2align 8")
    a(f".type {N},@function")
    a.label(N)
    a(f"s_cmp_ge_u32 s{sW}, 256")
    a(f"s_cbranch_scc1 {N}_done")
    if cfg.diag: a("s_memrealtime s[100:101]")
    a(f"s_load_dwordx16 s[4:19], s[0:1], 0")
    a(f"s_load_dwordx8 s[20:27], s[0:1], 64")
    a(f"s_load_dwordx4 s[28:31], s[0:1], 96")
    a(f"v_lshrrev_b32 v1, 6, v0")
    a(f"v_and_b32 v{vLane}, 63, v0")
    a(f"v_readfirstlane_b32 s{sV}, v1")
    a(f"v_lshrrev_b32 v{vRow}, 4, v{vLane}")
    a(f"v_lshrrev_b32 v{vBank}, 2, v{vLane}")
    a(f"v_and_b32 v{vBank}, 3, v{vBank}")
    a(f"v_and_b32 v{vQ}, 3, v{vLane}")
    a(f"v_and_b32 v{vC}, 15, v{vLane}")
    WQA, WQB, XA, XB = 164, 228, 236, 244
    vWa, vWb = T0, T0 + 1
    a(f"v_lshlrev_b32 v{vT+1}, 10, v{vBank}")
    a(f"s_lshl_b32 s{sT0}, s{sV}, 7")
    a(f"v_lshl_add_u32 v{vT}, v{vRow}, 5, v{vT+1}")
    a(f"v_add_u32 v{vT}, s{sT0}, v{vT}")
    a(f"s_and_b32 s{sT1}, s{sW}, 7")
    a(f"s_lshl_b32 s{sT2}, s{sT1}, 7")
    a(f"s_lshl_b32 s{sT3}, s{sV}, 4")
    a(f"s_add_u32 s{sT2}, s{sT2}, s{sT3}")
    a(f"v_lshl_add_u32 v{vT+1}, v{vRow}, 2, v{vT+1}")
    a(f"v_add_u32 v{vT+1}, s{sT2}, v{vT+1}")
    a(f"v_lshlrev_b32 v{vWa}, 4, v{vC}")
    a(f"v_lshl_add_u32 v{vWb}, v{vRow}, 14, v{vWa}")
    a(f"v_lshl_add_u32 v{vWa}, v{vRow}, 17, v{vWa}")
    a(f"s_lshr_b32 s{sT0}, s{sW}, 1")
    a(f"s_and_b32 s{sT0}, s{sT0}, 31")
    a(f"s_lshl_b32 s{sT0}, s{sT0}, 8")
    a(f"s_lshl_b32 s{sT2}, s{sV}, 19")
    a(f"s_add_u32 s{sT0}, s{sT0}, s{sT2}")
    a(f"s_lshl_b32 s{sT1}, s{sT1}, 3")
    a(f"s_add_u32 s{sT1}, s{sT1}, s{sV}")
    a(f"s_lshl_b32 s{sT1}, s{sT1}, 16")
    a(f"s_lshr_b32 s{sT2}, s{sW}, 3")
    a(f"s_lshl_b32 s{sT2}, s{sT2}, 8")
    a(f"s_add_u32 s{sT1}, s{sT1}, s{sT2}")
    a("s_waitcnt lgkmcnt(0)")
    srd(R_X, P_X, 4096)
    srd(R_WQA, P_WQA, 4 << 20)
    a(f"buffer_load_dwordx4 {vr(XA,4)}, v{vT}, {sr(R_X,4)}, 0 offen")
    a(f"buffer_load_dwordx4 {vr(XA+4,4)}, v{vT}, {sr(R_X,4)}, 0 offen offset:16")
    a(f"buffer_load_dword v{XB}, v{vT+1}, {sr(R_X,4)}, 0 offen")
    for i in range(16):
        a(f"buffer_load_dwordx4 {vr(WQA+4*i,4)}, v{vWa}, {sr(R_WQA,4)}, s{sT0} offen {cfg.wqflags}")
        if i < 15: a(f"s_add_u32 s{sT0}, s{sT0}, 8192")
    srd(R_WQB, P_WQB, 4 << 20)
    a(f"buffer_load_dwordx4 {vr(WQB,4)}, v{vWb}, {sr(R_WQB,4)}, s{sT1} offen nt")
    a(f"s_add_u32 s{sT1}, s{sT1}, 8192")
    a(f"buffer_load_dwordx4 {vr(WQB+4,4)}, v{vWb}, {sr(R_WQB,4)}, s{sT1} offen nt")
    srd(R_WOA, P_WOA, 4 << 20)
    srd(R_WOB, P_WOB, 4 << 20)
    a(f"s_and_b32 s{sT0}, s{sW}, 7")
    a(f"s_lshl_b32 s{sT0}, s{sT0}, 2")
    a(f"s_lshr_b32 s{sT1}, s{sW}, 3")
    a(f"s_and_b32 s{sT1}, s{sT1}, 3")
    a(f"s_add_u32 s{sT0}, s{sT0}, s{sT1}")
    a(f"s_lshl_b32 s{sT0}, s{sT0}, 4")
    a(f"s_lshr_b32 s{sT1}, s{sW}, 5")
    a(f"s_and_b32 s{sT1}, s{sT1}, 1")
    a(f"s_lshl_b32 s{sT1}, s{sT1}, 3")
    a(f"s_add_u32 s{sT0}, s{sT0}, s{sT1}")
    a(f"s_add_u32 s{sT0}, s{sT0}, s{sV}")
    a(f"s_lshl_b32 s{sT0}, s{sT0}, 13")
    a(f"s_lshr_b32 s{sT1}, s{sW}, 6")
    a(f"s_lshl_b32 s{sT1}, s{sT1}, 8")
    a(f"s_add_u32 s{sT0}, s{sT0}, s{sT1}")
    a(f"s_add_u32 s{sT1}, s{sT0}, 4096")
    a(f"v_lshlrev_b32 v{vT}, 4, v{vC}")
    a(f"v_lshl_add_u32 v{vT}, v{vRow}, 10, v{vT}")
    a(f"buffer_load_dwordx4 {vr(WOA,4)}, v{vT}, {sr(R_WOA,4)}, s{sT0} offen nt")
    a(f"buffer_load_dwordx4 {vr(WOA+4,4)}, v{vT}, {sr(R_WOA,4)}, s{sT1} offen nt")
    a(f"buffer_load_dwordx4 {vr(WOB,4)}, v{vT}, {sr(R_WOB,4)}, s{sT0} offen nt")
    a(f"buffer_load_dwordx4 {vr(WOB+4,4)}, v{vT}, {sr(R_WOB,4)}, s{sT1} offen nt")
    a(f"v_lshlrev_b32 v{vKoff}, 8, v{vBank}")
    a(f"v_lshl_add_u32 v{vKoff}, v{vRow}, 6, v{vKoff}")
    a(f"v_lshl_add_u32 v{vKoff}, v{vQ}, 4, v{vKoff}")
    a(f"v_lshlrev_b32 v{vVoff}, 4, v{vLane}")
    a(f"v_and_b32 v{vT}, 1, v{vQ}")
    a(f"v_cmp_eq_u32 vcc, 0, v{vT}")
    a(f"v_mov_b32 v{vT}, 0xffff0000")
    a(f"v_mov_b32 v{vT+1}, 0x0000ffff")
    a(f"v_cndmask_b32 v{vT}, v{vT}, v{vT+1}, vcc")
    a(f"v_cmp_gt_u32 vcc, 2, v{vQ}")
    a(f"v_cndmask_b32 v{vMask0}, 0, v{vT}, vcc")
    a(f"v_cndmask_b32 v{vMask1}, v{vT}, 0, vcc")
    for k in (0, 1, 4, 5): a(f"v_mov_b32 v{WIN+k}, 0")
    a(f"v_mov_b32 v{vOne}, 1")
    a(f"s_mov_b32 s{sScale}, 0x3db504f3")
    a(f"s_mov_b32 s{sL2E}, 0x3fb8aa3b")
    a(f"s_mov_b32 s{sNL2E}, 0xbfb8aa3b")
    a(f"s_mov_b32 s{sSelLo}, 0x01000100")
    a(f"s_mov_b32 s{sSelHi}, 0x03020302")
    a(f"s_lshr_b32 s{sB}, s{sW}, 6")
    a(f"s_lshl_b32 s{sSlot}, s{sW}, 13")
    srd(R_KA, P_KA, 256 << 20)
    srd(R_VA, P_VA, 256 << 20)
    srd(R_KB, P_KB, 64 << 20)
    srd(R_VB, P_VB, 64 << 20)
    srd(R_GW, P_GW, 1024)
    srd(R_OUT, P_OUT, 4096)
    srd(R_WS, P_WS, WS_BYTES)
    if cfg.tlog:
        a(f"s_lshl_b32 s{sLog}, s{sW}, 3")
        a(f"s_add_u32 s{sLog}, s{sLog}, s{sV}")
        a(f"s_lshl_b32 s{sLog}, s{sLog}, 8")
        a(f"s_add_u32 s{sLog}, s{sLog}, {WS_TLOG}")
    for k in range(3):
        a(f"s_mov_b32 s{R_IK+k}, s{R_KA+k}")
        a(f"s_mov_b32 s{R_IV+k}, s{R_VA+k}")
    a(f"s_mov_b32 s{R_IK+3}, 0x20000")
    a(f"s_mov_b32 s{R_IV+3}, 0x20000")
    a(f"s_lshr_b32 s{sT0}, s{sW}, 1")
    a(f"s_lshl_b32 s{sBase}, s{sT0}, 21")
    a(f"s_and_b32 s{sT1}, s{sW}, 1")
    a(f"s_mul_i32 s{sT1}, s{sT1}, {32768 if cfg.ileave else NS*32768}")
    a(f"s_add_u32 s{sOff}, s{sBase}, s{sT1}")
    a(f"s_lshl_b32 s{sT1}, s{sV}, 12")
    a(f"s_add_u32 s{sOff}, s{sOff}, s{sT1}")
    a(f"s_add_u32 s{sBase}, s{sBase}, s{sT1}")
    a(f"s_add_u32 s{sBase}, s{sBase}, {2*NS*32768}")
    a(f"s_lshl_b32 s{sT0}, s{sT0}, 3")
    a(f"s_add_u32 s{sT0}, s{sT0}, s{sV}")
    a(f"s_lshl_b32 s{sT0}, s{sT0}, 8")
    a(f"s_add_u32 s{sT0}, s{sT0}, {WS_CNT + 65536}")
    a(f"v_mov_b32 v{vCnt}, s{sT0}")
    a(f"s_mov_b32 s{sCnt}, s{sT0}")
    a(f"s_lshr_b32 s{sBbase}, s{sW}, 3")
    a(f"s_lshl_b32 s{sBbase}, s{sBbase}, 21")
    a(f"s_add_u32 s{sBbase}, s{sBbase}, s{sT1}")
    a(f"v_add_u32 v{vKcur}, s{sOff}, v{vKoff}")
    a(f"v_add_u32 v{vVcur}, s{sOff}, v{vVoff}")
    a(f"v_mov_b32 v{vT}, {L_FLAG}")
    a(f"v_mov_b32 v{vT+1}, 0")
    a(f"ds_write_b32 v{vT}, v{vT+1}")
    if cfg.diag:
        stamp(12)
        a(f"s_sub_u32 s{sT3}, s{sT3}, 4")
        a(f"v_mov_b32 v{vT+1}, s{sT3}")
        a(f"v_mov_b32 v{vT}, s100")
        a(f"buffer_store_dword v{vT}, v{vT+1}, {sr(R_WS,4)}, 0 offen")
    QA0, QA1 = DD, DD + 4
    QB0, QB1 = DD + 8, DD + 12
    nkv = 0
    kvseq = [(0, 0, u) for u in range(4)] + [(0, 1, u) for u in range(4)]
    for i in range(16):
        a(f"s_waitcnt vmcnt({(15 - i) + 6 + nkv})")
        if i == 0: stamp(13)
        sel = sSelLo if i % 2 == 0 else sSelHi
        x = XA + i // 2
        a(f"v_perm_b32 v{PP}, v{x}, v{x}, s{sel}")
        win_from(PP)
        pv(WQA + 4 * i, QA0, QA1, i == 0)
        if i >= cfg.I0 and nkv < 8:
            kv_load(*kvseq[nkv]); nkv += 1
    for i in range(2):
        a(f"s_waitcnt vmcnt({(1 - i) + 4 + nkv})")
        sel = sSelLo if i == 0 else sSelHi
        a(f"v_perm_b32 v{PP}, v{XB}, v{XB}, s{sel}")
        win_from(PP)
        pv(WQB + 4 * i, QB0, QB1, i == 0)
    a(f"s_lshl_b32 s{sT0}, s{sV}, 11")
    a(f"v_add_u32 v{vW1}, s{sT0}, v{vVoff}")
    a(f"ds_write_b128 v{vW1}, {vr(QA0,4)} offset:{L_QA}")
    a(f"ds_write_b128 v{vW1}, {vr(QA1,4)} offset:{L_QA+1024}")
    a(f"ds_write_b128 v{vW1}, {vr(QB0,4)} offset:{L_QBP}")
    a(f"ds_write_b128 v{vW1}, {vr(QB1,4)} offset:{L_QBP+1024}")
    while nkv < 8:
        kv_load(*kvseq[nkv]); nkv += 1
    a("s_waitcnt lgkmcnt(0)")
    stamp(14)
    a("s_barrier")
    a(f"s_lshl_b32 s{sT0}, s{sB}, 8")
    a(f"v_lshlrev_b32 v{vT}, 6, v{vRow}")
    a(f"v_lshl_add_u32 v{vT}, v{vQ}, 4, v{vT}")
    a(f"v_add_u32 v{vT}, s{sT0}, v{vT}")
    S = TMP
    for vv in range(8):
        for m in range(2):
            a(f"ds_read_b128 {vr(S + 8*vv + 4*m, 4)}, v{vT} offset:{L_QA + vv*2048 + m*1024}")
    a(f"s_add_u32 s{sOff}, s{sOff}, {65536 if cfg.ileave else 32768}")
    a(f"v_add_u32 v{vKcur}, s{sOff}, v{vKoff}")
    a(f"v_add_u32 v{vVcur}, s{sOff}, v{vVoff}")
    a(f"s_add_u32 s{sOff}, s{sOff}, {65536 if cfg.ileave else 32768}")
    a("s_waitcnt lgkmcnt(0)")
    tree_sum8(S)
    for k in range(4):
        a(f"v_cvt_pk_bf16_f32 v{QOP+k}, v{S+2*k}, v{S+2*k+1}")
    for isV in (0, 1):
        for u in range(4):
            a(f"s_waitcnt vmcnt({D-1})"); kv_load(1, isV, u)
    for k in range(8): a(f"v_mov_b32 v{ACC+k}, 0")
    a(f"v_mov_b32 v{vM}, 0xff7fffff")
    a(f"v_mov_b32 v{vL}, 0")
    stamp(1)

    def issue(st, isV, u, rk, rv):
        a(f"s_waitcnt vmcnt({D-1})")
        kv_load(st, isV, u, rk, rv)

    def diag(u0, u1):
        for c in range(4):
            for u in (u0, u1):
                d = DD + 4 * u + c
                qp = f"quad_perm:[{c},{c},{c},{c}]"
                if c == 0: a(f"v_mov_b32_dpp v{Y+u}, v{d} {qp} {FULL}")
                else:      a(f"v_add_f32_dpp v{Y+u}, v{d}, v{Y+u} {qp} {FULL}")

    def round4():
        a(f"v_cvt_pk_bf16_f32 v{T0}, v{Y}, v{Y+1}")
        a(f"v_cvt_pk_bf16_f32 v{T0+1}, v{Y+2}, v{Y+3}")
        a(f"v_lshlrev_b32 v{Y}, 16, v{T0}")
        a(f"v_and_b32 v{Y+1}, 0xffff0000, v{T0}")
        a(f"v_lshlrev_b32 v{Y+2}, 16, v{T0+1}")
        a(f"v_and_b32 v{Y+3}, 0xffff0000, v{T0+1}")

    def body(st, rk, rv):
        a("s_waitcnt vmcnt(12)")
        for u in range(4):
            a(f"{MFMA} {vr(DD+4*u,4)}, {vr(kslot(st,u),4)}, {vr(QOP,4)}, 0")
        issue(st, 0, 0, rk, rv)
        diag(0, 1)
        issue(st, 0, 1, rk, rv)
        diag(2, 3)
        round4()
        issue(st, 0, 2, rk, rv)
        for u in range(4): a(f"v_mul_f32 v{Y+u}, s{sScale}, v{Y+u}")
        round4()
        a(f"v_max3_f32 v{T0+2}, v{Y}, v{Y+1}, v{Y+2}")
        a(f"v_max_f32 v{T0+2}, v{T0+2}, v{Y+3}")
        xrow('v_max_f32', T0 + 2, T0 + 3)
        a(f"v_max_f32 v{vMn}, v{vM}, v{T0+2}")
        issue(st, 0, 3, rk, rv)
        a(f"v_sub_f32 v{vAl}, v{vM}, v{vMn}")
        a(f"v_mul_f32 v{vNM}, s{sNL2E}, v{vMn}")
        a(f"v_mul_f32 v{vAl}, s{sL2E}, v{vAl}")
        for u in range(4): a(f"v_fma_f32 v{Y+u}, v{Y+u}, s{sL2E}, v{vNM}")
        a(f"v_exp_f32 v{vAl}, v{vAl}")
        for u in range(4): a(f"v_exp_f32 v{Y+u}, v{Y+u}")
        a(f"v_mov_b32 v{vM}, v{vMn}")
        for h in range(4):
            a(f"v_mov_b32_dpp v{vAT}, v{vAl} row_newbcast:{4*h} row_mask:{hex(1<<h)} bank_mask:0xf")
        a(f"v_fma_f32 v{vL}, v{vL}, v{vAl}, v{Y}")
        for u in range(4): a(f"v_cvt_pk_bf16_f32 v{PP+u}, v{Y+u}, v{Y+u}")
        a(f"v_add_f32 v{T0}, v{Y+1}, v{Y+2}")
        a(f"v_add_f32 v{vL}, v{vL}, v{Y+3}")
        a(f"v_add_f32 v{vL}, v{vL}, v{T0}")
        for k in range(8): a(f"v_mul_f32 v{ACC+k}, v{ACC+k}, v{vAT}")
        a("s_waitcnt vmcnt(12)")
        for u in range(4):
            win_from(PP + u)
            pv(vslot(st, u), ACC, ACC + 4, False)
            issue(st, 1, u, rk, rv)
        tlog()

    STEP = 65536 if cfg.ileave else 32768
    def top_static():
        a(f"v_add_u32 v{vKcur}, s{sOff}, v{vKoff}")
        a(f"v_add_u32 v{vVcur}, s{sOff}, v{vVoff}")
        a(f"s_add_u32 s{sOff}, s{sOff}, {STEP}")
        if cfg.dummy_atomic == 2:
            a("s_waitcnt lgkmcnt(0)")
            a(f"s_add_u32 s{sT0}, s{sCnt}, 128")
            sclaim(sClaim, sT0)
        elif cfg.dummy_atomic:
            a("s_mov_b64 exec, 1")
            a(f"v_mov_b32 v{T0+5}, 1")
            a(f"v_add_u32 v{T0+4}, 128, v{vCnt}")
            a(f"buffer_atomic_add v{T0+5}, v{T0+4}, {sr(R_WS,4)}, 0 offen sc0 sc1")
            a("s_mov_b64 exec, -1")

    def sclaim(sdst, soff):
        a(f"s_mov_b32 s{sdst}, 1")
        a(f"s_atomic_add s{sdst}, s[{P_WS}:{P_WS+1}], s{soff} glc")

    def claim(vdst, vaddr):
        a("s_mov_b64 exec, 1")
        a(f"v_mov_b32 v{vdst}, 1")
        a(f"buffer_atomic_add v{vdst}, v{vaddr}, {sr(R_WS,4)}, 0 offen sc0 sc1")
        a("s_mov_b64 exec, -1")

    def state_switch():
        a("s_nop 7")
        for k in range(8): a(f"v_mov_b32 v{ACCA+k}, v{ACC+k}")
        a(f"v_mov_b32 v{vMA}, v{vM}")
        a(f"v_mov_b32 v{vLA}, v{vL}")
        for k in range(8): a(f"v_mov_b32 v{ACC+k}, 0")
        a(f"v_mov_b32 v{vM}, 0xff7fffff")
        a(f"v_mov_b32 v{vL}, 0")
        for k in range(4): a(f"v_mov_b32 v{QOP+k}, v{QB+k}")
        a(f"s_mov_b32 s{sBst}, 1")
        stamp(2)

    def top_dyn(st):
        lab = f"{N}_d{st}"
        a(f"s_cmp_eq_u32 s{sRem}, 0")
        a(f"s_cbranch_scc1 {lab}_new")
        a(f"s_add_u32 s{sIdx}, s{sIdx}, s{sStride}")
        a(f"s_sub_u32 s{sRem}, s{sRem}, 1")
        a.label(f"{lab}_have")
        a(f"s_lshl_b32 s{sT0}, s{sIdx}, 15")
        a(f"s_add_u32 s{sT0}, s{sT0}, s{sBase}")
        a(f"s_mov_b32 s{sK2}, s{sKc}")
        a(f"s_max_u32 s{sKc}, s{sKc}, s{sPhase}")
        a(f"s_cmp_eq_u32 s{sRem}, 0")
        a(f"s_cbranch_scc0 {lab}_go2")
        sclaim(sClaim, sCnt)
        a.label(f"{lab}_go2")
        a(f"v_add_u32 v{vKcur}, s{sT0}, v{vKoff}")
        a(f"v_add_u32 v{vVcur}, s{sT0}, v{vVoff}")
        a(f"s_cmp_eq_u32 s{sK0}, 2")
        a(f"s_cbranch_scc1 {lab}_sw")
        a.label(f"{lab}_body")

    def top_dyn_cold(st):
        lab = f"{N}_d{st}"
        a.label(f"{lab}_new")
        a("s_waitcnt lgkmcnt(0)")
        a(f"s_cmp_eq_u32 s{sPhase}, 1")
        a(f"s_cbranch_scc0 {lab}_B")
        a(f"s_cmp_lt_u32 s{sClaim}, {NADT // cfg.CA}")
        a(f"s_cbranch_scc0 {lab}_toB")
        a(f"s_mul_i32 s{sIdx}, s{sClaim}, {cfg.CA}")
        a(f"s_mov_b32 s{sRem}, {cfg.CA - 1}")
        a(f"s_branch {lab}_have")
        a.label(f"{lab}_toB")
        a(f"s_mov_b32 s{sPhase}, 3")
        a(f"s_mov_b32 s{sKc}, 2")
        a(f"s_mov_b32 s{sBase}, s{sBbase}")
        a(f"s_mov_b32 s{sIdx}, s{sSpare}")
        a(f"s_mov_b32 s{sRem}, 0")
        a(f"s_mov_b32 s{sStride}, 8")
        for k in range(3):
            a(f"s_mov_b32 s{R_IK+k}, s{R_KB+k}")
            a(f"s_mov_b32 s{R_IV+k}, s{R_VB+k}")
        a(f"s_mov_b32 s{sCnt}, s{sCntB}")
        a(f"s_branch {lab}_have")
        a.label(f"{lab}_B")
        a(f"s_mov_b32 s{sIdx}, s{sClaim}")
        a(f"s_mov_b32 s{sRem}, 3")
        a(f"s_cmp_lt_u32 s{sClaim}, 8")
        a(f"s_cbranch_scc1 {lab}_have")
        a(f"s_add_u32 s{sIdx}, s{sClaim}, 24")
        a(f"s_mov_b32 s{sRem}, 1")
        a(f"s_cmp_lt_u32 s{sClaim}, 16")
        a(f"s_cbranch_scc1 {lab}_have")
        a(f"s_add_u32 s{sIdx}, s{sClaim}, 32")
        a(f"s_mov_b32 s{sRem}, 0")
        a(f"s_cmp_lt_u32 s{sClaim}, 24")
        a(f"s_cbranch_scc1 {lab}_have")
        a(f"s_mov_b32 s{sT0}, 0x7f000000")
        a(f"s_mov_b32 s{sK2}, 0")
        a(f"s_branch {lab}_go2")
        a.label(f"{lab}_sw")
        state_switch()
        a("s_nop 1")
        a(f"s_branch {lab}_body")

    assert NS % 2 == 0 and NS >= 10
    a(f"s_mov_b32 s{sJ}, 0")
    a.label(f"{N}_sloop")
    a(f"s_cmp_eq_u32 s{sJ}, 0")
    a(f"s_cbranch_scc1 {N}_job0")
    a(f"s_cmp_eq_u32 s{sJ}, 2")
    a(f"s_cbranch_scc1 {N}_job2")
    a(f"s_cmp_eq_u32 s{sJ}, {cfg.J_GATHER}")
    a(f"s_cbranch_scc1 {N}_job8")
    a.label(f"{N}_jobret")
    top_static(); body(0, R_KA, R_VA)
    top_static(); body(1, R_KA, R_VA)
    a(f"s_add_u32 s{sJ}, s{sJ}, 2")
    a(f"s_cmp_lt_u32 s{sJ}, {NS-4}")
    a(f"s_cbranch_scc1 {N}_sloop")
    a(f"s_lshl_b32 s{sT0}, s{sV}, 5")
    a(f"v_lshlrev_b32 v{vW2}, 3, v{vBank}")
    a(f"v_add_u32 v{vW2}, s{sT0}, v{vW2}")
    vTid, vI32, vHH = T0, T0 + 1, T0 + 2
    a(f"s_lshl_b32 s{sT0}, s{sV}, 6")
    a(f"v_add_u32 v{vTid}, s{sT0}, v{vLane}")
    a(f"v_and_b32 v{vI32}, 31, v{vTid}")
    a(f"v_lshrrev_b32 v{vHH}, 5, v{vTid}")
    a(f"v_and_b32 v{vHH}, 3, v{vHH}")
    a(f"v_and_b32 v{vT}, 1, v{vI32}")
    a(f"v_lshlrev_b32 v{vT}, 10, v{vT}")
    a(f"v_lshrrev_b32 v{vT+1}, 1, v{vI32}")
    a(f"v_lshl_add_u32 v{vT+1}, v{vHH}, 4, v{vT+1}")
    a(f"v_lshl_add_u32 v{vLA_}, v{vT+1}, 4, v{vT}")
    a(f"s_cmp_eq_u32 s{sV}, 2")
    for (sr_, va, vb) in ((sT0, L_AM, L_BM), (sT1, L_MLA, L_MLB), (sT2, O_OA, O_OB), (sT3, O_MLA, O_MLB)):
        a(f"s_mov_b32 s{sr_}, {vb}")
        a(f"s_cmov_b32 s{sr_}, {va}")
    a(f"s_cselect_b32 s{sMrg+1}, 0, -1")
    a(f"s_mov_b32 s{sMrg}, -1")
    a(f"v_add_u32 v{vRA}, s{sT0}, v{vLA_}")
    a(f"v_lshlrev_b32 v{vML}, 3, v{vHH}")
    a(f"v_add_u32 v{vGM}, s{sT3}, v{vML}")
    a(f"v_add_u32 v{vGM}, s{sSlot}, v{vGM}")
    a(f"v_add_u32 v{vML}, s{sT1}, v{vML}")
    a(f"v_lshlrev_b32 v{vGy}, 9, v{vHH}")
    a(f"v_lshl_add_u32 v{vGy}, v{vI32}, 4, v{vGy}")
    a(f"v_add_u32 v{vGy}, s{sSlot}, v{vGy}")
    a(f"v_add_u32 v{vG}, s{sT2}, v{vGy}")
    a(f"v_cmp_eq_u32 s[{sMl0}:{sMl0+1}], 0, v{vI32}")
    a(f"s_and_b64 s[{sMl0}:{sMl0+1}], s[{sMl0}:{sMl0+1}], s[{sMrg}:{sMrg+1}]")
    a(f"s_and_b32 s{sT0}, s{sW}, 7")
    a(f"s_lshr_b32 s{sT1}, s{sW}, 3")
    a(f"s_and_b32 s{sT1}, s{sT1}, 3")
    a(f"s_lshr_b32 s{sT3}, s{sW}, 5")
    a(f"s_and_b32 s{sT3}, s{sT3}, 1")
    a(f"s_lshl_b32 s{sT3}, s{sT3}, 8")
    a(f"s_lshl_b32 s{sT2}, s{sT0}, 3")
    a(f"s_add_u32 s{sT2}, s{sT2}, s{sV}")
    a(f"v_lshlrev_b32 v{vT}, 6, v{vRow}")
    a(f"v_add_u32 v{vBm}, s{sT2}, v{vT}")
    a(f"v_lshlrev_b32 v{vBm}, 13, v{vBm}")
    a(f"s_lshl_b32 s{sT2}, s{sT1}, 9")
    a(f"s_add_u32 s{sT2}, s{sT2}, s{sT3}")
    a(f"s_add_u32 s{sT2}, s{sT2}, {O_OB}")
    a(f"v_lshl_add_u32 v{vBo}, v{vC}, 4, v{vBm}")
    a(f"v_add_u32 v{vBo}, s{sT2}, v{vBo}")
    a(f"s_lshl_b32 s{sT2}, s{sT1}, 3")
    a(f"s_add_u32 s{sT2}, s{sT2}, {O_MLB}")
    a(f"v_add_u32 v{vBm}, s{sT2}, v{vBm}")
    a(f"s_lshl_b32 s{sT2}, s{sT0}, 2")
    a(f"s_add_u32 s{sT2}, s{sT2}, s{sT1}")
    a(f"s_lshl_b32 s{sT2}, s{sT2}, 1")
    a(f"s_add_u32 s{sT2}, s{sT2}, s{sV}")
    a(f"v_add_u32 v{vAm}, s{sT2}, v{vT}")
    a(f"v_lshlrev_b32 v{vAm}, 13, v{vAm}")
    a(f"s_add_u32 s{sT3}, s{sT3}, {O_OA}")
    a(f"v_lshl_add_u32 v{vAo}, v{vC}, 4, v{vAm}")
    a(f"v_add_u32 v{vAo}, s{sT3}, v{vAo}")
    a(f"v_add_u32 v{vAm}, {O_MLA}, v{vAm}")
    a(f"s_lshl_b32 s{sT2}, s{sV}, 5")
    a(f"v_lshlrev_b32 v{vS2r}, 3, v{vRow}")
    a(f"v_add_u32 v{vS2r}, s{sT2}, v{vS2r}")
    vS, vMm = T0, T0 + 1
    a(f"v_lshrrev_b32 v{vS}, 1, v{vLane}")
    a(f"v_and_b32 v{vS}, 7, v{vS}")
    a(f"v_and_b32 v{vMm}, 1, v{vLane}")
    a(f"v_lshlrev_b32 v{vR1}, 10, v{vS}")
    a(f"v_lshl_add_u32 v{vR1}, v{vRow}, 8, v{vR1}")
    a(f"v_lshl_add_u32 v{vR1}, v{vMm}, 4, v{vR1}")
    a(f"v_add_u32 v{vR1}, s{sT2}, v{vR1}")
    a(f"v_lshlrev_b32 v{vR2}, 5, v{vS}")
    a(f"v_lshl_add_u32 v{vR2}, v{vRow}, 3, v{vR2}")
    a(f"v_cmp_gt_u32 s[{sS2}:{sS2+1}], 2, v{vS}")
    a(f"s_lshl_b32 s{sT0}, s{sV}, 8")
    a(f"v_lshlrev_b32 v{vO1}, 5, v{vRow}")
    a(f"v_lshl_add_u32 v{vO1}, v{vMm}, 4, v{vO1}")
    a(f"v_add_u32 v{vO1}, s{sT0}, v{vO1}")
    a(f"v_lshlrev_b32 v{vO2}, 5, v{vBank}")
    a(f"v_lshl_add_u32 v{vO2}, v{vRow}, 2, v{vO2}")
    a(f"v_add_u32 v{vO2}, s{sT0}, v{vO2}")
    a(f"s_and_b32 s{sT0}, s{sW}, 7")
    a(f"s_lshr_b32 s{sT1}, s{sW}, 3")
    a(f"s_and_b32 s{sT1}, s{sT1}, 7")
    a(f"s_lshr_b32 s{sT2}, s{sT0}, 1")
    a(f"s_lshl_b32 s{sT2}, s{sT2}, 19")
    a(f"s_lshl_b32 s{sT3}, s{sB}, 9")
    a(f"s_add_u32 s{sT2}, s{sT2}, s{sT3}")
    a(f"s_and_b32 s{sT3}, s{sT0}, 1")
    a(f"s_lshl_b32 s{sT3}, s{sT3}, 8")
    a(f"s_add_u32 s{sT2}, s{sT2}, s{sT3}")
    a(f"s_lshl_b32 s{sT3}, s{sT1}, 5")
    a(f"s_add_u32 s{sT2}, s{sT2}, s{sT3}")
    a(f"v_lshlrev_b32 v{vF}, 13, v{vLane}")
    a(f"v_add_u32 v{vF}, s{sT2}, v{vF}")
    a(f"v_and_b32 v{vT}, 1, v{vRow}")
    a(f"v_lshlrev_b32 v{vT}, 1, v{vT}")
    a(f"v_lshrrev_b32 v{vT+1}, 1, v{vRow}")
    a(f"v_add_u32 v{vT}, v{vT}, v{vT+1}")
    a(f"v_lshlrev_b32 v{vT}, 1, v{vT}")
    a(f"s_lshl_b32 s{sT2}, s{sB}, 10")
    a(f"s_lshl_b32 s{sT0}, s{sT0}, 7")
    a(f"s_lshl_b32 s{sT1}, s{sT1}, 4")
    a(f"s_add_u32 s{sT2}, s{sT2}, s{sT0}")
    a(f"s_add_u32 s{sT2}, s{sT2}, s{sT1}")
    a(f"v_add_u32 v{vOut}, s{sT2}, v{vT}")
    a(f"s_and_b32 s{sT0}, s{sW}, 0xf8")
    a(f"s_add_u32 s{sT0}, s{sT0}, s{sV}")
    a(f"s_lshl_b32 s{sT0}, s{sT0}, 8")
    a(f"s_add_u32 s{sT0}, s{sT0}, {WS_CNT}")
    a(f"v_mov_b32 v{vCntB}, s{sT0}")
    a(f"s_mov_b32 s{sCntB}, s{sT0}")
    a(f"s_mov_b32 s{sSpin}, 0")
    a(f"v_mov_b32 v{vT}, {L_FLAG}")
    a.label(f"{N}_fl")
    a(f"ds_read_b32 v{vT+1}, v{vT}")
    a("s_waitcnt lgkmcnt(0)")
    a(f"v_readfirstlane_b32 s{sT0}, v{vT+1}")
    a(f"s_cmp_eq_u32 s{sT0}, 1")
    a(f"s_cbranch_scc1 {N}_fld")
    spin_tail(f"{N}_fl", f"{N}_fld")
    a.label(f"{N}_fld")
    a(f"ds_read_b128 {vr(QB,4)}, v{vVoff} offset:{L_QBOP}")
    a("s_waitcnt lgkmcnt(0)")
    top_static(); body(0, R_KA, R_VA)
    top_static(); sclaim(sClaim, sCnt); body(1, R_KA, R_VA)
    a(f"s_and_b32 s{sSpare}, s{sW}, 7")
    a(f"s_add_u32 s{sSpare}, s{sSpare}, 56")
    a(f"s_mov_b32 s{sPhase}, 1")
    a(f"s_mov_b32 s{sKc}, 1")
    a(f"s_mov_b32 s{sRem}, 0")
    a(f"s_mov_b32 s{sStride}, 1")
    a(f"s_mov_b32 s{sK0}, 1")
    a(f"s_mov_b32 s{sK1}, 1")
    a(f"s_mov_b32 s{sBst}, 0")
    assert NADT % cfg.CA == 0
    a.label(f"{N}_dloop")
    for st in range(2):
        top_dyn(st); body(st, R_IK, R_IV)
        a(f"s_mov_b32 s{sK0}, s{sK1}")
        a(f"s_mov_b32 s{sK1}, s{sK2}")
        a(f"s_cmp_eq_u32 s{sK0}, 0")
        a(f"s_cbranch_scc1 {N}_dend")
    a(f"s_branch {N}_dloop")
    for st in range(2): top_dyn_cold(st)
    a.label(f"{N}_dend")
    a(f"s_cmp_eq_u32 s{sBst}, 0")
    a(f"s_cbranch_scc0 {N}_dend2")
    state_switch()
    a.label(f"{N}_dend2")
    a("s_nop 7")
    stamp(3)

    a(f"ds_write_b128 v{vW1}, {vr(ACC,4)} offset:{L_BM}")
    a(f"ds_write_b128 v{vW1}, {vr(ACC+4,4)} offset:{L_BM+1024}")
    a(f"ds_write_b128 v{vW1}, {vr(ACCA,4)} offset:{L_AM}")
    a(f"ds_write_b128 v{vW1}, {vr(ACCA+4,4)} offset:{L_AM+1024}")
    for perm in ('v_permlane16_swap_b32', 'v_permlane32_swap_b32'):
        a(f"v_mov_b32 v{T0}, v{vL}")
        a(f"v_mov_b32 v{T0+1}, v{vLA}")
        a(f"{perm} v{vL}, v{T0}")
        a(f"{perm} v{vLA}, v{T0+1}")
        a(f"v_add_f32 v{vL}, v{vL}, v{T0}")
        a(f"v_add_f32 v{vLA}, v{vLA}, v{T0+1}")
    a(f"ds_write_b64 v{vW2}, {vr(vM,2)} offset:{L_MLB}")
    a(f"ds_write_b64 v{vW2}, {vr(vMA,2)} offset:{L_MLA}")
    a("s_waitcnt lgkmcnt(0)")
    a("s_barrier")
    stamp(4)
    a(f"s_cmp_lt_u32 s{sV}, 3")
    a(f"s_cbranch_scc0 {N}_nomerge")
    a(f"s_mov_b64 exec, s[{sMrg}:{sMrg+1}]")
    MLr, AC = 172, 188
    for vv in range(8):
        a(f"ds_read_b64 {vr(MLr+2*vv,2)}, v{vML} offset:{vv*32}")
    for vv in range(8):
        a(f"ds_read_b128 {vr(AC+4*vv,4)}, v{vRA} offset:{vv*2048}")
    a("s_waitcnt lgkmcnt(8)")
    Ms = 220
    a(f"v_max3_f32 v{Ms}, v{MLr}, v{MLr+2}, v{MLr+4}")
    a(f"v_max3_f32 v{Ms+1}, v{MLr+6}, v{MLr+8}, v{MLr+10}")
    a(f"v_max3_f32 v{Ms}, v{Ms}, v{MLr+12}, v{MLr+14}")
    a(f"v_max_f32 v{Ms}, v{Ms}, v{Ms+1}")
    for vv in range(8): a(f"v_sub_f32 v{MLr+2*vv}, v{MLr+2*vv}, v{Ms}")
    for vv in range(8): a(f"v_mul_f32 v{MLr+2*vv}, s{sL2E}, v{MLr+2*vv}")
    for vv in range(8): a(f"v_exp_f32 v{MLr+2*vv}, v{MLr+2*vv}")
    a("s_waitcnt lgkmcnt(0)")
    O4 = 224
    for r in range(4): a(f"v_mul_f32 v{O4+r}, v{MLr}, v{AC+r}")
    for vv in range(1, 8):
        for r in range(4): a(f"v_fma_f32 v{O4+r}, v{MLr+2*vv}, v{AC+4*vv+r}, v{O4+r}")
    a(f"buffer_store_dwordx4 {vr(O4,4)}, v{vG}, {sr(R_WS,4)}, 0 offen sc1")
    a(f"v_mul_f32 v{Ms+1}, v{MLr}, v{MLr+1}")
    for vv in range(1, 8): a(f"v_fma_f32 v{Ms+1}, v{MLr+2*vv}, v{MLr+2*vv+1}, v{Ms+1}")
    a(f"s_mov_b64 exec, s[{sMl0}:{sMl0+1}]")
    a(f"buffer_store_dwordx2 {vr(Ms,2)}, v{vGM}, {sr(R_WS,4)}, 0 offen sc1")
    a("s_mov_b64 exec, -1")
    stamp(5)
    a("s_nop 7")
    a.label(f"{N}_nomerge")

    OB4, MLB2, OA4, MLA2 = 180, 184, 188, 192
    for k in range(4): a(f"v_mov_b32 v{OA4+k}, 0")
    a(f"v_mov_b32 v{MLA2}, 0")
    a(f"v_mov_b32 v{MLA2+1}, 0")
    a(f"s_mov_b32 s{sSpin}, 0")
    a.label(f"{N}_p1")
    a(f"buffer_load_dwordx4 {vr(OB4,4)}, v{vBo}, {sr(R_WS,4)}, 0 offen sc1")
    a(f"buffer_load_dwordx2 {vr(MLB2,2)}, v{vBm}, {sr(R_WS,4)}, 0 offen sc1")
    a(f"s_cmp_lt_u32 s{sV}, 2")
    a(f"s_cbranch_scc0 {N}_p1n")
    a(f"buffer_load_dwordx4 {vr(OA4,4)}, v{vAo}, {sr(R_WS,4)}, 0 offen sc1")
    a(f"buffer_load_dwordx2 {vr(MLA2,2)}, v{vAm}, {sr(R_WS,4)}, 0 offen sc1")
    a.label(f"{N}_p1n")
    a("s_waitcnt vmcnt(0)")
    a(f"v_max3_u32 v{vT}, v{OB4}, v{OB4+1}, v{OB4+2}")
    a(f"v_max3_u32 v{vT+1}, v{OB4+3}, v{MLB2}, v{MLB2+1}")
    a(f"v_max3_u32 v{vT}, v{vT}, v{OA4}, v{OA4+1}")
    a(f"v_max3_u32 v{vT+1}, v{vT+1}, v{OA4+2}, v{OA4+3}")
    a(f"v_max3_u32 v{vT}, v{vT}, v{MLA2}, v{MLA2+1}")
    a(f"v_max_u32 v{vT}, v{vT}, v{vT+1}")
    a(f"v_cmp_eq_u32 vcc, -1, v{vT}")
    a("s_cmp_eq_u64 vcc, 0")
    a(f"s_cbranch_scc1 {N}_p1d")
    spin_tail(f"{N}_p1", f"{N}_p1d")
    a.label(f"{N}_p1d")
    a(f"s_lshl_b32 s{sT2}, s{sV}, 10")
    a(f"v_add_u32 v{vT}, s{sT2}, v{vVoff}")
    a(f"ds_write_b128 v{vT}, {vr(OB4,4)} offset:{L_G1B}")
    a(f"ds_write_b64 v{vS2r}, {vr(MLB2,2)} offset:{L_G1MB}")
    a(f"s_cmp_lt_u32 s{sV}, 2")
    a(f"s_cbranch_scc0 {N}_g1n")
    a(f"ds_write_b128 v{vT}, {vr(OA4,4)} offset:{L_G1A}")
    a(f"ds_write_b64 v{vS2r}, {vr(MLA2,2)} offset:{L_G1MA}")
    a.label(f"{N}_g1n")
    stamp(6)
    for k in range(4): a(f"v_mov_b32 v{OA4+k}, 0")
    a(f"v_mov_b32 v{MLA2}, 0xff7fffff")
    a(f"v_mov_b32 v{MLA2+1}, 0")
    a("s_waitcnt lgkmcnt(0)")
    a("s_barrier")
    a(f"ds_read_b128 {vr(OB4,4)}, v{vR1} offset:{L_G1B}")
    a(f"ds_read_b64 {vr(MLB2,2)}, v{vR2} offset:{L_G1MB}")
    a(f"s_mov_b64 exec, s[{sS2}:{sS2+1}]")
    a(f"ds_read_b128 {vr(OA4,4)}, v{vR1} offset:{L_G1A}")
    a(f"ds_read_b64 {vr(MLA2,2)}, v{vR2} offset:{L_G1MA}")
    a("s_mov_b64 exec, -1")
    GG = 204
    a(f"v_lshlrev_b32 v{vT}, 3, v{vRow}")
    a(f"ds_read_b64 {vr(GG,2)}, v{vT} offset:{L_G}")
    a("s_waitcnt lgkmcnt(0)")
    pairs = ((OB4, MLB2, 196, 197), (OA4, MLA2, 198, 199))
    for (o4, ml, Mx, sc) in pairs: a(f"v_max_f32_dpp v{Mx}, v{ml}, v{ml} row_ror:8 {FULL}")
    for n in (4, 2):
        for (o4, ml, Mx, sc) in pairs: a(f"v_max_f32_dpp v{Mx}, v{Mx}, v{Mx} row_ror:{n} {FULL}")
    for (o4, ml, Mx, sc) in pairs: a(f"v_sub_f32 v{sc}, v{ml}, v{Mx}")
    for (o4, ml, Mx, sc) in pairs: a(f"v_mul_f32 v{sc}, s{sL2E}, v{sc}")
    for (o4, ml, Mx, sc) in pairs: a(f"v_exp_f32 v{sc}, v{sc}")
    for (o4, ml, Mx, sc) in pairs:
        a(f"v_mul_f32 v{ml+1}, v{ml+1}, v{sc}")
    for (o4, ml, Mx, sc) in pairs:
        for r in range(4): a(f"v_mul_f32 v{o4+r}, v{o4+r}, v{sc}")
    for n in (8, 4, 2):
        for (o4, ml, Mx, sc) in pairs:
            for r in [ml + 1] + [o4 + k for k in range(4)]:
                a(f"v_add_f32_dpp v{r}, v{r}, v{r} row_ror:{n} {FULL}")
    for (o4, ml, Mx, sc) in pairs: a(f"v_rcp_f32 v{sc}, v{ml+1}")
    for (o4, ml, Mx, sc) in reversed(pairs):
        for r in range(4): a(f"v_mul_f32 v{o4+r}, v{o4+r}, v{sc}")
    a(f"ds_write_b128 v{vO1}, {vr(OA4,4)} offset:{L_OT}")
    a(f"ds_write_b128 v{vO1}, {vr(OB4,4)} offset:{L_OT+128}")
    XO = 200
    a("s_waitcnt lgkmcnt(0)")
    a(f"ds_read_b32 v{XO}, v{vO2} offset:{L_OT}")
    a(f"ds_read_b32 v{XO+1}, v{vO2} offset:{L_OT+16}")
    a(f"ds_read_b32 v{XO+2}, v{vO2} offset:{L_OT+128}")
    a(f"ds_read_b32 v{XO+3}, v{vO2} offset:{L_OT+144}")
    a("s_waitcnt lgkmcnt(0)")
    for k in range(4): a(f"v_cvt_pk_bf16_f32 v{XO+k}, v{XO+k}, v{XO+k}")
    YA, YB = DD, DD + 8
    for k, (wo, acc) in enumerate(((WOA, YA), (WOB, YB), (WOA + 4, YA), (WOB + 4, YB))):
        win_from(XO + (0, 2, 1, 3)[k])
        pv(wo, acc, acc + 4, k < 2)
    for k in range(8): a(f"v_mul_f32 v{YA+k}, v{YA+k}, v{GG}")
    for k in range(8): a(f"v_fma_f32 v{YA+k}, v{YB+k}, v{GG+1}, v{YA+k}")
    a(f"ds_write_b128 v{vW1}, {vr(YA,4)} offset:{L_YP}")
    a(f"ds_write_b128 v{vW1}, {vr(YA+4,4)} offset:{L_YP+1024}")
    a("s_waitcnt lgkmcnt(0)")
    a("s_barrier")
    stamp(7)
    a(f"s_cmp_lt_u32 s{sV}, 2")
    a(f"s_cbranch_scc0 {N}_noy")
    for vv in range(8):
        a(f"ds_read_b128 {vr(AC+4*vv,4)}, v{vLA_} offset:{L_YP + vv*2048}")
    for step in (4, 2, 1):
        if step == 4: a("s_waitcnt lgkmcnt(0)")
        for g in range(step):
            for r in range(4):
                a(f"v_add_f32 v{AC+4*g+r}, v{AC+4*g+r}, v{AC+4*(g+step)+r}")
    a(f"buffer_store_dwordx4 {vr(AC,4)}, v{vGy}, {sr(R_WS,4)}, 0 offen offset:{O_Y} sc1")
    stamp(8)
    a(f"s_branch {N}_done")
    a.label(f"{N}_noy")
    a(f"s_cmp_eq_u32 s{sV}, 2")
    a(f"s_cbranch_scc0 {N}_done")
    F = 180
    a(f"s_mov_b32 s{sSpin}, 0")
    a.label(f"{N}_p2")
    a(f"buffer_load_dwordx4 {vr(F,4)}, v{vF}, {sr(R_WS,4)}, 0 offen offset:{O_Y} sc1")
    a(f"buffer_load_dwordx4 {vr(F+4,4)}, v{vF}, {sr(R_WS,4)}, 0 offen offset:{O_Y+16} sc1")
    a("s_waitcnt vmcnt(0)")
    a(f"v_max3_u32 v{vT}, v{F}, v{F+1}, v{F+2}")
    a(f"v_max3_u32 v{vT+1}, v{F+3}, v{F+4}, v{F+5}")
    a(f"v_max3_u32 v{vT}, v{vT}, v{F+6}, v{F+7}")
    a(f"v_max_u32 v{vT}, v{vT}, v{vT+1}")
    a(f"v_cmp_eq_u32 vcc, -1, v{vT}")
    a("s_cmp_eq_u64 vcc, 0")
    a(f"s_cbranch_scc1 {N}_p2d")
    spin_tail(f"{N}_p2", f"{N}_p2d")
    a.label(f"{N}_p2d")
    stamp(9)
    for k in range(4): a(f"v_permlane32_swap_b32 v{F+2*k}, v{F+2*k+1}")
    for k in range(4): a(f"v_add_f32 v{F+2*k}, v{F+2*k}, v{F+2*k+1}")
    a(f"v_permlane16_swap_b32 v{F}, v{F+2}")
    a(f"v_permlane16_swap_b32 v{F+4}, v{F+6}")
    a(f"v_add_f32 v{F}, v{F}, v{F+2}")
    a(f"v_add_f32 v{F+4}, v{F+4}, v{F+6}")
    for n in (8, 4, 2, 1):
        a(f"v_add_f32_dpp v{F}, v{F}, v{F} row_ror:{n} {FULL}")
        a(f"v_add_f32_dpp v{F+4}, v{F+4}, v{F+4} row_ror:{n} {FULL}")
    a(f"v_cvt_pk_bf16_f32 v{F}, v{F}, v{F+4}")
    a("s_mov_b32 exec_lo, 0x00010001")
    a("s_mov_b32 exec_hi, 0x00010001")
    a(f"buffer_store_short v{F}, v{vOut}, {sr(R_OUT,4)}, 0 offen")
    a(f"buffer_store_short_d16_hi v{F}, v{vOut}, {sr(R_OUT,4)}, 0 offen offset:8")
    a("s_mov_b64 exec, -1")
    stamp(10)
    a(f"s_branch {N}_done")

    a.label(f"{N}_job0")
    a(f"s_add_u32 s{sT0}, s{sW}, 0")
    a(f"s_and_b32 s{sT0}, s{sT0}, 7")
    a(f"s_cmp_eq_u32 s{sV}, s{sT0}")
    a(f"s_cbranch_scc0 {N}_jobret")
    S = TMP
    for vv in range(8):
        for m in range(2):
            a(f"ds_read_b128 {vr(S + 8*vv + 4*m, 4)}, v{vVoff} offset:{L_QBP + vv*2048 + m*1024}")
    a(f"s_lshl_b32 s{sT0}, s{sW}, 11")
    a(f"s_add_u32 s{sT0}, s{sT0}, {WS_QB}")
    a(f"v_lshlrev_b32 v{vT}, 5, v{vC}")
    a(f"v_lshl_add_u32 v{vT}, v{vRow}, 9, v{vT}")
    a(f"v_add_u32 v{vT}, s{sT0}, v{vT}")
    a("s_waitcnt lgkmcnt(0)")
    tree_sum8(S)
    a(f"buffer_store_dwordx4 {vr(S,4)}, v{vT}, {sr(R_WS,4)}, 0 offen sc1")
    a(f"buffer_store_dwordx4 {vr(S+4,4)}, v{vT}, {sr(R_WS,4)}, 0 offen offset:16 sc1")
    for k in range(4): a(f"v_mov_b32 v{T0+2+k}, -1")
    a(f"v_add_u32 v{vT}, s{sSlot}, v{vVoff}")
    for k in range(4):
        a(f"buffer_store_dwordx4 {vr(T0+2,4)}, v{vT}, {sr(R_WS,4)}, 0 offen offset:{k*1024} sc1")
    a(f"v_add_u32 v{vT}, 4096, v{vT}")
    a(f"buffer_store_dwordx4 {vr(T0+2,4)}, v{vT}, {sr(R_WS,4)}, 0 offen sc1")
    a(f"v_mov_b32 v{vT+1}, 0")
    a(f"v_lshlrev_b32 v{T0}, 8, v{vLane}")
    a("s_mov_b64 exec, 0xff")
    a(f"s_and_b32 s{sT0}, s{sW}, 1")
    a(f"s_cmp_eq_u32 s{sT0}, 0")
    a(f"s_cbranch_scc0 {N}_noclrA")
    a(f"s_lshr_b32 s{sT0}, s{sW}, 1")
    a(f"s_lshl_b32 s{sT0}, s{sT0}, 11")
    a(f"s_add_u32 s{sT0}, s{sT0}, {WS_CNT + 65536}")
    a(f"v_add_u32 v{vT}, s{sT0}, v{T0}")
    a(f"buffer_store_dword v{vT+1}, v{vT}, {sr(R_WS,4)}, 0 offen sc1")
    a.label(f"{N}_noclrA")
    a(f"s_and_b32 s{sT0}, s{sW}, 7")
    a(f"s_cmp_eq_u32 s{sT0}, 0")
    a(f"s_cbranch_scc0 {N}_noclrB")
    a(f"s_lshl_b32 s{sT0}, s{sW}, 8")
    a(f"s_add_u32 s{sT0}, s{sT0}, {WS_CNT}")
    a(f"v_add_u32 v{vT}, s{sT0}, v{T0}")
    a(f"buffer_store_dword v{vT+1}, v{vT}, {sr(R_WS,4)}, 0 offen sc1")
    a.label(f"{N}_noclrB")
    a("s_waitcnt vmcnt(0)")
    a("s_mov_b64 exec, 1")
    a(f"v_mov_b32 v{vT}, 0")
    a(f"global_atomic_add v{vT}, v{vOne}, s[{P_DBG}:{P_DBG+1}] sc1")
    a("s_mov_b64 exec, -1")
    stamp(19)
    a("s_nop 7")
    a(f"s_branch {N}_jobret")
    a.label(f"{N}_job2")
    a(f"s_add_u32 s{sT0}, s{sW}, 3")
    a(f"s_and_b32 s{sT0}, s{sT0}, 7")
    a(f"s_cmp_eq_u32 s{sV}, s{sT0}")
    a(f"s_cbranch_scc0 {N}_jobret")
    GX, GW = 164, 180
    a(f"v_lshlrev_b32 v{vT+1}, 6, v{vC}")
    a(f"v_lshl_add_u32 v{vT}, v{vRow}, 10, v{vT+1}")
    for k in range(4):
        a(f"buffer_load_dwordx4 {vr(GX+4*k,4)}, v{vT}, {sr(R_X,4)}, 0 offen offset:{16*k}")
        a(f"buffer_load_dwordx4 {vr(GW+4*k,4)}, v{vT+1}, {sr(R_GW,4)}, 0 offen offset:{16*k}")
    a("s_waitcnt vmcnt(0)")
    z, t0, t1, t2, t3 = 196, 197, 198, 199, 200
    a(f"v_mov_b32 v{z}, 0")
    for k in range(16):
        a(f"v_lshlrev_b32 v{t0}, 16, v{GX+k}")
        a(f"v_lshlrev_b32 v{t1}, 16, v{GW+k}")
        a(f"v_and_b32 v{t2}, 0xffff0000, v{GX+k}")
        a(f"v_and_b32 v{t3}, 0xffff0000, v{GW+k}")
        a(f"v_mul_f32 v{t0}, v{t0}, v{t1}")
        a(f"v_mul_f32 v{t2}, v{t2}, v{t3}")
        a(f"v_cvt_pk_bf16_f32 v{t0}, v{t0}, v{t2}")
        a(f"v_lshlrev_b32 v{t1}, 16, v{t0}")
        a(f"v_and_b32 v{t0}, 0xffff0000, v{t0}")
        a(f"v_add_f32 v{z}, v{z}, v{t1}")
        a(f"v_add_f32 v{z}, v{z}, v{t0}")
    for n in (8, 4, 2, 1):
        a(f"v_add_f32_dpp v{z}, v{z}, v{z} row_ror:{n} {FULL}")
    a(f"v_cvt_pk_bf16_f32 v{z}, v{z}, v{z}")
    a(f"v_and_b32 v{z}, 0xffff0000, v{z}")
    a(f"v_mul_f32 v{z}, s{sNL2E}, v{z}")
    a(f"v_exp_f32 v{z}, v{z}")
    a(f"v_add_f32 v{z}, 1.0, v{z}")
    a(f"v_rcp_f32 v{z}, v{z}")
    g0 = 198
    a(f"v_cvt_pk_bf16_f32 v{g0}, v{z}, v{z}")
    a(f"v_and_b32 v{g0}, 0xffff0000, v{g0}")
    a(f"v_sub_f32 v{g0+1}, 1.0, v{g0}")
    a(f"v_cvt_pk_bf16_f32 v{g0+1}, v{g0+1}, v{g0+1}")
    a(f"v_and_b32 v{g0+1}, 0xffff0000, v{g0+1}")
    a(f"v_lshlrev_b32 v{vT}, 3, v{vRow}")
    a(f"ds_write_b64 v{vT}, {vr(g0,2)} offset:{L_G}")
    a("s_waitcnt lgkmcnt(0)")
    a("s_nop 7")
    a(f"s_branch {N}_jobret")
    a.label(f"{N}_job8")
    a(f"s_add_u32 s{sT0}, s{sW}, 5")
    a(f"s_and_b32 s{sT0}, s{sT0}, 7")
    a(f"s_cmp_eq_u32 s{sV}, s{sT0}")
    a(f"s_cbranch_scc0 {N}_jobret")
    a(f"s_mov_b32 s{sSpin}, 0")
    a(f"v_mov_b32 v{vT}, 0")
    a.label(f"{N}_c0")
    a(f"global_load_dword v{vT+1}, v{vT}, s[{P_DBG}:{P_DBG+1}] sc1")
    a("s_waitcnt vmcnt(0)")
    a(f"v_readfirstlane_b32 s{sT0}, v{vT+1}")
    a(f"s_cmp_ge_u32 s{sT0}, 256")
    a(f"s_cbranch_scc1 {N}_c0d")
    a(f"s_add_u32 s{sSpin}, s{sSpin}, 1")
    a(f"s_cmp_gt_u32 s{sSpin}, {cfg.SPIN}")
    a(f"s_cbranch_scc1 {N}_c0d")
    a("s_sleep 16")
    a(f"s_branch {N}_c0")
    a.label(f"{N}_c0d")
    stamp(15)
    a(f"s_lshr_b32 s{sT0}, s{sW}, 3")
    a(f"s_and_b32 s{sT0}, s{sT0}, 7")
    a(f"s_lshl_b32 s{sT0}, s{sT0}, 16")
    a(f"s_lshl_b32 s{sT1}, s{sB}, 9")
    a(f"s_add_u32 s{sT0}, s{sT0}, s{sT1}")
    a(f"s_add_u32 s{sT0}, s{sT0}, {WS_QB}")
    a(f"v_lshlrev_b32 v{vT}, 14, v{vBank}")
    a(f"v_lshl_add_u32 v{vT}, v{vRow}, 7, v{vT}")
    a(f"v_lshl_add_u32 v{vT}, v{vQ}, 5, v{vT}")
    a(f"v_add_u32 v{vT}, s{sT0}, v{vT}")
    S2 = TMP
    for sl in range(8):
        a(f"s_mov_b32 s{sT1}, {(sl // 2) * 4096}")
        for m in range(2):
            a(f"buffer_load_dwordx4 {vr(S2 + 8*sl + 4*m, 4)}, v{vT}, {sr(R_WS,4)}, s{sT1} offen offset:{(sl % 2) * 2048 + 16*m} sc1")
    a("s_waitcnt vmcnt(0)")
    tree_sum8(S2)
    for k in range(4):
        a(f"v_cvt_pk_bf16_f32 v{S2+8+k}, v{S2+2*k}, v{S2+2*k+1}")
    a(f"ds_write_b128 v{vVoff}, {vr(S2+8,4)} offset:{L_QBOP}")
    a("s_waitcnt lgkmcnt(0)")
    a(f"v_mov_b32 v{vT}, {L_FLAG}")
    a(f"ds_write_b32 v{vT}, v{vOne}")
    a("s_waitcnt lgkmcnt(0)")
    stamp(18)
    a("s_nop 7")
    a(f"s_branch {N}_jobret")

    a.label(f"{N}_done")
    a("s_endpgm")
    body_text, npad = a.text()
    kd = f"""
.section .rodata,"a"
.p2align 6
.amdhsa_kernel {N}
  .amdhsa_next_free_vgpr {NVGPR}
  .amdhsa_next_free_sgpr 102
  .amdhsa_accum_offset {NVGPR}
  .amdhsa_group_segment_fixed_size 0
  .amdhsa_kernarg_size 112
  .amdhsa_user_sgpr_count 2
  .amdhsa_user_sgpr_kernarg_segment_ptr 1
  .amdhsa_system_sgpr_workgroup_id_x 1
  .amdhsa_float_denorm_mode_32 3
.end_amdhsa_kernel
"""
    return body_text, kd, npad

HEADER = open('gated_mix__mha_block_cached__gqa_block_cached__decode.s.ref').read().split('; Override launch geometry')[0]

def full_file(cfg):
    body, kd, npad = build(cfg)
    s = HEADER
    s += f"; @launch grid=(256,1,1) block=(512,1,1) lds={LDS_BYTES}\n"
    s += '.amdgcn_target "amdgcn-amd-amdhsa--gfx950"\n.text\n'
    s += body + "\n" + kd
    return s, npad

if __name__ == '__main__':
    cfg = Cfg()
    out = sys.argv[1]
    for kv in sys.argv[2:]:
        k, v = kv.split('=', 1)
        cur = getattr(cfg, k)
        setattr(cfg, k, type(cur)(int(v)) if isinstance(cur, (bool, int)) else v)
    s, npad = full_file(cfg)
    open(out, 'w').write(s)
    print('written', out, len(s), 'bytes; nop pads', npad)
```

```python
import sys, os
sys.path.insert(0, os.path.dirname(os.path.abspath(__file__)))
from asmlib import Asm

KNAME = 'gated_mix__mha_block_cached__gqa_block_cached__decode_kernel'

class Cfg:
    D = 4
    NS = 24
    I0 = 8
    diag = False
    SPIN = 200000
    name = KNAME
    kflags = 'nt'
    vflags = 'nt'
    wqflags = 'nt'
    dynA = True
    J_GATHER = 6
    tlog = False
    dummy_atomic = 0
    sclaim = True
    CA = 2
    fast = 0
    outsc1 = False
    defer = False
    lateqb = False
    bar0 = False
    rot = True
    bstride = 8
    fastv = True
    sleep1 = 2
    sleep2 = 2
    tail2 = False
    PX = 5
    ileave = False
    xorid = 0

sW, sV = 2, 3
P_X, P_KA, P_VA, P_WQA, P_WOA, P_BX, P_KB, P_VB = 4, 6, 8, 10, 12, 14, 16, 18
P_WQB, P_WOB, P_GW, P_OUT = 20, 22, 24, 26
P_DBG, P_WS = 28, 30
R_IK, R_IV = 4, 8
sMrg, sMl0, sS2 = 12, 14, 16
sPhase, sLim, sBase, sKc, sSpare, sBst = 18, 19, 20, 21, 22, 23
sK0, sK1, sK2 = 24, 25, 26
sClaim, sCnt, sCntB = 83, 84, 101
sCPh, sChk = 22, 100
sRem, sStride = 0, 1
R_KA, R_VA, R_KB, R_VB = 32, 36, 40, 44
R_WQA, R_WQB, R_WOA, R_WOB = 48, 52, 56, 60
R_X, R_GW, R_WS, R_OUT = 64, 68, 72, 76
sB = 80
sOff = 81
sJ = 82
sT0, sT1, sT2, sT3 = 85, 86, 87, 88
sBbase = 89
sScale, sL2E, sNL2E = 90, 91, 92
sSpin = 93
sSlot = 94
sIdx = 95
sSelLo, sSelHi = 96, 97
sStamp = 98

vLane = 0
vKoff, vVoff, vKcur, vVcur = 1, 2, 3, 4
vMask0, vMask1 = 5, 6
vCnt, vOne, vClaim = 7, 8, 9
vRow, vBank, vQ, vC = 10, 11, 12, 13
vT = 14
RING = 16
QOP = 80
QB = 84
ACC = 88
ACCA = 96
vM, vL, vMA, vLA = 104, 105, 106, 107
DD = 108
Y = 124
PP = 128
WIN = 132
vAl, vAT, vNM, vMn = 138, 139, 140, 141
T0 = 142
WOA = 148
WOB = 156
TMP = 164
vW1, vW2, vRA, vML, vG, vGM, vBo, vBm, vAo, vAm, vS2r, vR1, vR2, vO1, vO2, vLA_, vGy, vF, vOut, vCntB, vSpare = range(228, 249)
NVGPR = 256

L_QBOP = 0
L_MLB, L_MLA = 1024, 1280
L_OT = 1536
L_G = 3584
L_FLAG = 3648
L_QA, L_QBP = 4096, 20480
L_BM, L_AM = 36864, 53248
L_YP = L_QA
L_G1B, L_G1A, L_G1MB, L_G1MA = L_QBP, L_QBP + 8192, L_QBP + 10240, L_QBP + 10496
LDS_BYTES = 69632

O_Y, O_OB, O_OA, O_MLB, O_MLA = 0, 2048, 4096, 4608, 4640
WS_QB = 2 << 20
WS_CNT = 3 << 20
WS_STAMP = (3 << 20) + (512 << 10)
WS_BYTES = 8 << 20
WS_TLOG = 4 << 20
sLog = 27

def vr(a, n): return f"v[{a}:{a+n-1}]"
def sr(a, n): return f"s[{a}:{a+n-1}]"
def kslot(st, u): return RING + 32 * st + 4 * u
def vslot(st, u): return RING + 32 * st + 16 + 4 * u
MFMA = 'v_mfma_f32_16x16x32_bf16'
FULL = 'row_mask:0xf bank_mask:0xf'

def build(cfg):
    a = Asm()
    N = cfg.name
    D = cfg.D
    NS = cfg.NS
    NAD = 512 - 16 * NS
    NADT = 64 - 2 * NS
    def stamp(i):
        if not cfg.diag: return
        a(f"s_memrealtime s[{sStamp}:{sStamp+1}]")
        a("s_waitcnt lgkmcnt(0)")
        a(f"v_mov_b32 v{vT}, s{sStamp}")
        a(f"s_lshl_b32 s{sT3}, s{sW}, 3")
        a(f"s_add_u32 s{sT3}, s{sT3}, s{sV}")
        a(f"s_lshl_b32 s{sT3}, s{sT3}, 7")
        a(f"s_add_u32 s{sT3}, s{sT3}, {WS_STAMP + 4*i}")
        a(f"v_mov_b32 v{vT+1}, s{sT3}")
        a(f"buffer_store_dword v{vT}, v{vT+1}, {sr(R_WS,4)}, 0 offen")

    def tlog():
        if not cfg.tlog: return
        a(f"s_memrealtime s[{sStamp}:{sStamp+1}]")
        a("s_waitcnt lgkmcnt(0)")
        a(f"v_mov_b32 v{vT}, s{sStamp}")
        a(f"v_mov_b32 v{vT+1}, s{sLog}")
        a("s_mov_b64 exec, 1")
        a(f"buffer_store_dword v{vT}, v{vT+1}, {sr(R_WS,4)}, 0 offen")
        a("s_mov_b64 exec, -1")
        a(f"s_add_u32 s{sLog}, s{sLog}, 4")

    def srd(r, p, size):
        a(f"s_mov_b32 s{r}, s{p}")
        a(f"s_and_b32 s{r+1}, s{p+1}, 0xffff")
        a(f"s_mov_b32 s{r+2}, {hex(size)}")
        a(f"s_mov_b32 s{r+3}, 0x20000")

    def pv(data, acc0, acc1, first):
        c0 = '0' if first else vr(acc0, 4)
        c1 = '0' if first else vr(acc1, 4)
        a(f"{MFMA} {vr(acc0,4)}, {vr(WIN+2,4)}, {vr(data,4)}, {c0}")
        a(f"{MFMA} {vr(acc1,4)}, {vr(WIN,4)}, {vr(data,4)}, {c1}")

    def win_from(pp):
        a(f"v_and_b32 v{WIN+2}, v{pp}, v{vMask0}")
        a(f"v_and_b32 v{WIN+3}, v{pp}, v{vMask1}")

    def xrow(op, r, t):
        a(f"v_mov_b32 v{t}, v{r}")
        a(f"v_permlane16_swap_b32 v{r}, v{t}")
        a(f"{op} v{r}, v{r}, v{t}")
        a(f"v_mov_b32 v{t}, v{r}")
        a(f"v_permlane32_swap_b32 v{r}, v{t}")
        a(f"{op} v{r}, v{r}, v{t}")

    def spin_tail(lab_loop, lab_done, slp=2):
        a(f"s_add_u32 s{sSpin}, s{sSpin}, 1")
        a(f"s_cmp_gt_u32 s{sSpin}, {cfg.SPIN}")
        a(f"s_cbranch_scc1 {lab_done}")
        if slp: a(f"s_sleep {slp}")
        a(f"s_branch {lab_loop}")

    def pair_half(sp, sh):
        if cfg.PX == 1:
            a(f"s_lshr_b32 s{sp}, s{sW}, 1")
            a(f"s_and_b32 s{sh}, s{sW}, 1")
        else:
            a(f"s_and_b32 s{sp}, s{sW}, 7")
            a(f"s_lshr_b32 s{sh}, s{sp}, 2")
            a(f"s_mul_i32 s{sh}, s{sh}, 5")
            a(f"s_xor_b32 s{sp}, s{sp}, s{sh}")
            a(f"s_lshr_b32 s{sh}, s{sW}, 3")
            a(f"s_lshl_b32 s{sh}, s{sh}, 2")
            a(f"s_add_u32 s{sp}, s{sp}, s{sh}")
            a(f"s_lshr_b32 s{sh}, s{sW}, 2")
            a(f"s_and_b32 s{sh}, s{sh}, 1")

    def tree_sum8(base):
        for step in (4, 2, 1):
            for g in range(step):
                for k in range(8):
                    a(f"v_add_f32 v{base+8*g+k}, v{base+8*g+k}, v{base+8*(g+step)+k}")

    def kv_load(st, isV, u, rk=R_KA, rv=R_VA):
        slot = vslot(st, u) if isV else kslot(st, u)
        r = rv if isV else rk
        va = vVcur if isV else vKcur
        fl = cfg.vflags if isV else cfg.kflags
        a(f"buffer_load_dwordx4 {vr(slot,4)}, v{va}, {sr(r,4)}, 0 offen offset:{u*1024} {fl}")

    a(f".globl {N}")
    a(".p2align 8")
    a(f".type {N},@function")
    a.label(N)
    a(f"s_cmp_ge_u32 s{sW}, 256")
    a(f"s_cbranch_scc1 {N}_done")
    if cfg.xorid: a(f"s_xor_b32 s{sW}, s{sW}, {cfg.xorid}")
    if cfg.diag: a("s_memrealtime s[100:101]")
    a(f"s_load_dwordx16 s[4:19], s[0:1], 0")
    a(f"s_load_dwordx8 s[20:27], s[0:1], 64")
    a(f"s_load_dwordx4 s[28:31], s[0:1], 96")
    a(f"v_lshrrev_b32 v1, 6, v0")
    a(f"v_and_b32 v{vLane}, 63, v0")
    a(f"v_readfirstlane_b32 s{sV}, v1")
    a(f"v_lshrrev_b32 v{vRow}, 4, v{vLane}")
    a(f"v_lshrrev_b32 v{vBank}, 2, v{vLane}")
    a(f"v_and_b32 v{vBank}, 3, v{vBank}")
    a(f"v_and_b32 v{vQ}, 3, v{vLane}")
    a(f"v_and_b32 v{vC}, 15, v{vLane}")
    WQA, WQB, XA, XB = 164, 228, 236, 244
    vWa, vWb = T0, T0 + 1
    a(f"v_lshlrev_b32 v{vT+1}, 10, v{vBank}")
    a(f"s_lshl_b32 s{sT0}, s{sV}, 7")
    a(f"v_lshl_add_u32 v{vT}, v{vRow}, 5, v{vT+1}")
    a(f"v_add_u32 v{vT}, s{sT0}, v{vT}")
    a(f"s_and_b32 s{sT1}, s{sW}, 7")
    a(f"s_lshl_b32 s{sT2}, s{sT1}, 7")
    a(f"s_lshl_b32 s{sT3}, s{sV}, 4")
    a(f"s_add_u32 s{sT2}, s{sT2}, s{sT3}")
    a(f"v_lshl_add_u32 v{vT+1}, v{vRow}, 2, v{vT+1}")
    a(f"v_add_u32 v{vT+1}, s{sT2}, v{vT+1}")
    a(f"v_lshlrev_b32 v{vWa}, 4, v{vC}")
    a(f"v_lshl_add_u32 v{vWb}, v{vRow}, 14, v{vWa}")
    a(f"v_lshl_add_u32 v{vWa}, v{vRow}, 17, v{vWa}")
    pair_half(sT0, sT2)
    a(f"s_and_b32 s{sT0}, s{sT0}, 31")
    a(f"s_lshl_b32 s{sT0}, s{sT0}, 8")
    a(f"s_lshl_b32 s{sT2}, s{sV}, 19")
    a(f"s_add_u32 s{sT0}, s{sT0}, s{sT2}")
    a(f"s_lshl_b32 s{sT1}, s{sT1}, 3")
    a(f"s_add_u32 s{sT1}, s{sT1}, s{sV}")
    a(f"s_lshl_b32 s{sT1}, s{sT1}, 16")
    a(f"s_lshr_b32 s{sT2}, s{sW}, 3")
    a(f"s_lshl_b32 s{sT2}, s{sT2}, 8")
    a(f"s_add_u32 s{sT1}, s{sT1}, s{sT2}")
    a("s_waitcnt lgkmcnt(0)")
    srd(R_X, P_X, 4096)
    srd(R_WQA, P_WQA, 4 << 20)
    if cfg.rot:
        a(f"s_lshr_b32 s{sB}, s{sW}, 6")
        for kk in range(4):
            a(f"s_add_u32 s{sT2}, s{sB}, {kk}")
            a(f"s_and_b32 s{sT2}, s{sT2}, 3")
            a(f"s_lshl_b32 s{sT2}, s{sT2}, 3")
            a(f"buffer_load_dwordx2 {vr(XA+2*kk,2)}, v{vT}, {sr(R_X,4)}, s{sT2} offen")
        a(f"buffer_load_dword v{XB}, v{vT+1}, {sr(R_X,4)}, 0 offen")
        for kk in range(4):
            a(f"s_add_u32 s{sT2}, s{sB}, {kk}")
            a(f"s_and_b32 s{sT2}, s{sT2}, 3")
            a(f"s_lshl_b32 s{sT2}, s{sT2}, 15")
            a(f"s_add_u32 s{sT2}, s{sT2}, s{sT0}")
            for q in range(4):
                i = 4 * kk + q
                a(f"buffer_load_dwordx4 {vr(WQA+4*i,4)}, v{vWa}, {sr(R_WQA,4)}, s{sT2} offen {cfg.wqflags}")
                if q < 3: a(f"s_add_u32 s{sT2}, s{sT2}, 8192")
    else:
        a(f"buffer_load_dwordx4 {vr(XA,4)}, v{vT}, {sr(R_X,4)}, 0 offen")
        a(f"buffer_load_dwordx4 {vr(XA+4,4)}, v{vT}, {sr(R_X,4)}, 0 offen offset:16")
        a(f"buffer_load_dword v{XB}, v{vT+1}, {sr(R_X,4)}, 0 offen")
        for i in range(16):
            a(f"buffer_load_dwordx4 {vr(WQA+4*i,4)}, v{vWa}, {sr(R_WQA,4)}, s{sT0} offen {cfg.wqflags}")
            if i < 15: a(f"s_add_u32 s{sT0}, s{sT0}, 8192")
    srd(R_WQB, P_WQB, 4 << 20)
    if cfg.bar0: a("s_barrier")
    sWb0, sWb1, sWo0, sWo1 = 82, 83, 93, 95
    vWo = T0 + 3
    a(f"s_mov_b32 s{sWb0}, s{sT1}")
    a(f"s_add_u32 s{sWb1}, s{sT1}, 8192")
    srd(R_WOA, P_WOA, 4 << 20)
    srd(R_WOB, P_WOB, 4 << 20)
    a(f"s_and_b32 s{sT0}, s{sW}, 7")
    a(f"s_lshl_b32 s{sT0}, s{sT0}, 2")
    a(f"s_lshr_b32 s{sT1}, s{sW}, 3")
    a(f"s_and_b32 s{sT1}, s{sT1}, 3")
    a(f"s_add_u32 s{sT0}, s{sT0}, s{sT1}")
    a(f"s_lshl_b32 s{sT0}, s{sT0}, 4")
    a(f"s_lshr_b32 s{sT1}, s{sW}, 5")
    a(f"s_and_b32 s{sT1}, s{sT1}, 1")
    a(f"s_lshl_b32 s{sT1}, s{sT1}, 3")
    a(f"s_add_u32 s{sT0}, s{sT0}, s{sT1}")
    a(f"s_add_u32 s{sT0}, s{sT0}, s{sV}")
    a(f"s_lshl_b32 s{sT0}, s{sT0}, 13")
    a(f"s_lshr_b32 s{sT1}, s{sW}, 6")
    a(f"s_lshl_b32 s{sT1}, s{sT1}, 8")
    a(f"s_add_u32 s{sWo0}, s{sT0}, s{sT1}")
    a(f"s_add_u32 s{sWo1}, s{sWo0}, 4096")
    a(f"v_lshlrev_b32 v{vWo}, 4, v{vC}")
    a(f"v_lshl_add_u32 v{vWo}, v{vRow}, 10, v{vWo}")
    deferred = [
        lambda: a(f"buffer_load_dwordx4 {vr(WQB,4)}, v{vWb}, {sr(R_WQB,4)}, s{sWb0} offen nt"),
        lambda: a(f"buffer_load_dwordx4 {vr(WQB+4,4)}, v{vWb}, {sr(R_WQB,4)}, s{sWb1} offen nt"),
        lambda: a(f"buffer_load_dwordx4 {vr(WOA,4)}, v{vWo}, {sr(R_WOA,4)}, s{sWo0} offen nt"),
        lambda: a(f"buffer_load_dwordx4 {vr(WOA+4,4)}, v{vWo}, {sr(R_WOA,4)}, s{sWo1} offen nt"),
        lambda: a(f"buffer_load_dwordx4 {vr(WOB,4)}, v{vWo}, {sr(R_WOB,4)}, s{sWo0} offen nt"),
        lambda: a(f"buffer_load_dwordx4 {vr(WOB+4,4)}, v{vWo}, {sr(R_WOB,4)}, s{sWo1} offen nt"),
    ]
    if not cfg.defer:
        for f in deferred: f()
        deferred = []
    a(f"v_lshlrev_b32 v{vKoff}, 8, v{vBank}")
    a(f"v_lshl_add_u32 v{vKoff}, v{vRow}, 6, v{vKoff}")
    a(f"v_lshl_add_u32 v{vKoff}, v{vQ}, 4, v{vKoff}")
    a(f"v_lshlrev_b32 v{vVoff}, 4, v{vLane}")
    a(f"v_and_b32 v{vT}, 1, v{vQ}")
    a(f"v_cmp_eq_u32 vcc, 0, v{vT}")
    a(f"v_mov_b32 v{vT}, 0xffff0000")
    a(f"v_mov_b32 v{vT+1}, 0x0000ffff")
    a(f"v_cndmask_b32 v{vT}, v{vT}, v{vT+1}, vcc")
    a(f"v_cmp_gt_u32 vcc, 2, v{vQ}")
    a(f"v_cndmask_b32 v{vMask0}, 0, v{vT}, vcc")
    a(f"v_cndmask_b32 v{vMask1}, v{vT}, 0, vcc")
    for k in (0, 1, 4, 5): a(f"v_mov_b32 v{WIN+k}, 0")
    a(f"v_mov_b32 v{vOne}, 1")
    a(f"s_mov_b32 s{sScale}, 0x3db504f3")
    a(f"s_mov_b32 s{sL2E}, 0x3fb8aa3b")
    a(f"s_mov_b32 s{sNL2E}, 0xbfb8aa3b")
    a(f"s_mov_b32 s{sSelLo}, 0x01000100")
    a(f"s_mov_b32 s{sSelHi}, 0x03020302")
    a(f"s_lshr_b32 s{sB}, s{sW}, 6")
    a(f"s_lshl_b32 s{sSlot}, s{sW}, 13")
    srd(R_KA, P_KA, 256 << 20)
    srd(R_VA, P_VA, 256 << 20)
    srd(R_KB, P_KB, 64 << 20)
    srd(R_VB, P_VB, 64 << 20)
    srd(R_GW, P_GW, 1024)
    srd(R_OUT, P_OUT, 4096)
    srd(R_WS, P_WS, WS_BYTES)
    if cfg.tlog:
        a(f"s_lshl_b32 s{sLog}, s{sW}, 3")
        a(f"s_add_u32 s{sLog}, s{sLog}, s{sV}")
        a(f"s_lshl_b32 s{sLog}, s{sLog}, 8")
        a(f"s_add_u32 s{sLog}, s{sLog}, {WS_TLOG}")
    for k in range(3):
        a(f"s_mov_b32 s{R_IK+k}, s{R_KA+k}")
        a(f"s_mov_b32 s{R_IV+k}, s{R_VA+k}")
    a(f"s_mov_b32 s{R_IK+3}, 0x20000")
    a(f"s_mov_b32 s{R_IV+3}, 0x20000")
    pair_half(sT0, sT1)
    a(f"s_lshl_b32 s{sBase}, s{sT0}, 21")
    a(f"s_mul_i32 s{sT1}, s{sT1}, {32768 if cfg.ileave else NS*32768}")
    a(f"s_add_u32 s{sOff}, s{sBase}, s{sT1}")
    a(f"s_lshl_b32 s{sT1}, s{sV}, 12")
    a(f"s_add_u32 s{sOff}, s{sOff}, s{sT1}")
    a(f"s_add_u32 s{sBase}, s{sBase}, s{sT1}")
    a(f"s_add_u32 s{sBase}, s{sBase}, {2*NS*32768}")
    a(f"s_lshl_b32 s{sT0}, s{sT0}, 3")
    a(f"s_add_u32 s{sT0}, s{sT0}, s{sV}")
    a(f"s_lshl_b32 s{sT0}, s{sT0}, 8")
    a(f"s_add_u32 s{sT0}, s{sT0}, {WS_CNT + 65536}")
    a(f"v_mov_b32 v{vCnt}, s{sT0}")
    a(f"s_mov_b32 s{sCnt}, s{sT0}")
    a(f"s_lshr_b32 s{sBbase}, s{sW}, 3")
    a(f"s_lshl_b32 s{sBbase}, s{sBbase}, 21")
    a(f"s_add_u32 s{sBbase}, s{sBbase}, s{sT1}")
    a(f"v_add_u32 v{vKcur}, s{sOff}, v{vKoff}")
    a(f"v_add_u32 v{vVcur}, s{sOff}, v{vVoff}")
    a(f"v_mov_b32 v{vT}, {L_FLAG}")
    a(f"v_mov_b32 v{vT+1}, 0")
    a(f"ds_write_b32 v{vT}, v{vT+1}")
    a(f"ds_write_b32 v{vT}, v{vT+1} offset:4")
    if cfg.diag:
        stamp(12)
        a(f"s_sub_u32 s{sT3}, s{sT3}, 4")
        a(f"v_mov_b32 v{vT+1}, s{sT3}")
        a(f"v_mov_b32 v{vT}, s100")
        a(f"buffer_store_dword v{vT}, v{vT+1}, {sr(R_WS,4)}, 0 offen")
    QA0, QA1 = DD, DD + 4
    QB0, QB1 = DD + 8, DD + 12
    kvseq = [(0, 0, u) for u in range(4)] + [(0, 1, u) for u in range(4)]
    queue = list(deferred) + [(lambda q=q: kv_load(*q)) for q in kvseq]
    base_younger = 0 if deferred else 6
    nq = 0
    for i in range(16):
        a(f"s_waitcnt vmcnt({(15 - i) + base_younger + nq})")
        if i == 0: stamp(13)
        sel = sSelLo if i % 2 == 0 else sSelHi
        x = XA + i // 2
        a(f"v_perm_b32 v{PP}, v{x}, v{x}, s{sel}")
        win_from(PP)
        pv(WQA + 4 * i, QA0, QA1, i == 0)
        if i >= cfg.I0 and nq < len(queue):
            queue[nq](); nq += 1
    nkv = max(0, nq - len(deferred))
    assert cfg.lateqb or not cfg.defer
    def qb_partial(younger):
        for i in range(2):
            a(f"s_waitcnt vmcnt({(1 - i) + younger})")
            sel = sSelLo if i == 0 else sSelHi
            a(f"v_perm_b32 v{PP}, v{XB}, v{XB}, s{sel}")
            win_from(PP)
            pv(WQB + 4 * i, QB0, QB1, i == 0)
    if not cfg.lateqb: qb_partial(4 + nkv)
    a(f"s_lshl_b32 s{sT0}, s{sV}, 11")
    a(f"v_add_u32 v{T0+2}, s{sT0}, v{vVoff}")
    a(f"ds_write_b128 v{T0+2}, {vr(QA0,4)} offset:{L_QA}")
    a(f"ds_write_b128 v{T0+2}, {vr(QA1,4)} offset:{L_QA+1024}")
    if not cfg.lateqb:
        a(f"ds_write_b128 v{T0+2}, {vr(QB0,4)} offset:{L_QBP}")
        a(f"ds_write_b128 v{T0+2}, {vr(QB1,4)} offset:{L_QBP+1024}")
    while nq < len(queue):
        queue[nq](); nq += 1
    a("s_waitcnt lgkmcnt(0)")
    stamp(14)
    a("s_barrier")
    a(f"s_lshl_b32 s{sT0}, s{sB}, 8")
    a(f"v_lshlrev_b32 v{vT}, 6, v{vRow}")
    a(f"v_lshl_add_u32 v{vT}, v{vQ}, 4, v{vT}")
    a(f"v_add_u32 v{vT}, s{sT0}, v{vT}")
    S = TMP
    for vv in range(8):
        for m in range(2):
            a(f"ds_read_b128 {vr(S + 8*vv + 4*m, 4)}, v{vT} offset:{L_QA + vv*2048 + m*1024}")
    a(f"s_add_u32 s{sOff}, s{sOff}, {65536 if cfg.ileave else 32768}")
    a(f"v_add_u32 v{vKcur}, s{sOff}, v{vKoff}")
    a(f"v_add_u32 v{vVcur}, s{sOff}, v{vVoff}")
    a(f"s_add_u32 s{sOff}, s{sOff}, {65536 if cfg.ileave else 32768}")
    a("s_waitcnt lgkmcnt(0)")
    tree_sum8(S)
    for k in range(4):
        a(f"v_cvt_pk_bf16_f32 v{QOP+k}, v{S+2*k}, v{S+2*k+1}")
    for isV in (0, 1):
        for u in range(4):
            a(f"s_waitcnt vmcnt({D-1})"); kv_load(1, isV, u)
    if cfg.lateqb:
        qb_partial(4 + 16)
        a(f"s_lshl_b32 s{sT0}, s{sV}, 11")
        a(f"v_add_u32 v{T0+2}, s{sT0}, v{vVoff}")
        a(f"ds_write_b128 v{T0+2}, {vr(QB0,4)} offset:{L_QBP}")
        a(f"ds_write_b128 v{T0+2}, {vr(QB1,4)} offset:{L_QBP+1024}")
        a(f"v_mov_b32 v{vT}, {L_FLAG}")
        a("s_waitcnt lgkmcnt(0)")
        a("s_mov_b64 exec, 1")
        a(f"ds_add_u32 v{vT}, v{vOne} offset:4")
        a("s_mov_b64 exec, -1")
    a(f"s_lshl_b32 s{sT0}, s{sV}, 11")
    a(f"v_add_u32 v{vW1}, s{sT0}, v{vVoff}")
    for k in range(8): a(f"v_mov_b32 v{ACC+k}, 0")
    a(f"v_mov_b32 v{vM}, 0xff7fffff")
    a(f"v_mov_b32 v{vL}, 0")
    stamp(1)

    uid = [0]
    def issue(st, isV, u, rk, rv):
        if rk == R_IK and cfg.fast:
            uid[0] += 1
            a(f"s_cbranch_vccnz {N}_f{uid[0]}")
            a(f"s_waitcnt vmcnt({D-1})")
            a.label(f"{N}_f{uid[0]}")
        else:
            a(f"s_waitcnt vmcnt({D-1})")
        kv_load(st, isV, u, rk, rv)

    def diag(u0, u1):
        for c in range(4):
            for u in (u0, u1):
                d = DD + 4 * u + c
                qp = f"quad_perm:[{c},{c},{c},{c}]"
                if c == 0: a(f"v_mov_b32_dpp v{Y+u}, v{d} {qp} {FULL}")
                else:      a(f"v_add_f32_dpp v{Y+u}, v{d}, v{Y+u} {qp} {FULL}")

    def round4():
        a(f"v_cvt_pk_bf16_f32 v{T0}, v{Y}, v{Y+1}")
        a(f"v_cvt_pk_bf16_f32 v{T0+1}, v{Y+2}, v{Y+3}")
        a(f"v_lshlrev_b32 v{Y}, 16, v{T0}")
        a(f"v_and_b32 v{Y+1}, 0xffff0000, v{T0}")
        a(f"v_lshlrev_b32 v{Y+2}, 16, v{T0+1}")
        a(f"v_and_b32 v{Y+3}, 0xffff0000, v{T0+1}")

    def body(st, rk, rv):
        a("s_waitcnt vmcnt(12)")
        for u in range(4):
            a(f"{MFMA} {vr(DD+4*u,4)}, {vr(kslot(st,u),4)}, {vr(QOP,4)}, 0")
        issue(st, 0, 0, rk, rv)
        diag(0, 1)
        issue(st, 0, 1, rk, rv)
        diag(2, 3)
        round4()
        issue(st, 0, 2, rk, rv)
        for u in range(4): a(f"v_mul_f32 v{Y+u}, s{sScale}, v{Y+u}")
        round4()
        a(f"v_max3_f32 v{T0+2}, v{Y}, v{Y+1}, v{Y+2}")
        a(f"v_max_f32 v{T0+2}, v{T0+2}, v{Y+3}")
        xrow('v_max_f32', T0 + 2, T0 + 3)
        a(f"v_max_f32 v{vMn}, v{vM}, v{T0+2}")
        issue(st, 0, 3, rk, rv)
        a(f"v_sub_f32 v{vAl}, v{vM}, v{vMn}")
        a(f"v_mul_f32 v{vNM}, s{sNL2E}, v{vMn}")
        a(f"v_mul_f32 v{vAl}, s{sL2E}, v{vAl}")
        for u in range(4): a(f"v_fma_f32 v{Y+u}, v{Y+u}, s{sL2E}, v{vNM}")
        a(f"v_exp_f32 v{vAl}, v{vAl}")
        for u in range(4): a(f"v_exp_f32 v{Y+u}, v{Y+u}")
        a(f"v_mov_b32 v{vM}, v{vMn}")
        for h in range(4):
            a(f"v_mov_b32_dpp v{vAT}, v{vAl} row_newbcast:{4*h} row_mask:{hex(1<<h)} bank_mask:0xf")
        a(f"v_fma_f32 v{vL}, v{vL}, v{vAl}, v{Y}")
        for u in range(4): a(f"v_cvt_pk_bf16_f32 v{PP+u}, v{Y+u}, v{Y+u}")
        a(f"v_add_f32 v{T0}, v{Y+1}, v{Y+2}")
        a(f"v_add_f32 v{vL}, v{vL}, v{Y+3}")
        a(f"v_add_f32 v{vL}, v{vL}, v{T0}")
        for k in range(8): a(f"v_mul_f32 v{ACC+k}, v{ACC+k}, v{vAT}")
        a("s_waitcnt vmcnt(12)")
        for u in range(4):
            win_from(PP + u)
            pv(vslot(st, u), ACC, ACC + 4, False)
            issue(st, 1, u, rk, rv)
        tlog()

    STEP = 65536 if cfg.ileave else 32768
    def top_static():
        a(f"v_add_u32 v{vKcur}, s{sOff}, v{vKoff}")
        a(f"v_add_u32 v{vVcur}, s{sOff}, v{vVoff}")
        a(f"s_add_u32 s{sOff}, s{sOff}, {STEP}")
        if cfg.dummy_atomic == 2:
            a("s_waitcnt lgkmcnt(0)")
            a(f"s_add_u32 s{sT0}, s{sCnt}, 128")
            sclaim(sClaim, sT0)
        elif cfg.dummy_atomic:
            a("s_mov_b64 exec, 1")
            a(f"v_mov_b32 v{T0+5}, 1")
            a(f"v_add_u32 v{T0+4}, 128, v{vCnt}")
            a(f"buffer_atomic_add v{T0+5}, v{T0+4}, {sr(R_WS,4)}, 0 offen sc0 sc1")
            a("s_mov_b64 exec, -1")

    def sclaim(sdst, soff):
        a(f"s_mov_b32 s{sdst}, 1")
        a(f"s_atomic_add s{sdst}, s[{P_WS}:{P_WS+1}], s{soff} glc")

    def claim(vdst, vaddr):
        a("s_mov_b64 exec, 1")
        a(f"v_mov_b32 v{vdst}, 1")
        a(f"buffer_atomic_add v{vdst}, v{vaddr}, {sr(R_WS,4)}, 0 offen sc0 sc1")
        a("s_mov_b64 exec, -1")

    def state_switch():
        a("s_nop 7")
        for k in range(8): a(f"v_mov_b32 v{ACCA+k}, v{ACC+k}")
        a(f"v_mov_b32 v{vMA}, v{vM}")
        a(f"v_mov_b32 v{vLA}, v{vL}")
        for k in range(8): a(f"v_mov_b32 v{ACC+k}, 0")
        a(f"v_mov_b32 v{vM}, 0xff7fffff")
        a(f"v_mov_b32 v{vL}, 0")
        for k in range(4): a(f"v_mov_b32 v{QOP+k}, v{QB+k}")
        a(f"s_mov_b32 s{sBst}, 1")
        stamp(2)

    def top_dyn(st):
        lab = f"{N}_d{st}"
        a(f"s_cmp_eq_u32 s{sRem}, 0")
        a(f"s_cbranch_scc1 {lab}_new")
        a(f"s_add_u32 s{sIdx}, s{sIdx}, s{sStride}")
        a(f"s_sub_u32 s{sRem}, s{sRem}, 1")
        a(f"s_cmp_eq_u32 s{sChk}, 0")
        a(f"s_cbranch_scc0 {lab}_chk")
        a.label(f"{lab}_have")
        a(f"s_lshl_b32 s{sT0}, s{sIdx}, 15")
        a(f"s_add_u32 s{sT0}, s{sT0}, s{sBase}")
        a(f"s_mov_b32 s{sK2}, s{sKc}")
        a(f"s_max_u32 s{sKc}, s{sKc}, s{sPhase}")
        a(f"s_lshr_b32 s{sT1}, s{sPhase}, 1")
        a(f"s_cmp_gt_u32 s{sT1}, s{sRem}")
        a(f"s_cbranch_scc0 {lab}_go2")
        sclaim(sClaim, sCntB)
        a.label(f"{lab}_go2")
        a(f"v_add_u32 v{vKcur}, s{sT0}, v{vKoff}")
        a(f"v_add_u32 v{vVcur}, s{sT0}, v{vVoff}")
        a(f"s_cmp_eq_u32 s{sK0}, 2")
        a(f"s_cbranch_scc1 {lab}_sw")
        a.label(f"{lab}_body")

    def top_dyn_cold(st):
        lab = f"{N}_d{st}"
        LIMA = NADT // cfg.CA
        a.label(f"{lab}_chk")
        a("s_waitcnt lgkmcnt(0)")
        a(f"s_mov_b32 s{sChk}, 0")
        a(f"s_cmp_lt_u32 s{sClaim}, {LIMA}")
        a(f"s_cbranch_scc1 {lab}_have")
        sclaim(sClaim, sCntB)
        a(f"s_mov_b32 s{sCPh}, 3")
        a(f"s_branch {lab}_have")
        a.label(f"{lab}_new")
        a("s_waitcnt lgkmcnt(0)")
        a(f"s_cmp_eq_u32 s{sCPh}, 1")
        a(f"s_cbranch_scc0 {lab}_B")
        a(f"s_cmp_lt_u32 s{sClaim}, {LIMA}")
        a(f"s_cbranch_scc0 {lab}_lateB")
        a(f"s_mul_i32 s{sIdx}, s{sClaim}, {cfg.CA}")
        a(f"s_mov_b32 s{sRem}, {cfg.CA - 1}")
        a(f"s_mov_b32 s{sChk}, 1")
        sclaim(sClaim, sCnt)
        a(f"s_branch {lab}_have")
        a.label(f"{lab}_lateB")
        sclaim(sClaim, sCntB)
        a(f"s_mov_b32 s{sCPh}, 3")
        a("s_waitcnt lgkmcnt(0)")
        a.label(f"{lab}_B")
        a(f"s_cmp_eq_u32 s{sPhase}, 1")
        a(f"s_cbranch_scc0 {lab}_B2")
        a(f"s_mov_b32 s{sPhase}, 3")
        a(f"s_mov_b32 s{sKc}, 2")
        a(f"s_mov_b32 s{sBase}, s{sBbase}")
        a(f"s_mov_b32 s{sStride}, {cfg.bstride}")
        for k in range(3):
            a(f"s_mov_b32 s{R_IK+k}, s{R_KB+k}")
            a(f"s_mov_b32 s{R_IV+k}, s{R_VB+k}")
        a.label(f"{lab}_B2")
        if cfg.bstride == 8: a(f"s_mov_b32 s{sIdx}, s{sClaim}")
        else: a(f"s_lshl_b32 s{sIdx}, s{sClaim}, 2")
        a(f"s_mov_b32 s{sRem}, 3")
        a(f"s_cmp_lt_u32 s{sClaim}, 8")
        a(f"s_cbranch_scc1 {lab}_have")
        if cfg.bstride == 8: a(f"s_add_u32 s{sIdx}, s{sClaim}, 24")
        else:
            a(f"s_lshl_b32 s{sIdx}, s{sClaim}, 1")
            a(f"s_add_u32 s{sIdx}, s{sIdx}, 16")
        a(f"s_mov_b32 s{sRem}, 1")
        a(f"s_cmp_lt_u32 s{sClaim}, 16")
        a(f"s_cbranch_scc1 {lab}_have")
        if cfg.fast and not cfg.fastv:
            a(f"s_cmp_ge_u32 s{sClaim}, {cfg.fast}")
            a(f"s_cselect_b64 vcc, -1, vcc")
        a(f"s_add_u32 s{sIdx}, s{sClaim}, 32")
        a(f"s_mov_b32 s{sRem}, 0")
        if cfg.fast and cfg.fastv:
            a(f"s_sub_u32 s{sT0}, s{sClaim}, {cfg.fast}")
            a(f"s_cmp_lt_u32 s{sT0}, {32 - cfg.fast}")
            a(f"s_cselect_b64 vcc, -1, vcc")
        a(f"s_cmp_lt_u32 s{sClaim}, 32")
        a(f"s_cbranch_scc1 {lab}_have")
        a(f"s_mov_b32 s{sT0}, 0x7f000000")
        a(f"s_mov_b32 s{sK2}, 0")
        a(f"s_branch {lab}_go2")
        a.label(f"{lab}_sw")
        state_switch()
        a("s_nop 1")
        a(f"s_branch {lab}_body")

    assert NS % 2 == 0 and NS >= 10
    a(f"s_mov_b32 s{sJ}, 0")
    a.label(f"{N}_sloop")
    a(f"s_cmp_eq_u32 s{sJ}, {2 if cfg.lateqb else 0}")
    a(f"s_cbranch_scc1 {N}_job0")
    a(f"s_cmp_eq_u32 s{sJ}, {4 if cfg.lateqb else 2}")
    a(f"s_cbranch_scc1 {N}_job2")
    a(f"s_cmp_eq_u32 s{sJ}, {cfg.J_GATHER}")
    a(f"s_cbranch_scc1 {N}_job8")
    a.label(f"{N}_jobret")
    top_static(); body(0, R_KA, R_VA)
    top_static(); body(1, R_KA, R_VA)
    a(f"s_add_u32 s{sJ}, s{sJ}, 2")
    a(f"s_cmp_lt_u32 s{sJ}, {NS-4}")
    a(f"s_cbranch_scc1 {N}_sloop")
    a(f"s_lshl_b32 s{sT0}, s{sV}, 5")
    a(f"v_lshlrev_b32 v{vW2}, 3, v{vBank}")
    a(f"v_add_u32 v{vW2}, s{sT0}, v{vW2}")
    vTid, vI32, vHH = T0, T0 + 1, T0 + 2
    a(f"s_lshl_b32 s{sT0}, s{sV}, 6")
    a(f"v_add_u32 v{vTid}, s{sT0}, v{vLane}")
    a(f"v_and_b32 v{vI32}, 31, v{vTid}")
    a(f"v_lshrrev_b32 v{vHH}, 5, v{vTid}")
    a(f"v_and_b32 v{vHH}, 3, v{vHH}")
    a(f"v_and_b32 v{vT}, 1, v{vI32}")
    a(f"v_lshlrev_b32 v{vT}, 10, v{vT}")
    a(f"v_lshrrev_b32 v{vT+1}, 1, v{vI32}")
    a(f"v_lshl_add_u32 v{vT+1}, v{vHH}, 4, v{vT+1}")
    a(f"v_lshl_add_u32 v{vLA_}, v{vT+1}, 4, v{vT}")
    a(f"s_cmp_eq_u32 s{sV}, 2")
    for (sr_, va, vb) in ((sT0, L_AM, L_BM), (sT1, L_MLA, L_MLB), (sT2, O_OA, O_OB), (sT3, O_MLA, O_MLB)):
        a(f"s_mov_b32 s{sr_}, {vb}")
        a(f"s_cmov_b32 s{sr_}, {va}")
    a(f"s_cselect_b32 s{sMrg+1}, 0, -1")
    a(f"s_mov_b32 s{sMrg}, -1")
    a(f"v_add_u32 v{vRA}, s{sT0}, v{vLA_}")
    a(f"v_lshlrev_b32 v{vML}, 3, v{vHH}")
    a(f"v_add_u32 v{vGM}, s{sT3}, v{vML}")
    a(f"v_add_u32 v{vGM}, s{sSlot}, v{vGM}")
    a(f"v_add_u32 v{vML}, s{sT1}, v{vML}")
    a(f"v_lshlrev_b32 v{vGy}, 9, v{vHH}")
    a(f"v_lshl_add_u32 v{vGy}, v{vI32}, 4, v{vGy}")
    a(f"v_add_u32 v{vGy}, s{sSlot}, v{vGy}")
    a(f"v_add_u32 v{vG}, s{sT2}, v{vGy}")
    a(f"v_cmp_eq_u32 s[{sMl0}:{sMl0+1}], 0, v{vI32}")
    a(f"s_and_b64 s[{sMl0}:{sMl0+1}], s[{sMl0}:{sMl0+1}], s[{sMrg}:{sMrg+1}]")
    a(f"s_and_b32 s{sT0}, s{sW}, 7")
    a(f"s_lshr_b32 s{sT1}, s{sW}, 3")
    a(f"s_and_b32 s{sT1}, s{sT1}, 3")
    a(f"s_lshr_b32 s{sT3}, s{sW}, 5")
    a(f"s_and_b32 s{sT3}, s{sT3}, 1")
    a(f"s_lshl_b32 s{sT3}, s{sT3}, 8")
    a(f"s_lshl_b32 s{sT2}, s{sT0}, 3")
    a(f"s_add_u32 s{sT2}, s{sT2}, s{sV}")
    a(f"v_lshlrev_b32 v{vT}, 6, v{vRow}")
    a(f"v_add_u32 v{vBm}, s{sT2}, v{vT}")
    a(f"v_lshlrev_b32 v{vBm}, 13, v{vBm}")
    a(f"s_lshl_b32 s{sT2}, s{sT1}, 9")
    a(f"s_add_u32 s{sT2}, s{sT2}, s{sT3}")
    a(f"s_add_u32 s{sT2}, s{sT2}, {O_OB}")
    a(f"v_lshl_add_u32 v{vBo}, v{vC}, 4, v{vBm}")
    a(f"v_add_u32 v{vBo}, s{sT2}, v{vBo}")
    a(f"s_lshl_b32 s{sT2}, s{sT1}, 3")
    a(f"s_add_u32 s{sT2}, s{sT2}, {O_MLB}")
    a(f"v_add_u32 v{vBm}, s{sT2}, v{vBm}")
    if cfg.PX == 1:
        a(f"s_lshl_b32 s{sT2}, s{sT0}, 2")
        a(f"s_add_u32 s{sT2}, s{sT2}, s{sT1}")
        a(f"s_lshl_b32 s{sT2}, s{sT2}, 1")
        a(f"s_add_u32 s{sT2}, s{sT2}, s{sV}")
    else:
        a(f"s_and_b32 s{sT2}, s{sV}, 1")
        a(f"s_mul_i32 s{sT2}, s{sT2}, 5")
        a(f"s_xor_b32 s{sT2}, s{sT2}, s{sT1}")
        a(f"s_lshl_b32 s{sIdx}, s{sT0}, 3")
        a(f"s_add_u32 s{sT2}, s{sT2}, s{sIdx}")
    a(f"v_add_u32 v{vAm}, s{sT2}, v{vT}")
    a(f"v_lshlrev_b32 v{vAm}, 13, v{vAm}")
    a(f"s_add_u32 s{sT3}, s{sT3}, {O_OA}")
    a(f"v_lshl_add_u32 v{vAo}, v{vC}, 4, v{vAm}")
    a(f"v_add_u32 v{vAo}, s{sT3}, v{vAo}")
    a(f"v_add_u32 v{vAm}, {O_MLA}, v{vAm}")
    a(f"s_lshl_b32 s{sT2}, s{sV}, 5")
    a(f"v_lshlrev_b32 v{vS2r}, 3, v{vRow}")
    a(f"v_add_u32 v{vS2r}, s{sT2}, v{vS2r}")
    if cfg.tail2:
        a(f"v_lshlrev_b32 v{vR1}, 8, v{vBank}")
        a(f"v_lshl_add_u32 v{vR1}, v{vRow}, 2, v{vR1}")
        a(f"v_add_u32 v{vR1}, s{sT2}, v{vR1}")
        a(f"v_lshlrev_b32 v{vR2}, 3, v{vBank}")
        a(f"v_lshlrev_b32 v{vO1}, 3, v{vRow}")
    else:
        vS, vMm = T0, T0 + 1
        a(f"v_lshrrev_b32 v{vS}, 1, v{vLane}")
        a(f"v_and_b32 v{vS}, 7, v{vS}")
        a(f"v_and_b32 v{vMm}, 1, v{vLane}")
        a(f"v_lshlrev_b32 v{vR1}, 10, v{vS}")
        a(f"v_lshl_add_u32 v{vR1}, v{vRow}, 8, v{vR1}")
        a(f"v_lshl_add_u32 v{vR1}, v{vMm}, 4, v{vR1}")
        a(f"v_add_u32 v{vR1}, s{sT2}, v{vR1}")
        a(f"v_lshlrev_b32 v{vR2}, 5, v{vS}")
        a(f"v_lshl_add_u32 v{vR2}, v{vRow}, 3, v{vR2}")
        a(f"v_cmp_gt_u32 s[{sS2}:{sS2+1}], 2, v{vS}")
        a(f"s_lshl_b32 s{sT0}, s{sV}, 8")
        a(f"v_lshlrev_b32 v{vO1}, 5, v{vRow}")
        a(f"v_lshl_add_u32 v{vO1}, v{vMm}, 4, v{vO1}")
        a(f"v_add_u32 v{vO1}, s{sT0}, v{vO1}")
        a(f"v_lshlrev_b32 v{vO2}, 5, v{vBank}")
        a(f"v_lshl_add_u32 v{vO2}, v{vRow}, 2, v{vO2}")
        a(f"v_add_u32 v{vO2}, s{sT0}, v{vO2}")

    a(f"s_and_b32 s{sT0}, s{sW}, 7")
    a(f"s_lshr_b32 s{sT1}, s{sW}, 3")
    a(f"s_and_b32 s{sT1}, s{sT1}, 7")
    a(f"s_lshr_b32 s{sT2}, s{sT0}, 1")
    a(f"s_lshl_b32 s{sT2}, s{sT2}, 19")
    a(f"s_lshl_b32 s{sT3}, s{sB}, 9")
    a(f"s_add_u32 s{sT2}, s{sT2}, s{sT3}")
    a(f"s_and_b32 s{sT3}, s{sT0}, 1")
    a(f"s_lshl_b32 s{sT3}, s{sT3}, 8")
    a(f"s_add_u32 s{sT2}, s{sT2}, s{sT3}")
    a(f"s_lshl_b32 s{sT3}, s{sT1}, 5")
    a(f"s_add_u32 s{sT2}, s{sT2}, s{sT3}")
    a(f"v_lshlrev_b32 v{vF}, 13, v{vLane}")
    a(f"v_add_u32 v{vF}, s{sT2}, v{vF}")
    a(f"v_and_b32 v{vT}, 1, v{vRow}")
    a(f"v_lshlrev_b32 v{vT}, 1, v{vT}")
    a(f"v_lshrrev_b32 v{vT+1}, 1, v{vRow}")
    a(f"v_add_u32 v{vT}, v{vT}, v{vT+1}")
    a(f"v_lshlrev_b32 v{vT}, 1, v{vT}")
    a(f"s_lshl_b32 s{sT2}, s{sB}, 10")
    a(f"s_lshl_b32 s{sT0}, s{sT0}, 7")
    a(f"s_lshl_b32 s{sT1}, s{sT1}, 4")
    a(f"s_add_u32 s{sT2}, s{sT2}, s{sT0}")
    a(f"s_add_u32 s{sT2}, s{sT2}, s{sT1}")
    a(f"v_add_u32 v{vOut}, s{sT2}, v{vT}")
    a(f"s_and_b32 s{sT0}, s{sW}, 0xf8")
    a(f"s_add_u32 s{sT0}, s{sT0}, s{sV}")
    a(f"s_lshl_b32 s{sT0}, s{sT0}, 8")
    a(f"s_add_u32 s{sT0}, s{sT0}, {WS_CNT}")
    a(f"v_mov_b32 v{vCntB}, s{sT0}")
    a(f"s_mov_b32 s{sCntB}, s{sT0}")
    a(f"s_mov_b32 s{sSpin}, 0")
    a(f"v_mov_b32 v{vT}, {L_FLAG}")
    a.label(f"{N}_fl")
    a(f"ds_read_b32 v{vT+1}, v{vT}")
    a("s_waitcnt lgkmcnt(0)")
    a(f"v_readfirstlane_b32 s{sT0}, v{vT+1}")
    a(f"s_cmp_eq_u32 s{sT0}, 1")
    a(f"s_cbranch_scc1 {N}_fld")
    spin_tail(f"{N}_fl", f"{N}_fld")
    a.label(f"{N}_fld")
    a(f"ds_read_b128 {vr(QB,4)}, v{vVoff} offset:{L_QBOP}")
    a("s_waitcnt lgkmcnt(0)")
    top_static(); body(0, R_KA, R_VA)
    top_static(); sclaim(sClaim, sCnt); body(1, R_KA, R_VA)
    a(f"s_mov_b32 s{sCPh}, 1")
    a(f"s_mov_b32 s{sChk}, 0")
    a(f"s_mov_b32 s{sPhase}, 1")
    a(f"s_mov_b32 s{sKc}, 1")
    a(f"s_mov_b32 s{sRem}, 0")
    a(f"s_mov_b32 s{sStride}, 1")
    a(f"s_mov_b32 s{sK0}, 1")
    a(f"s_mov_b32 s{sK1}, 1")
    a(f"s_mov_b32 s{sBst}, 0")
    a("s_mov_b64 vcc, 0")
    assert NADT % cfg.CA == 0 and cfg.CA >= 2
    a.label(f"{N}_dloop")
    for st in range(2):
        top_dyn(st); body(st, R_IK, R_IV)
        a(f"s_mov_b32 s{sK0}, s{sK1}")
        a(f"s_mov_b32 s{sK1}, s{sK2}")
        a(f"s_cmp_eq_u32 s{sK0}, 0")
        a(f"s_cbranch_scc1 {N}_dend")
    a(f"s_branch {N}_dloop")
    for st in range(2): top_dyn_cold(st)
    a.label(f"{N}_dend")
    a(f"s_cmp_eq_u32 s{sBst}, 0")
    a(f"s_cbranch_scc0 {N}_dend2")
    state_switch()
    a.label(f"{N}_dend2")
    a("s_nop 7")
    stamp(3)

    a(f"ds_write_b128 v{vW1}, {vr(ACC,4)} offset:{L_BM}")
    a(f"ds_write_b128 v{vW1}, {vr(ACC+4,4)} offset:{L_BM+1024}")
    a(f"ds_write_b128 v{vW1}, {vr(ACCA,4)} offset:{L_AM}")
    a(f"ds_write_b128 v{vW1}, {vr(ACCA+4,4)} offset:{L_AM+1024}")
    for perm in ('v_permlane16_swap_b32', 'v_permlane32_swap_b32'):
        a(f"v_mov_b32 v{T0}, v{vL}")
        a(f"v_mov_b32 v{T0+1}, v{vLA}")
        a(f"{perm} v{vL}, v{T0}")
        a(f"{perm} v{vLA}, v{T0+1}")
        a(f"v_add_f32 v{vL}, v{vL}, v{T0}")
        a(f"v_add_f32 v{vLA}, v{vLA}, v{T0+1}")
    a(f"ds_write_b64 v{vW2}, {vr(vM,2)} offset:{L_MLB}")
    a(f"ds_write_b64 v{vW2}, {vr(vMA,2)} offset:{L_MLA}")
    a("s_waitcnt lgkmcnt(0)")
    a("s_barrier")
    stamp(4)
    a(f"s_cmp_lt_u32 s{sV}, 3")
    a(f"s_cbranch_scc0 {N}_nomerge")
    a(f"s_mov_b64 exec, s[{sMrg}:{sMrg+1}]")
    MLr, AC = 172, 188
    for vv in range(8):
        a(f"ds_read_b64 {vr(MLr+2*vv,2)}, v{vML} offset:{vv*32}")
    for vv in range(8):
        a(f"ds_read_b128 {vr(AC+4*vv,4)}, v{vRA} offset:{vv*2048}")
    a("s_waitcnt lgkmcnt(8)")
    Ms = 220
    a(f"v_max3_f32 v{Ms}, v{MLr}, v{MLr+2}, v{MLr+4}")
    a(f"v_max3_f32 v{Ms+1}, v{MLr+6}, v{MLr+8}, v{MLr+10}")
    a(f"v_max3_f32 v{Ms}, v{Ms}, v{MLr+12}, v{MLr+14}")
    a(f"v_max_f32 v{Ms}, v{Ms}, v{Ms+1}")
    for vv in range(8): a(f"v_sub_f32 v{MLr+2*vv}, v{MLr+2*vv}, v{Ms}")
    for vv in range(8): a(f"v_mul_f32 v{MLr+2*vv}, s{sL2E}, v{MLr+2*vv}")
    for vv in range(8): a(f"v_exp_f32 v{MLr+2*vv}, v{MLr+2*vv}")
    a("s_waitcnt lgkmcnt(0)")
    O4 = 224
    for r in range(4): a(f"v_mul_f32 v{O4+r}, v{MLr}, v{AC+r}")
    for vv in range(1, 8):
        for r in range(4): a(f"v_fma_f32 v{O4+r}, v{MLr+2*vv}, v{AC+4*vv+r}, v{O4+r}")
    a(f"buffer_store_dwordx4 {vr(O4,4)}, v{vG}, {sr(R_WS,4)}, 0 offen sc1")
    a(f"v_mul_f32 v{Ms+1}, v{MLr}, v{MLr+1}")
    for vv in range(1, 8): a(f"v_fma_f32 v{Ms+1}, v{MLr+2*vv}, v{MLr+2*vv+1}, v{Ms+1}")
    a(f"s_mov_b64 exec, s[{sMl0}:{sMl0+1}]")
    a(f"buffer_store_dwordx2 {vr(Ms,2)}, v{vGM}, {sr(R_WS,4)}, 0 offen sc1")
    a("s_mov_b64 exec, -1")
    stamp(5)
    a("s_nop 7")
    a.label(f"{N}_nomerge")

    OB4, MLB2, OA4, MLA2 = 180, 184, 188, 192
    for k in range(4): a(f"v_mov_b32 v{OA4+k}, 0")
    a(f"v_mov_b32 v{MLA2}, 0")
    a(f"v_mov_b32 v{MLA2+1}, 0")
    a(f"s_mov_b32 s{sSpin}, 0")
    a.label(f"{N}_p1")
    a(f"buffer_load_dwordx4 {vr(OB4,4)}, v{vBo}, {sr(R_WS,4)}, 0 offen sc1")
    a(f"buffer_load_dwordx2 {vr(MLB2,2)}, v{vBm}, {sr(R_WS,4)}, 0 offen sc1")
    a(f"s_cmp_lt_u32 s{sV}, 2")
    a(f"s_cbranch_scc0 {N}_p1n")
    a(f"buffer_load_dwordx4 {vr(OA4,4)}, v{vAo}, {sr(R_WS,4)}, 0 offen sc1")
    a(f"buffer_load_dwordx2 {vr(MLA2,2)}, v{vAm}, {sr(R_WS,4)}, 0 offen sc1")
    a.label(f"{N}_p1n")
    a("s_waitcnt vmcnt(0)")
    a(f"v_max3_u32 v{vT}, v{OB4}, v{OB4+1}, v{OB4+2}")
    a(f"v_max3_u32 v{vT+1}, v{OB4+3}, v{MLB2}, v{MLB2+1}")
    a(f"v_max3_u32 v{vT}, v{vT}, v{OA4}, v{OA4+1}")
    a(f"v_max3_u32 v{vT+1}, v{vT+1}, v{OA4+2}, v{OA4+3}")
    a(f"v_max3_u32 v{vT}, v{vT}, v{MLA2}, v{MLA2+1}")
    a(f"v_max_u32 v{vT}, v{vT}, v{vT+1}")
    a(f"v_cmp_eq_u32 vcc, -1, v{vT}")
    a("s_cmp_eq_u64 vcc, 0")
    a(f"s_cbranch_scc1 {N}_p1d")
    spin_tail(f"{N}_p1", f"{N}_p1d", cfg.sleep1)
    a.label(f"{N}_p1d")
    a(f"s_lshl_b32 s{sT2}, s{sV}, 10")
    a(f"v_add_u32 v{vT}, s{sT2}, v{vVoff}")
    a(f"ds_write_b128 v{vT}, {vr(OB4,4)} offset:{L_G1B}")
    a(f"ds_write_b64 v{vS2r}, {vr(MLB2,2)} offset:{L_G1MB}")
    a(f"s_cmp_lt_u32 s{sV}, 2")
    a(f"s_cbranch_scc0 {N}_g1n")
    a(f"ds_write_b128 v{vT}, {vr(OA4,4)} offset:{L_G1A}")
    a(f"ds_write_b64 v{vS2r}, {vr(MLA2,2)} offset:{L_G1MA}")
    a.label(f"{N}_g1n")
    stamp(6)
    if not cfg.tail2:
        for k in range(4): a(f"v_mov_b32 v{OA4+k}, 0")
        a(f"v_mov_b32 v{MLA2}, 0xff7fffff")
        a(f"v_mov_b32 v{MLA2+1}, 0")
    a("s_waitcnt lgkmcnt(0)")
    a("s_barrier")
    XO = 200
    GG = 204
    if cfg.tail2:
        MB, VB = 164, 180
        MA, VA = 196, 206
        for sp in range(8):
            a(f"ds_read_b64 {vr(MB+2*sp,2)}, v{vR2} offset:{L_G1MB + 32*sp}")
        for sp in range(2):
            a(f"ds_read_b64 {vr(MA+2*sp,2)}, v{vR2} offset:{L_G1MA + 32*sp}")
        for sp in range(8):
            for m in range(2):
                a(f"ds_read_b32 v{VB+2*sp+m}, v{vR1} offset:{L_G1B + 1024*sp + 16*m}")
        for sp in range(2):
            for m in range(2):
                a(f"ds_read_b32 v{VA+2*sp+m}, v{vR1} offset:{L_G1A + 1024*sp + 16*m}")
        a(f"ds_read_b64 {vr(GG,2)}, v{vO1} offset:{L_G}")
        a("s_waitcnt lgkmcnt(0)")
        mxB, mxA, t1 = 210, 211, 212
        a(f"v_max3_f32 v{mxB}, v{MB}, v{MB+2}, v{MB+4}")
        a(f"v_max3_f32 v{t1}, v{MB+6}, v{MB+8}, v{MB+10}")
        a(f"v_max_f32 v{mxA}, v{MA}, v{MA+2}")
        a(f"v_max3_f32 v{mxB}, v{mxB}, v{MB+12}, v{MB+14}")
        a(f"v_max_f32 v{mxB}, v{mxB}, v{t1}")
        for sp in range(2): a(f"v_sub_f32 v{MA+2*sp}, v{MA+2*sp}, v{mxA}")
        for sp in range(8): a(f"v_sub_f32 v{MB+2*sp}, v{MB+2*sp}, v{mxB}")
        for sp in range(2): a(f"v_mul_f32 v{MA+2*sp}, s{sL2E}, v{MA+2*sp}")
        for sp in range(8): a(f"v_mul_f32 v{MB+2*sp}, s{sL2E}, v{MB+2*sp}")
        for sp in range(2): a(f"v_exp_f32 v{MA+2*sp}, v{MA+2*sp}")
        for sp in range(8): a(f"v_exp_f32 v{MB+2*sp}, v{MB+2*sp}")
        a(f"v_mul_f32 v{mxA}, v{MA}, v{MA+1}")
        a(f"v_mul_f32 v{XO}, v{MA}, v{VA}")
        a(f"v_mul_f32 v{XO+1}, v{MA}, v{VA+1}")
        a(f"v_mul_f32 v{mxB}, v{MB}, v{MB+1}")
        a(f"v_mul_f32 v{XO+2}, v{MB}, v{VB}")
        a(f"v_mul_f32 v{XO+3}, v{MB}, v{VB+1}")
        a(f"v_fma_f32 v{mxA}, v{MA+2}, v{MA+3}, v{mxA}")
        a(f"v_fma_f32 v{XO}, v{MA+2}, v{VA+2}, v{XO}")
        a(f"v_fma_f32 v{XO+1}, v{MA+2}, v{VA+3}, v{XO+1}")
        a(f"v_rcp_f32 v{mxA}, v{mxA}")
        for sp in range(1, 8):
            a(f"v_fma_f32 v{mxB}, v{MB+2*sp}, v{MB+2*sp+1}, v{mxB}")
            a(f"v_fma_f32 v{XO+2}, v{MB+2*sp}, v{VB+2*sp}, v{XO+2}")
            a(f"v_fma_f32 v{XO+3}, v{MB+2*sp}, v{VB+2*sp+1}, v{XO+3}")
        a(f"v_rcp_f32 v{mxB}, v{mxB}")
        a(f"v_mul_f32 v{XO}, v{XO}, v{mxA}")
        a(f"v_mul_f32 v{XO+1}, v{XO+1}, v{mxA}")
        a(f"v_mul_f32 v{XO+2}, v{XO+2}, v{mxB}")
        a(f"v_mul_f32 v{XO+3}, v{XO+3}, v{mxB}")
        for k in range(4): a(f"v_cvt_pk_bf16_f32 v{XO+k}, v{XO+k}, v{XO+k}")
    else:
        a(f"ds_read_b128 {vr(OB4,4)}, v{vR1} offset:{L_G1B}")
        a(f"ds_read_b64 {vr(MLB2,2)}, v{vR2} offset:{L_G1MB}")
        a(f"s_mov_b64 exec, s[{sS2}:{sS2+1}]")
        a(f"ds_read_b128 {vr(OA4,4)}, v{vR1} offset:{L_G1A}")
        a(f"ds_read_b64 {vr(MLA2,2)}, v{vR2} offset:{L_G1MA}")
        a("s_mov_b64 exec, -1")
        GG = 204
        a(f"v_lshlrev_b32 v{vT}, 3, v{vRow}")
        a(f"ds_read_b64 {vr(GG,2)}, v{vT} offset:{L_G}")
        a("s_waitcnt lgkmcnt(0)")
        pairs = ((OB4, MLB2, 196, 197), (OA4, MLA2, 198, 199))
        for (o4, ml, Mx, sc) in pairs: a(f"v_max_f32_dpp v{Mx}, v{ml}, v{ml} row_ror:8 {FULL}")
        for n in (4, 2):
            for (o4, ml, Mx, sc) in pairs: a(f"v_max_f32_dpp v{Mx}, v{Mx}, v{Mx} row_ror:{n} {FULL}")
        for (o4, ml, Mx, sc) in pairs: a(f"v_sub_f32 v{sc}, v{ml}, v{Mx}")
        for (o4, ml, Mx, sc) in pairs: a(f"v_mul_f32 v{sc}, s{sL2E}, v{sc}")
        for (o4, ml, Mx, sc) in pairs: a(f"v_exp_f32 v{sc}, v{sc}")
        for (o4, ml, Mx, sc) in pairs:
            a(f"v_mul_f32 v{ml+1}, v{ml+1}, v{sc}")
        for (o4, ml, Mx, sc) in pairs:
            for r in range(4): a(f"v_mul_f32 v{o4+r}, v{o4+r}, v{sc}")
        for n in (8, 4, 2):
            for (o4, ml, Mx, sc) in pairs:
                for r in [ml + 1] + [o4 + k for k in range(4)]:
                    a(f"v_add_f32_dpp v{r}, v{r}, v{r} row_ror:{n} {FULL}")
        for (o4, ml, Mx, sc) in pairs: a(f"v_rcp_f32 v{sc}, v{ml+1}")
        for (o4, ml, Mx, sc) in reversed(pairs):
            for r in range(4): a(f"v_mul_f32 v{o4+r}, v{o4+r}, v{sc}")
        a(f"ds_write_b128 v{vO1}, {vr(OA4,4)} offset:{L_OT}")
        a(f"ds_write_b128 v{vO1}, {vr(OB4,4)} offset:{L_OT+128}")
        XO = 200
        a("s_waitcnt lgkmcnt(0)")
        a(f"ds_read_b32 v{XO}, v{vO2} offset:{L_OT}")
        a(f"ds_read_b32 v{XO+1}, v{vO2} offset:{L_OT+16}")
        a(f"ds_read_b32 v{XO+2}, v{vO2} offset:{L_OT+128}")
        a(f"ds_read_b32 v{XO+3}, v{vO2} offset:{L_OT+144}")
        a("s_waitcnt lgkmcnt(0)")
        for k in range(4): a(f"v_cvt_pk_bf16_f32 v{XO+k}, v{XO+k}, v{XO+k}")

    YA, YB = DD, DD + 8
    for k, (wo, acc) in enumerate(((WOA, YA), (WOB, YB), (WOA + 4, YA), (WOB + 4, YB))):
        win_from(XO + (0, 2, 1, 3)[k])
        pv(wo, acc, acc + 4, k < 2)
    for k in range(8): a(f"v_mul_f32 v{YA+k}, v{YA+k}, v{GG}")
    for k in range(8): a(f"v_fma_f32 v{YA+k}, v{YB+k}, v{GG+1}, v{YA+k}")
    a(f"ds_write_b128 v{vW1}, {vr(YA,4)} offset:{L_YP}")
    a(f"ds_write_b128 v{vW1}, {vr(YA+4,4)} offset:{L_YP+1024}")
    a("s_waitcnt lgkmcnt(0)")
    a("s_barrier")
    stamp(7)
    a(f"s_cmp_lt_u32 s{sV}, 2")
    a(f"s_cbranch_scc0 {N}_noy")
    for vv in range(8):
        a(f"ds_read_b128 {vr(AC+4*vv,4)}, v{vLA_} offset:{L_YP + vv*2048}")
    for step in (4, 2, 1):
        if step == 4: a("s_waitcnt lgkmcnt(0)")
        for g in range(step):
            for r in range(4):
                a(f"v_add_f32 v{AC+4*g+r}, v{AC+4*g+r}, v{AC+4*(g+step)+r}")
    a(f"buffer_store_dwordx4 {vr(AC,4)}, v{vGy}, {sr(R_WS,4)}, 0 offen offset:{O_Y} sc1")
    stamp(8)
    a(f"s_branch {N}_done")
    a.label(f"{N}_noy")
    a(f"s_cmp_eq_u32 s{sV}, 2")
    a(f"s_cbranch_scc0 {N}_done")
    F = 180
    a(f"s_mov_b32 s{sSpin}, 0")
    a.label(f"{N}_p2")
    a(f"buffer_load_dwordx4 {vr(F,4)}, v{vF}, {sr(R_WS,4)}, 0 offen offset:{O_Y} sc1")
    a(f"buffer_load_dwordx4 {vr(F+4,4)}, v{vF}, {sr(R_WS,4)}, 0 offen offset:{O_Y+16} sc1")
    a("s_waitcnt vmcnt(0)")
    a(f"v_max3_u32 v{vT}, v{F}, v{F+1}, v{F+2}")
    a(f"v_max3_u32 v{vT+1}, v{F+3}, v{F+4}, v{F+5}")
    a(f"v_max3_u32 v{vT}, v{vT}, v{F+6}, v{F+7}")
    a(f"v_max_u32 v{vT}, v{vT}, v{vT+1}")
    a(f"v_cmp_eq_u32 vcc, -1, v{vT}")
    a("s_cmp_eq_u64 vcc, 0")
    a(f"s_cbranch_scc1 {N}_p2d")
    spin_tail(f"{N}_p2", f"{N}_p2d", cfg.sleep2)
    a.label(f"{N}_p2d")
    stamp(9)
    for k in range(4): a(f"v_permlane32_swap_b32 v{F+2*k}, v{F+2*k+1}")
    for k in range(4): a(f"v_add_f32 v{F+2*k}, v{F+2*k}, v{F+2*k+1}")
    a(f"v_permlane16_swap_b32 v{F}, v{F+2}")
    a(f"v_permlane16_swap_b32 v{F+4}, v{F+6}")
    a(f"v_add_f32 v{F}, v{F}, v{F+2}")
    a(f"v_add_f32 v{F+4}, v{F+4}, v{F+6}")
    for n in (8, 4, 2, 1):
        a(f"v_add_f32_dpp v{F}, v{F}, v{F} row_ror:{n} {FULL}")
        a(f"v_add_f32_dpp v{F+4}, v{F+4}, v{F+4} row_ror:{n} {FULL}")
    a(f"v_cvt_pk_bf16_f32 v{F}, v{F}, v{F+4}")
    a("s_mov_b32 exec_lo, 0x00010001")
    a("s_mov_b32 exec_hi, 0x00010001")
    osc = 'sc1' if cfg.outsc1 else ''
    a(f"buffer_store_short v{F}, v{vOut}, {sr(R_OUT,4)}, 0 offen {osc}")
    a(f"buffer_store_short_d16_hi v{F}, v{vOut}, {sr(R_OUT,4)}, 0 offen offset:8 {osc}")
    a("s_mov_b64 exec, -1")
    stamp(10)
    a(f"s_branch {N}_done")

    a.label(f"{N}_job0")
    a(f"s_add_u32 s{sT0}, s{sW}, 0")
    a(f"s_and_b32 s{sT0}, s{sT0}, 7")
    a(f"s_cmp_eq_u32 s{sV}, s{sT0}")
    a(f"s_cbranch_scc0 {N}_jobret")
    S = TMP
    if cfg.lateqb:
        a(f"s_mov_b32 s{sSpin}, 0")
        a(f"v_mov_b32 v{vT}, {L_FLAG}")
        a.label(f"{N}_qbw")
        a(f"ds_read_b32 v{vT+1}, v{vT} offset:4")
        a("s_waitcnt lgkmcnt(0)")
        a(f"v_readfirstlane_b32 s{sT0}, v{vT+1}")
        a(f"s_cmp_ge_u32 s{sT0}, 8")
        a(f"s_cbranch_scc1 {N}_qbwd")
        spin_tail(f"{N}_qbw", f"{N}_qbwd")
        a.label(f"{N}_qbwd")
    for vv in range(8):
        for m in range(2):
            a(f"ds_read_b128 {vr(S + 8*vv + 4*m, 4)}, v{vVoff} offset:{L_QBP + vv*2048 + m*1024}")
    a(f"s_lshl_b32 s{sT0}, s{sW}, 11")
    a(f"s_add_u32 s{sT0}, s{sT0}, {WS_QB}")
    a(f"v_lshlrev_b32 v{vT}, 5, v{vC}")
    a(f"v_lshl_add_u32 v{vT}, v{vRow}, 9, v{vT}")
    a(f"v_add_u32 v{vT}, s{sT0}, v{vT}")
    a("s_waitcnt lgkmcnt(0)")
    tree_sum8(S)
    a(f"buffer_store_dwordx4 {vr(S,4)}, v{vT}, {sr(R_WS,4)}, 0 offen sc1")
    a(f"buffer_store_dwordx4 {vr(S+4,4)}, v{vT}, {sr(R_WS,4)}, 0 offen offset:16 sc1")
    for k in range(4): a(f"v_mov_b32 v{T0+2+k}, -1")
    a(f"v_add_u32 v{vT}, s{sSlot}, v{vVoff}")
    for k in range(4):
        a(f"buffer_store_dwordx4 {vr(T0+2,4)}, v{vT}, {sr(R_WS,4)}, 0 offen offset:{k*1024} sc1")
    a(f"v_add_u32 v{vT}, 4096, v{vT}")
    a(f"buffer_store_dwordx4 {vr(T0+2,4)}, v{vT}, {sr(R_WS,4)}, 0 offen sc1")
    a(f"v_mov_b32 v{vT+1}, 0")
    a(f"v_lshlrev_b32 v{T0}, 8, v{vLane}")
    a("s_mov_b64 exec, 0xff")
    pair_half(sT0, sT1)
    a(f"s_cmp_eq_u32 s{sT1}, 0")
    a(f"s_cbranch_scc0 {N}_noclrA")
    a(f"s_lshl_b32 s{sT0}, s{sT0}, 11")
    a(f"s_add_u32 s{sT0}, s{sT0}, {WS_CNT + 65536}")
    a(f"v_add_u32 v{vT}, s{sT0}, v{T0}")
    a(f"buffer_store_dword v{vT+1}, v{vT}, {sr(R_WS,4)}, 0 offen sc1")
    a.label(f"{N}_noclrA")
    a(f"s_and_b32 s{sT0}, s{sW}, 7")
    a(f"s_cmp_eq_u32 s{sT0}, 0")
    a(f"s_cbranch_scc0 {N}_noclrB")
    a(f"s_lshl_b32 s{sT0}, s{sW}, 8")
    a(f"s_add_u32 s{sT0}, s{sT0}, {WS_CNT}")
    a(f"v_add_u32 v{vT}, s{sT0}, v{T0}")
    a(f"buffer_store_dword v{vT+1}, v{vT}, {sr(R_WS,4)}, 0 offen sc1")
    a.label(f"{N}_noclrB")
    a("s_waitcnt vmcnt(0)")
    a("s_mov_b64 exec, 1")
    a(f"v_mov_b32 v{vT}, 0")
    a(f"global_atomic_add v{vT}, v{vOne}, s[{P_DBG}:{P_DBG+1}] sc1")
    a("s_mov_b64 exec, -1")
    stamp(19)
    a("s_nop 7")
    a(f"s_branch {N}_jobret")
    a.label(f"{N}_job2")
    a(f"s_add_u32 s{sT0}, s{sW}, 3")
    a(f"s_and_b32 s{sT0}, s{sT0}, 7")
    a(f"s_cmp_eq_u32 s{sV}, s{sT0}")
    a(f"s_cbranch_scc0 {N}_jobret")
    GX, GW = 164, 180
    a(f"v_lshlrev_b32 v{vT+1}, 6, v{vC}")
    a(f"v_lshl_add_u32 v{vT}, v{vRow}, 10, v{vT+1}")
    for k in range(4):
        a(f"buffer_load_dwordx4 {vr(GX+4*k,4)}, v{vT}, {sr(R_X,4)}, 0 offen offset:{16*k}")
        a(f"buffer_load_dwordx4 {vr(GW+4*k,4)}, v{vT+1}, {sr(R_GW,4)}, 0 offen offset:{16*k}")
    a("s_waitcnt vmcnt(0)")
    z, t0, t1, t2, t3 = 196, 197, 198, 199, 200
    a(f"v_mov_b32 v{z}, 0")
    for k in range(16):
        a(f"v_lshlrev_b32 v{t0}, 16, v{GX+k}")
        a(f"v_lshlrev_b32 v{t1}, 16, v{GW+k}")
        a(f"v_and_b32 v{t2}, 0xffff0000, v{GX+k}")
        a(f"v_and_b32 v{t3}, 0xffff0000, v{GW+k}")
        a(f"v_mul_f32 v{t0}, v{t0}, v{t1}")
        a(f"v_mul_f32 v{t2}, v{t2}, v{t3}")
        a(f"v_cvt_pk_bf16_f32 v{t0}, v{t0}, v{t2}")
        a(f"v_lshlrev_b32 v{t1}, 16, v{t0}")
        a(f"v_and_b32 v{t0}, 0xffff0000, v{t0}")
        a(f"v_add_f32 v{z}, v{z}, v{t1}")
        a(f"v_add_f32 v{z}, v{z}, v{t0}")
    for n in (8, 4, 2, 1):
        a(f"v_add_f32_dpp v{z}, v{z}, v{z} row_ror:{n} {FULL}")
    a(f"v_cvt_pk_bf16_f32 v{z}, v{z}, v{z}")
    a(f"v_and_b32 v{z}, 0xffff0000, v{z}")
    a(f"v_mul_f32 v{z}, s{sNL2E}, v{z}")
    a(f"v_exp_f32 v{z}, v{z}")
    a(f"v_add_f32 v{z}, 1.0, v{z}")
    a(f"v_rcp_f32 v{z}, v{z}")
    g0 = 198
    a(f"v_cvt_pk_bf16_f32 v{g0}, v{z}, v{z}")
    a(f"v_and_b32 v{g0}, 0xffff0000, v{g0}")
    a(f"v_sub_f32 v{g0+1}, 1.0, v{g0}")
    a(f"v_cvt_pk_bf16_f32 v{g0+1}, v{g0+1}, v{g0+1}")
    a(f"v_and_b32 v{g0+1}, 0xffff0000, v{g0+1}")
    a(f"v_lshlrev_b32 v{vT}, 3, v{vRow}")
    a(f"ds_write_b64 v{vT}, {vr(g0,2)} offset:{L_G}")
    a("s_waitcnt lgkmcnt(0)")
    a("s_nop 7")
    a(f"s_branch {N}_jobret")
    a.label(f"{N}_job8")
    a(f"s_add_u32 s{sT0}, s{sW}, 5")
    a(f"s_and_b32 s{sT0}, s{sT0}, 7")
    a(f"s_cmp_eq_u32 s{sV}, s{sT0}")
    a(f"s_cbranch_scc0 {N}_jobret")
    a(f"s_mov_b32 s{sSpin}, 0")
    a(f"v_mov_b32 v{vT}, 0")
    a.label(f"{N}_c0")
    a(f"global_load_dword v{vT+1}, v{vT}, s[{P_DBG}:{P_DBG+1}] sc1")
    a("s_waitcnt vmcnt(0)")
    a(f"v_readfirstlane_b32 s{sT0}, v{vT+1}")
    a(f"s_cmp_ge_u32 s{sT0}, 256")
    a(f"s_cbranch_scc1 {N}_c0d")
    a(f"s_add_u32 s{sSpin}, s{sSpin}, 1")
    a(f"s_cmp_gt_u32 s{sSpin}, {cfg.SPIN}")
    a(f"s_cbranch_scc1 {N}_c0d")
    a("s_sleep 16")
    a(f"s_branch {N}_c0")
    a.label(f"{N}_c0d")
    stamp(15)
    a(f"s_lshr_b32 s{sT0}, s{sW}, 3")
    a(f"s_and_b32 s{sT0}, s{sT0}, 7")
    a(f"s_lshl_b32 s{sT0}, s{sT0}, 16")
    a(f"s_lshl_b32 s{sT1}, s{sB}, 9")
    a(f"s_add_u32 s{sT0}, s{sT0}, s{sT1}")
    a(f"s_add_u32 s{sT0}, s{sT0}, {WS_QB}")
    a(f"v_lshlrev_b32 v{vT}, 14, v{vBank}")
    a(f"v_lshl_add_u32 v{vT}, v{vRow}, 7, v{vT}")
    a(f"v_lshl_add_u32 v{vT}, v{vQ}, 5, v{vT}")
    a(f"v_add_u32 v{vT}, s{sT0}, v{vT}")
    S2 = TMP
    for sl in range(8):
        a(f"s_mov_b32 s{sT1}, {(sl // 2) * 4096}")
        for m in range(2):
            a(f"buffer_load_dwordx4 {vr(S2 + 8*sl + 4*m, 4)}, v{vT}, {sr(R_WS,4)}, s{sT1} offen offset:{(sl % 2) * 2048 + 16*m} sc1")
    a("s_waitcnt vmcnt(0)")
    tree_sum8(S2)
    for k in range(4):
        a(f"v_cvt_pk_bf16_f32 v{S2+8+k}, v{S2+2*k}, v{S2+2*k+1}")
    a(f"ds_write_b128 v{vVoff}, {vr(S2+8,4)} offset:{L_QBOP}")
    a("s_waitcnt lgkmcnt(0)")
    a(f"v_mov_b32 v{vT}, {L_FLAG}")
    a(f"ds_write_b32 v{vT}, v{vOne}")
    a("s_waitcnt lgkmcnt(0)")
    stamp(18)
    a("s_nop 7")
    a(f"s_branch {N}_jobret")

    a.label(f"{N}_done")
    a("s_endpgm")
    body_text, npad = a.text()
    kd = f"""
.section .rodata,"a"
.p2align 6
.amdhsa_kernel {N}
  .amdhsa_next_free_vgpr {NVGPR}
  .amdhsa_next_free_sgpr 102
  .amdhsa_accum_offset {NVGPR}
  .amdhsa_group_segment_fixed_size 0
  .amdhsa_kernarg_size 112
  .amdhsa_user_sgpr_count 2
  .amdhsa_user_sgpr_kernarg_segment_ptr 1
  .amdhsa_system_sgpr_workgroup_id_x 1
  .amdhsa_float_denorm_mode_32 3
.end_amdhsa_kernel
"""
    return body_text, kd, npad

HEADER = open('gated_mix__mha_block_cached__gqa_block_cached__decode.s.ref').read().split('; Override launch geometry')[0]

def full_file(cfg):
    body, kd, npad = build(cfg)
    s = HEADER
    s += f"; @launch grid=(256,1,1) block=(512,1,1) lds={LDS_BYTES}\n"
    s += '.amdgcn_target "amdgcn-amd-amdhsa--gfx950"\n.text\n'
    s += body + "\n" + kd
    return s, npad

if __name__ == '__main__':
    cfg = Cfg()
    out = sys.argv[1]
    for kv in sys.argv[2:]:
        k, v = kv.split('=', 1)
        cur = getattr(cfg, k)
        setattr(cfg, k, type(cur)(int(v)) if isinstance(cur, (bool, int)) else v)
    s, npad = full_file(cfg)
    open(out, 'w').write(s)
    print('written', out, len(s), 'bytes; nop pads', npad)
```

```python
import sys, os
sys.path.insert(0, os.path.dirname(os.path.abspath(__file__)))
from asmlib import Asm

KNAME = 'gated_mix__mha_block_cached__gqa_block_cached__decode_kernel'

class Cfg:
    D = 3
    NS = 32
    I0 = 8
    diag = False
    SPIN = 200000
    name = KNAME
    kflags = 'nt'
    vflags = 'nt'
    wqflags = 'nt'
    dynA = True
    J_GATHER = 6
    tlog = False
    dummy_atomic = 0
    sclaim = True
    CA = 2
    fast = 0
    outsc1 = False
    pre1 = 16
    slowm = 0
    slowT = 38
    dfast = False
    DV = 0
    noclear = False
    b521 = True
    stopc = 20
    pre2 = 22
    pipe1 = False
    pipe2 = False
    defer = False
    lateqb = False
    bar0 = False
    rot = True
    bstride = 8
    fastv = True
    sleep1 = 8
    sleep2 = 4
    tail2 = False
    PX = 1
    ileave = False
    xorid = 0

sW, sV = 2, 3
P_X, P_KA, P_VA, P_WQA, P_WOA, P_BX, P_KB, P_VB = 4, 6, 8, 10, 12, 14, 16, 18
P_WQB, P_WOB, P_GW, P_OUT = 20, 22, 24, 26
P_DBG, P_WS = 28, 30
R_IK, R_IV = 4, 8
sMrg, sMl0, sS2 = 12, 14, 16
sPhase, sLim, sBase, sKc, sSpare, sBst = 18, 19, 20, 21, 22, 23
sK0, sK1, sK2 = 24, 25, 26
sClaim, sCnt, sCntB = 83, 84, 101
sCPh, sChk = 22, 100
sN2 = 27; sNt = 99
sRem, sStride = 0, 1
R_KA, R_VA, R_KB, R_VB = 32, 36, 40, 44
R_WQA, R_WQB, R_WOA, R_WOB = 48, 52, 56, 60
R_X, R_GW, R_WS, R_OUT = 64, 68, 72, 76
sB = 80
sOff = 81
sJ = 82
sT0, sT1, sT2, sT3 = 85, 86, 87, 88
sBbase = 89
sScale, sL2E, sNL2E = 90, 91, 92
sSpin = 93
sSlot = 94
sIdx = 95
sSelLo, sSelHi = 96, 97
sStamp = 98

vLane = 0
vKoff, vVoff, vKcur, vVcur = 1, 2, 3, 4
vMask0, vMask1 = 5, 6
vCnt, vOne, vClaim = 7, 8, 9
vRow, vBank, vQ, vC = 10, 11, 12, 13
vT = 14
RING = 16
QOP = 80
QB = 84
ACC = 88
ACCA = 96
vM, vL, vMA, vLA = 104, 105, 106, 107
DD = 108
Y = 124
PP = 128
WIN = 132
vAl, vAT, vNM, vMn = 138, 139, 140, 141
T0 = 142
WOA = 148
WOB = 156
TMP = 164
vW1, vW2, vRA, vML, vG, vGM, vBo, vBm, vAo, vAm, vS2r, vR1, vR2, vO1, vO2, vLA_, vGy, vF, vOut, vCntB, vSpare = range(228, 249)
NVGPR = 256

L_QBOP = 0
L_MLB, L_MLA = 1024, 1280
L_OT = 1536
L_G = 3584
L_FLAG = 3648
L_QA, L_QBP = 4096, 20480
L_BM, L_AM = 36864, 53248
L_YP = L_QA
L_G1B, L_G1A, L_G1MB, L_G1MA = L_QBP, L_QBP + 8192, L_QBP + 10240, L_QBP + 10496
LDS_BYTES = 69632

O_Y, O_OB, O_OA, O_MLB, O_MLA = 0, 2048, 4096, 4608, 4640
WS_QB = 2 << 20
WS_CNT = 3 << 20
WS_STAMP = (3 << 20) + (512 << 10)
WS_BYTES = 8 << 20
WS_TLOG = 4 << 20
sLog = 27

def vr(a, n): return f"v[{a}:{a+n-1}]"
def sr(a, n): return f"s[{a}:{a+n-1}]"
def kslot(st, u): return RING + 32 * st + 4 * u
def vslot(st, u): return RING + 32 * st + 16 + 4 * u
MFMA = 'v_mfma_f32_16x16x32_bf16'
FULL = 'row_mask:0xf bank_mask:0xf'

def build(cfg):
    a = Asm()
    N = cfg.name
    D = cfg.D
    NS = cfg.NS
    NAD = 512 - 16 * NS
    NADT = 64 - 2 * NS
    def stamp(i):
        if not cfg.diag: return
        a(f"s_memrealtime s[{sStamp}:{sStamp+1}]")
        a("s_waitcnt lgkmcnt(0)")
        a(f"v_mov_b32 v{vT}, s{sStamp}")
        a(f"s_lshl_b32 s{sT3}, s{sW}, 3")
        a(f"s_add_u32 s{sT3}, s{sT3}, s{sV}")
        a(f"s_lshl_b32 s{sT3}, s{sT3}, 7")
        a(f"s_add_u32 s{sT3}, s{sT3}, {WS_STAMP + 4*i}")
        a(f"v_mov_b32 v{vT+1}, s{sT3}")
        a(f"buffer_store_dword v{vT}, v{vT+1}, {sr(R_WS,4)}, 0 offen")

    def tlog():
        if not cfg.tlog: return
        a(f"s_memrealtime s[{sStamp}:{sStamp+1}]")
        a("s_waitcnt lgkmcnt(0)")
        a(f"v_mov_b32 v{vT}, s{sStamp}")
        a(f"v_mov_b32 v{vT+1}, s{sLog}")
        a("s_mov_b64 exec, 1")
        a(f"buffer_store_dword v{vT}, v{vT+1}, {sr(R_WS,4)}, 0 offen")
        a("s_mov_b64 exec, -1")
        a(f"s_add_u32 s{sLog}, s{sLog}, 4")

    def srd(r, p, size):
        a(f"s_mov_b32 s{r}, s{p}")
        a(f"s_and_b32 s{r+1}, s{p+1}, 0xffff")
        a(f"s_mov_b32 s{r+2}, {hex(size)}")
        a(f"s_mov_b32 s{r+3}, 0x20000")

    def pv(data, acc0, acc1, first):
        c0 = '0' if first else vr(acc0, 4)
        c1 = '0' if first else vr(acc1, 4)
        a(f"{MFMA} {vr(acc0,4)}, {vr(WIN+2,4)}, {vr(data,4)}, {c0}")
        a(f"{MFMA} {vr(acc1,4)}, {vr(WIN,4)}, {vr(data,4)}, {c1}")

    def win_from(pp):
        a(f"v_and_b32 v{WIN+2}, v{pp}, v{vMask0}")
        a(f"v_and_b32 v{WIN+3}, v{pp}, v{vMask1}")

    def xrow(op, r, t):
        a(f"v_mov_b32 v{t}, v{r}")
        a(f"v_permlane16_swap_b32 v{r}, v{t}")
        a(f"{op} v{r}, v{r}, v{t}")
        a(f"v_mov_b32 v{t}, v{r}")
        a(f"v_permlane32_swap_b32 v{r}, v{t}")
        a(f"{op} v{r}, v{r}, v{t}")

    def spin_tail(lab_loop, lab_done, slp=2):
        a(f"s_add_u32 s{sSpin}, s{sSpin}, 1")
        a(f"s_cmp_gt_u32 s{sSpin}, {cfg.SPIN}")
        a(f"s_cbranch_scc1 {lab_done}")
        if slp: a(f"s_sleep {slp}")
        a(f"s_branch {lab_loop}")

    def pair_half(sp, sh):
        if cfg.PX == 1:
            a(f"s_lshr_b32 s{sp}, s{sW}, 1")
            a(f"s_and_b32 s{sh}, s{sW}, 1")
        else:
            a(f"s_and_b32 s{sp}, s{sW}, 7")
            a(f"s_lshr_b32 s{sh}, s{sp}, 2")
            a(f"s_mul_i32 s{sh}, s{sh}, 5")
            a(f"s_xor_b32 s{sp}, s{sp}, s{sh}")
            a(f"s_lshr_b32 s{sh}, s{sW}, 3")
            a(f"s_lshl_b32 s{sh}, s{sh}, 2")
            a(f"s_add_u32 s{sp}, s{sp}, s{sh}")
            a(f"s_lshr_b32 s{sh}, s{sW}, 2")
            a(f"s_and_b32 s{sh}, s{sh}, 1")

    def tree_sum8(base):
        for step in (4, 2, 1):
            for g in range(step):
                for k in range(8):
                    a(f"v_add_f32 v{base+8*g+k}, v{base+8*g+k}, v{base+8*(g+step)+k}")

    def kv_load(st, isV, u, rk=R_KA, rv=R_VA):
        slot = vslot(st, u) if isV else kslot(st, u)
        r = rv if isV else rk
        va = vVcur if isV else vKcur
        fl = cfg.vflags if isV else cfg.kflags
        a(f"buffer_load_dwordx4 {vr(slot,4)}, v{va}, {sr(r,4)}, 0 offen offset:{u*1024} {fl}")

    a(f".globl {N}")
    a(".p2align 8")
    a(f".type {N},@function")
    a.label(N)
    a(f"s_cmp_ge_u32 s{sW}, 256")
    a(f"s_cbranch_scc1 {N}_done")
    if cfg.xorid: a(f"s_xor_b32 s{sW}, s{sW}, {cfg.xorid}")
    if cfg.diag: a("s_memrealtime s[100:101]")
    a(f"s_load_dwordx16 s[4:19], s[0:1], 0")
    a(f"s_load_dwordx8 s[20:27], s[0:1], 64")
    a(f"s_load_dwordx4 s[28:31], s[0:1], 96")
    a(f"v_lshrrev_b32 v1, 6, v0")
    a(f"v_and_b32 v{vLane}, 63, v0")
    a(f"v_readfirstlane_b32 s{sV}, v1")
    a(f"v_lshrrev_b32 v{vRow}, 4, v{vLane}")
    a(f"v_lshrrev_b32 v{vBank}, 2, v{vLane}")
    a(f"v_and_b32 v{vBank}, 3, v{vBank}")
    a(f"v_and_b32 v{vQ}, 3, v{vLane}")
    a(f"v_and_b32 v{vC}, 15, v{vLane}")
    WQA, WQB, XA, XB = 164, 228, 236, 244
    vWa, vWb = T0, T0 + 1
    a(f"v_lshlrev_b32 v{vT+1}, 10, v{vBank}")
    a(f"s_lshl_b32 s{sT0}, s{sV}, 7")
    a(f"v_lshl_add_u32 v{vT}, v{vRow}, 5, v{vT+1}")
    a(f"v_add_u32 v{vT}, s{sT0}, v{vT}")
    a(f"s_and_b32 s{sT1}, s{sW}, 7")
    a(f"s_lshl_b32 s{sT2}, s{sT1}, 7")
    a(f"s_lshl_b32 s{sT3}, s{sV}, 4")
    a(f"s_add_u32 s{sT2}, s{sT2}, s{sT3}")
    a(f"v_lshl_add_u32 v{vT+1}, v{vRow}, 2, v{vT+1}")
    a(f"v_add_u32 v{vT+1}, s{sT2}, v{vT+1}")
    a(f"v_lshlrev_b32 v{vWa}, 4, v{vC}")
    a(f"v_lshl_add_u32 v{vWb}, v{vRow}, 14, v{vWa}")
    a(f"v_lshl_add_u32 v{vWa}, v{vRow}, 17, v{vWa}")
    pair_half(sT0, sT2)
    a(f"s_and_b32 s{sT0}, s{sT0}, 31")
    a(f"s_lshl_b32 s{sT0}, s{sT0}, 8")
    a(f"s_lshl_b32 s{sT2}, s{sV}, 19")
    a(f"s_add_u32 s{sT0}, s{sT0}, s{sT2}")
    a(f"s_lshl_b32 s{sT1}, s{sT1}, 3")
    a(f"s_add_u32 s{sT1}, s{sT1}, s{sV}")
    a(f"s_lshl_b32 s{sT1}, s{sT1}, 16")
    a(f"s_lshr_b32 s{sT2}, s{sW}, 3")
    a(f"s_lshl_b32 s{sT2}, s{sT2}, 8")
    a(f"s_add_u32 s{sT1}, s{sT1}, s{sT2}")
    a("s_waitcnt lgkmcnt(0)")
    srd(R_X, P_X, 4096)
    srd(R_WQA, P_WQA, 4 << 20)
    if cfg.rot:
        a(f"s_lshr_b32 s{sB}, s{sW}, 6")
        for kk in range(4):
            a(f"s_add_u32 s{sT2}, s{sB}, {kk}")
            a(f"s_and_b32 s{sT2}, s{sT2}, 3")
            a(f"s_lshl_b32 s{sT2}, s{sT2}, 3")
            a(f"buffer_load_dwordx2 {vr(XA+2*kk,2)}, v{vT}, {sr(R_X,4)}, s{sT2} offen")
        a(f"buffer_load_dword v{XB}, v{vT+1}, {sr(R_X,4)}, 0 offen")
        for kk in range(4):
            a(f"s_add_u32 s{sT2}, s{sB}, {kk}")
            a(f"s_and_b32 s{sT2}, s{sT2}, 3")
            a(f"s_lshl_b32 s{sT2}, s{sT2}, 15")
            a(f"s_add_u32 s{sT2}, s{sT2}, s{sT0}")
            for q in range(4):
                i = 4 * kk + q
                a(f"buffer_load_dwordx4 {vr(WQA+4*i,4)}, v{vWa}, {sr(R_WQA,4)}, s{sT2} offen {cfg.wqflags}")
                if q < 3: a(f"s_add_u32 s{sT2}, s{sT2}, 8192")
    else:
        a(f"buffer_load_dwordx4 {vr(XA,4)}, v{vT}, {sr(R_X,4)}, 0 offen")
        a(f"buffer_load_dwordx4 {vr(XA+4,4)}, v{vT}, {sr(R_X,4)}, 0 offen offset:16")
        a(f"buffer_load_dword v{XB}, v{vT+1}, {sr(R_X,4)}, 0 offen")
        for i in range(16):
            a(f"buffer_load_dwordx4 {vr(WQA+4*i,4)}, v{vWa}, {sr(R_WQA,4)}, s{sT0} offen {cfg.wqflags}")
            if i < 15: a(f"s_add_u32 s{sT0}, s{sT0}, 8192")
    srd(R_WQB, P_WQB, 4 << 20)
    if cfg.bar0: a("s_barrier")
    sWb0, sWb1, sWo0, sWo1 = 82, 83, 93, 95
    vWo = T0 + 3
    a(f"s_mov_b32 s{sWb0}, s{sT1}")
    a(f"s_add_u32 s{sWb1}, s{sT1}, 8192")
    srd(R_WOA, P_WOA, 4 << 20)
    srd(R_WOB, P_WOB, 4 << 20)
    a(f"s_and_b32 s{sT0}, s{sW}, 7")
    a(f"s_lshl_b32 s{sT0}, s{sT0}, 2")
    a(f"s_lshr_b32 s{sT1}, s{sW}, 3")
    a(f"s_and_b32 s{sT1}, s{sT1}, 3")
    a(f"s_add_u32 s{sT0}, s{sT0}, s{sT1}")
    a(f"s_lshl_b32 s{sT0}, s{sT0}, 4")
    a(f"s_lshr_b32 s{sT1}, s{sW}, 5")
    a(f"s_and_b32 s{sT1}, s{sT1}, 1")
    a(f"s_lshl_b32 s{sT1}, s{sT1}, 3")
    a(f"s_add_u32 s{sT0}, s{sT0}, s{sT1}")
    a(f"s_add_u32 s{sT0}, s{sT0}, s{sV}")
    a(f"s_lshl_b32 s{sT0}, s{sT0}, 13")
    a(f"s_lshr_b32 s{sT1}, s{sW}, 6")
    a(f"s_lshl_b32 s{sT1}, s{sT1}, 8")
    a(f"s_add_u32 s{sWo0}, s{sT0}, s{sT1}")
    a(f"s_add_u32 s{sWo1}, s{sWo0}, 4096")
    a(f"v_lshlrev_b32 v{vWo}, 4, v{vC}")
    a(f"v_lshl_add_u32 v{vWo}, v{vRow}, 10, v{vWo}")
    deferred = [
        lambda: a(f"buffer_load_dwordx4 {vr(WQB,4)}, v{vWb}, {sr(R_WQB,4)}, s{sWb0} offen nt"),
        lambda: a(f"buffer_load_dwordx4 {vr(WQB+4,4)}, v{vWb}, {sr(R_WQB,4)}, s{sWb1} offen nt"),
        lambda: a(f"buffer_load_dwordx4 {vr(WOA,4)}, v{vWo}, {sr(R_WOA,4)}, s{sWo0} offen nt"),
        lambda: a(f"buffer_load_dwordx4 {vr(WOA+4,4)}, v{vWo}, {sr(R_WOA,4)}, s{sWo1} offen nt"),
        lambda: a(f"buffer_load_dwordx4 {vr(WOB,4)}, v{vWo}, {sr(R_WOB,4)}, s{sWo0} offen nt"),
        lambda: a(f"buffer_load_dwordx4 {vr(WOB+4,4)}, v{vWo}, {sr(R_WOB,4)}, s{sWo1} offen nt"),
    ]
    if not cfg.defer:
        for f in deferred: f()
        deferred = []
    a(f"v_lshlrev_b32 v{vKoff}, 8, v{vBank}")
    a(f"v_lshl_add_u32 v{vKoff}, v{vRow}, 6, v{vKoff}")
    a(f"v_lshl_add_u32 v{vKoff}, v{vQ}, 4, v{vKoff}")
    a(f"v_lshlrev_b32 v{vVoff}, 4, v{vLane}")
    a(f"v_and_b32 v{vT}, 1, v{vQ}")
    a(f"v_cmp_eq_u32 vcc, 0, v{vT}")
    a(f"v_mov_b32 v{vT}, 0xffff0000")
    a(f"v_mov_b32 v{vT+1}, 0x0000ffff")
    a(f"v_cndmask_b32 v{vT}, v{vT}, v{vT+1}, vcc")
    a(f"v_cmp_gt_u32 vcc, 2, v{vQ}")
    a(f"v_cndmask_b32 v{vMask0}, 0, v{vT}, vcc")
    a(f"v_cndmask_b32 v{vMask1}, v{vT}, 0, vcc")
    for k in (0, 1, 4, 5): a(f"v_mov_b32 v{WIN+k}, 0")
    a(f"v_mov_b32 v{vOne}, 1")
    a(f"s_mov_b32 s{sScale}, 0x3db504f3")
    a(f"s_mov_b32 s{sL2E}, 0x3fb8aa3b")
    a(f"s_mov_b32 s{sNL2E}, 0xbfb8aa3b")
    a(f"s_mov_b32 s{sSelLo}, 0x01000100")
    a(f"s_mov_b32 s{sSelHi}, 0x03020302")
    a(f"s_lshr_b32 s{sB}, s{sW}, 6")
    a(f"s_lshl_b32 s{sSlot}, s{sW}, 13")
    srd(R_KA, P_KA, 256 << 20)
    srd(R_VA, P_VA, 256 << 20)
    srd(R_KB, P_KB, 64 << 20)
    srd(R_VB, P_VB, 64 << 20)
    srd(R_GW, P_GW, 1024)
    srd(R_OUT, P_OUT, 4096)
    srd(R_WS, P_WS, WS_BYTES)
    if cfg.tlog:
        a(f"s_lshl_b32 s{sLog}, s{sW}, 3")
        a(f"s_add_u32 s{sLog}, s{sLog}, s{sV}")
        a(f"s_lshl_b32 s{sLog}, s{sLog}, 8")
        a(f"s_add_u32 s{sLog}, s{sLog}, {WS_TLOG}")
    for k in range(3):
        a(f"s_mov_b32 s{R_IK+k}, s{R_KA+k}")
        a(f"s_mov_b32 s{R_IV+k}, s{R_VA+k}")
    a(f"s_mov_b32 s{R_IK+3}, 0x20000")
    a(f"s_mov_b32 s{R_IV+3}, 0x20000")
    pair_half(sT0, sT1)
    a(f"s_lshl_b32 s{sBase}, s{sT0}, 21")
    a(f"s_mul_i32 s{sT1}, s{sT1}, {32768 if cfg.ileave else NS*32768}")
    a(f"s_add_u32 s{sOff}, s{sBase}, s{sT1}")
    a(f"s_lshl_b32 s{sT1}, s{sV}, 12")
    a(f"s_add_u32 s{sOff}, s{sOff}, s{sT1}")
    a(f"s_add_u32 s{sBase}, s{sBase}, s{sT1}")
    a(f"s_add_u32 s{sBase}, s{sBase}, {2*NS*32768}")
    a(f"s_lshl_b32 s{sT0}, s{sT0}, 3")
    a(f"s_add_u32 s{sT0}, s{sT0}, s{sV}")
    a(f"s_lshl_b32 s{sT0}, s{sT0}, 8")
    a(f"s_add_u32 s{sT0}, s{sT0}, {WS_CNT + 65536}")
    a(f"v_mov_b32 v{vCnt}, s{sT0}")
    a(f"s_mov_b32 s{sCnt}, s{sT0}")
    a(f"s_lshr_b32 s{sBbase}, s{sW}, 3")
    a(f"s_lshl_b32 s{sBbase}, s{sBbase}, 21")
    a(f"s_add_u32 s{sBbase}, s{sBbase}, s{sT1}")
    a(f"v_add_u32 v{vKcur}, s{sOff}, v{vKoff}")
    a(f"v_add_u32 v{vVcur}, s{sOff}, v{vVoff}")
    a(f"v_mov_b32 v{vT}, {L_FLAG}")
    a(f"v_mov_b32 v{vT+1}, 0")
    a(f"ds_write_b32 v{vT}, v{vT+1}")
    a(f"ds_write_b32 v{vT}, v{vT+1} offset:4")
    if cfg.diag:
        stamp(12)
        a(f"s_sub_u32 s{sT3}, s{sT3}, 4")
        a(f"v_mov_b32 v{vT+1}, s{sT3}")
        a(f"v_mov_b32 v{vT}, s100")
        a(f"buffer_store_dword v{vT}, v{vT+1}, {sr(R_WS,4)}, 0 offen")
    QA0, QA1 = DD, DD + 4
    QB0, QB1 = DD + 8, DD + 12
    kvseq = [(0, 0, u) for u in range(4)] + [(0, 1, u) for u in range(4)]
    queue = list(deferred) + [(lambda q=q: kv_load(*q)) for q in kvseq]
    base_younger = 0 if deferred else 6
    nq = 0
    for i in range(16):
        a(f"s_waitcnt vmcnt({(15 - i) + base_younger + nq})")
        if i == 0: stamp(13)
        sel = sSelLo if i % 2 == 0 else sSelHi
        x = XA + i // 2
        a(f"v_perm_b32 v{PP}, v{x}, v{x}, s{sel}")
        win_from(PP)
        pv(WQA + 4 * i, QA0, QA1, i == 0)
        if i >= cfg.I0 and nq < len(queue):
            queue[nq](); nq += 1
    nkv = max(0, nq - len(deferred))
    assert cfg.lateqb or not cfg.defer
    def qb_partial(younger):
        for i in range(2):
            a(f"s_waitcnt vmcnt({(1 - i) + younger})")
            sel = sSelLo if i == 0 else sSelHi
            a(f"v_perm_b32 v{PP}, v{XB}, v{XB}, s{sel}")
            win_from(PP)
            pv(WQB + 4 * i, QB0, QB1, i == 0)
    if not cfg.lateqb: qb_partial(4 + nkv)
    a(f"s_lshl_b32 s{sT0}, s{sV}, 11")
    a(f"v_add_u32 v{T0+2}, s{sT0}, v{vVoff}")
    a(f"ds_write_b128 v{T0+2}, {vr(QA0,4)} offset:{L_QA}")
    a(f"ds_write_b128 v{T0+2}, {vr(QA1,4)} offset:{L_QA+1024}")
    if not cfg.lateqb:
        a(f"ds_write_b128 v{T0+2}, {vr(QB0,4)} offset:{L_QBP}")
        a(f"ds_write_b128 v{T0+2}, {vr(QB1,4)} offset:{L_QBP+1024}")
    while nq < len(queue):
        queue[nq](); nq += 1
    a("s_waitcnt lgkmcnt(0)")
    stamp(14)
    a("s_barrier")
    a(f"s_lshl_b32 s{sT0}, s{sB}, 8")
    a(f"v_lshlrev_b32 v{vT}, 6, v{vRow}")
    a(f"v_lshl_add_u32 v{vT}, v{vQ}, 4, v{vT}")
    a(f"v_add_u32 v{vT}, s{sT0}, v{vT}")
    S = TMP
    for vv in range(8):
        for m in range(2):
            a(f"ds_read_b128 {vr(S + 8*vv + 4*m, 4)}, v{vT} offset:{L_QA + vv*2048 + m*1024}")
    a(f"s_add_u32 s{sOff}, s{sOff}, {65536 if cfg.ileave else 32768}")
    a(f"v_add_u32 v{vKcur}, s{sOff}, v{vKoff}")
    a(f"v_add_u32 v{vVcur}, s{sOff}, v{vVoff}")
    a(f"s_add_u32 s{sOff}, s{sOff}, {65536 if cfg.ileave else 32768}")
    a("s_waitcnt lgkmcnt(0)")
    tree_sum8(S)
    for k in range(4):
        a(f"v_cvt_pk_bf16_f32 v{QOP+k}, v{S+2*k}, v{S+2*k+1}")
    for isV in (0, 1):
        for u in range(4):
            a(f"s_waitcnt vmcnt({D-1})"); kv_load(1, isV, u)
    if cfg.lateqb:
        qb_partial(4 + 16)
        a(f"s_lshl_b32 s{sT0}, s{sV}, 11")
        a(f"v_add_u32 v{T0+2}, s{sT0}, v{vVoff}")
        a(f"ds_write_b128 v{T0+2}, {vr(QB0,4)} offset:{L_QBP}")
        a(f"ds_write_b128 v{T0+2}, {vr(QB1,4)} offset:{L_QBP+1024}")
        a(f"v_mov_b32 v{vT}, {L_FLAG}")
        a("s_waitcnt lgkmcnt(0)")
        a("s_mov_b64 exec, 1")
        a(f"ds_add_u32 v{vT}, v{vOne} offset:4")
        a("s_mov_b64 exec, -1")
    a(f"s_lshl_b32 s{sT0}, s{sV}, 11")
    a(f"v_add_u32 v{vW1}, s{sT0}, v{vVoff}")
    for k in range(8): a(f"v_mov_b32 v{ACC+k}, 0")
    a(f"v_mov_b32 v{vM}, 0xff7fffff")
    a(f"v_mov_b32 v{vL}, 0")
    stamp(1)

    uid = [0]
    def issue(st, isV, u, rk, rv):
        Dw = (cfg.DV if (isV and cfg.DV) else D)
        if rk == R_IK and (cfg.fast or cfg.dfast):
            uid[0] += 1
            a(f"s_cbranch_vccnz {N}_f{uid[0]}")
            a(f"s_waitcnt vmcnt({Dw-1})")
            a.label(f"{N}_f{uid[0]}")
        else:
            a(f"s_waitcnt vmcnt({Dw-1})")
        kv_load(st, isV, u, rk, rv)

    def diag(u0, u1):
        for c in range(4):
            for u in (u0, u1):
                d = DD + 4 * u + c
                qp = f"quad_perm:[{c},{c},{c},{c}]"
                if c == 0: a(f"v_mov_b32_dpp v{Y+u}, v{d} {qp} {FULL}")
                else:      a(f"v_add_f32_dpp v{Y+u}, v{d}, v{Y+u} {qp} {FULL}")

    def round4():
        a(f"v_cvt_pk_bf16_f32 v{T0}, v{Y}, v{Y+1}")
        a(f"v_cvt_pk_bf16_f32 v{T0+1}, v{Y+2}, v{Y+3}")
        a(f"v_lshlrev_b32 v{Y}, 16, v{T0}")
        a(f"v_and_b32 v{Y+1}, 0xffff0000, v{T0}")
        a(f"v_lshlrev_b32 v{Y+2}, 16, v{T0+1}")
        a(f"v_and_b32 v{Y+3}, 0xffff0000, v{T0+1}")

    def body(st, rk, rv):
        a("s_waitcnt vmcnt(12)")
        for u in range(4):
            a(f"{MFMA} {vr(DD+4*u,4)}, {vr(kslot(st,u),4)}, {vr(QOP,4)}, 0")
        issue(st, 0, 0, rk, rv)
        diag(0, 1)
        issue(st, 0, 1, rk, rv)
        diag(2, 3)
        round4()
        issue(st, 0, 2, rk, rv)
        for u in range(4): a(f"v_mul_f32 v{Y+u}, s{sScale}, v{Y+u}")
        round4()
        a(f"v_max3_f32 v{T0+2}, v{Y}, v{Y+1}, v{Y+2}")
        a(f"v_max_f32 v{T0+2}, v{T0+2}, v{Y+3}")
        xrow('v_max_f32', T0 + 2, T0 + 3)
        a(f"v_max_f32 v{vMn}, v{vM}, v{T0+2}")
        issue(st, 0, 3, rk, rv)
        a(f"v_sub_f32 v{vAl}, v{vM}, v{vMn}")
        a(f"v_mul_f32 v{vNM}, s{sNL2E}, v{vMn}")
        a(f"v_mul_f32 v{vAl}, s{sL2E}, v{vAl}")
        for u in range(4): a(f"v_fma_f32 v{Y+u}, v{Y+u}, s{sL2E}, v{vNM}")
        a(f"v_exp_f32 v{vAl}, v{vAl}")
        for u in range(4): a(f"v_exp_f32 v{Y+u}, v{Y+u}")
        a(f"v_mov_b32 v{vM}, v{vMn}")
        for h in range(4):
            a(f"v_mov_b32_dpp v{vAT}, v{vAl} row_newbcast:{4*h} row_mask:{hex(1<<h)} bank_mask:0xf")
        a(f"v_fma_f32 v{vL}, v{vL}, v{vAl}, v{Y}")
        for u in range(4): a(f"v_cvt_pk_bf16_f32 v{PP+u}, v{Y+u}, v{Y+u}")
        a(f"v_add_f32 v{T0}, v{Y+1}, v{Y+2}")
        a(f"v_add_f32 v{vL}, v{vL}, v{Y+3}")
        a(f"v_add_f32 v{vL}, v{vL}, v{T0}")
        for k in range(8): a(f"v_mul_f32 v{ACC+k}, v{ACC+k}, v{vAT}")
        a("s_waitcnt vmcnt(12)")
        for u in range(4):
            win_from(PP + u)
            pv(vslot(st, u), ACC, ACC + 4, False)
            issue(st, 1, u, rk, rv)
        tlog()

    STEP = 65536 if cfg.ileave else 32768
    def top_static():
        a(f"v_add_u32 v{vKcur}, s{sOff}, v{vKoff}")
        a(f"v_add_u32 v{vVcur}, s{sOff}, v{vVoff}")
        a(f"s_add_u32 s{sOff}, s{sOff}, {STEP}")
        if cfg.dummy_atomic == 3:
            a(f"s_add_u32 s{sT0}, s{sCnt}, 128")
            a(f"s_mov_b32 s{sT1}, 1")
            a(f"s_atomic_add s{sT1}, s[{P_WS}:{P_WS+1}], s{sT0}")
        elif cfg.dummy_atomic == 2:
            a("s_waitcnt lgkmcnt(0)")
            a(f"s_add_u32 s{sT0}, s{sCnt}, 128")
            sclaim(sClaim, sT0)
        elif cfg.dummy_atomic:
            a("s_mov_b64 exec, 1")
            a(f"v_mov_b32 v{T0+5}, 1")
            a(f"v_add_u32 v{T0+4}, 128, v{vCnt}")
            a(f"buffer_atomic_add v{T0+5}, v{T0+4}, {sr(R_WS,4)}, 0 offen sc0 sc1")
            a("s_mov_b64 exec, -1")

    def sclaim(sdst, soff):
        a(f"s_mov_b32 s{sdst}, 1")
        a(f"s_atomic_add s{sdst}, s[{P_WS}:{P_WS+1}], s{soff} glc")

    def claim(vdst, vaddr):
        a("s_mov_b64 exec, 1")
        a(f"v_mov_b32 v{vdst}, 1")
        a(f"buffer_atomic_add v{vdst}, v{vaddr}, {sr(R_WS,4)}, 0 offen sc0 sc1")
        a("s_mov_b64 exec, -1")

    def state_switch():
        a("s_nop 7")
        for k in range(8): a(f"v_mov_b32 v{ACCA+k}, v{ACC+k}")
        a(f"v_mov_b32 v{vMA}, v{vM}")
        a(f"v_mov_b32 v{vLA}, v{vL}")
        for k in range(8): a(f"v_mov_b32 v{ACC+k}, 0")
        a(f"v_mov_b32 v{vM}, 0xff7fffff")
        a(f"v_mov_b32 v{vL}, 0")
        for k in range(4): a(f"v_mov_b32 v{QOP+k}, v{QB+k}")
        a(f"s_mov_b32 s{sBst}, 1")
        stamp(2)

    def top_dyn(st):
        lab = f"{N}_d{st}"
        a(f"s_cmp_eq_u32 s{sRem}, 0")
        a(f"s_cbranch_scc1 {lab}_new")
        a(f"s_add_u32 s{sIdx}, s{sIdx}, s{sStride}")
        a(f"s_sub_u32 s{sRem}, s{sRem}, 1")
        a(f"s_cmp_eq_u32 s{sChk}, 0")
        a(f"s_cbranch_scc0 {lab}_chk")
        a.label(f"{lab}_have")
        a(f"s_lshl_b32 s{sT0}, s{sIdx}, 15")
        a(f"s_add_u32 s{sT0}, s{sT0}, s{sBase}")
        a(f"s_mov_b32 s{sK2}, s{sKc}")
        a(f"s_max_u32 s{sKc}, s{sKc}, s{sPhase}")
        a(f"s_lshr_b32 s{sT1}, s{sPhase}, 1")
        if cfg.slowm: a(f"s_add_u32 s{sN2}, s{sN2}, 1")
        a(f"s_cmp_gt_u32 s{sT1}, s{sRem}")
        a(f"s_cbranch_scc0 {lab}_go2")
        if cfg.slowm:
            a(f"s_cmp_ge_u32 s{sClaim}, {32 - cfg.slowm}")
            a(f"s_cselect_b32 s{sT1}, s{sN2}, 64")
            a(f"s_cmp_lt_u32 s{sT1}, {cfg.slowT}")
            a(f"s_cbranch_scc1 {lab}_skip")
        NBV = 24 if cfg.b521 else 32
        if cfg.stopc < NBV:
            a(f"s_cmp_ge_u32 s{sClaim}, {cfg.stopc}")
            a(f"s_cbranch_scc1 {lab}_skip")
        sclaim(sClaim, sCntB)
        a.label(f"{lab}_go2")
        a(f"v_add_u32 v{vKcur}, s{sT0}, v{vKoff}")
        a(f"v_add_u32 v{vVcur}, s{sT0}, v{vVoff}")
        a(f"s_cmp_eq_u32 s{sK0}, 2")
        a(f"s_cbranch_scc1 {lab}_sw")
        a.label(f"{lab}_body")

    def top_dyn_cold(st):
        lab = f"{N}_d{st}"
        LIMA = NADT // cfg.CA
        a.label(f"{lab}_chk")
        a("s_waitcnt lgkmcnt(0)")
        a(f"s_mov_b32 s{sChk}, 0")
        a(f"s_cmp_lt_u32 s{sClaim}, {LIMA}")
        a(f"s_cbranch_scc1 {lab}_have")
        sclaim(sClaim, sCntB)
        a(f"s_mov_b32 s{sCPh}, 3")
        a(f"s_branch {lab}_have")
        a.label(f"{lab}_new")
        a("s_waitcnt lgkmcnt(0)")
        a(f"s_cmp_eq_u32 s{sCPh}, 1")
        a(f"s_cbranch_scc0 {lab}_B")
        a(f"s_cmp_lt_u32 s{sClaim}, {LIMA}")
        a(f"s_cbranch_scc0 {lab}_lateB")
        a(f"s_mul_i32 s{sIdx}, s{sClaim}, {cfg.CA}")
        a(f"s_mov_b32 s{sRem}, {cfg.CA - 1}")
        a(f"s_mov_b32 s{sChk}, 1")
        sclaim(sClaim, sCnt)
        a(f"s_branch {lab}_have")
        a.label(f"{lab}_lateB")
        sclaim(sClaim, sCntB)
        a(f"s_mov_b32 s{sCPh}, 3")
        a("s_waitcnt lgkmcnt(0)")
        a.label(f"{lab}_B")
        a(f"s_cmp_eq_u32 s{sPhase}, 1")
        a(f"s_cbranch_scc0 {lab}_B2")
        a(f"s_mov_b32 s{sPhase}, 3")
        a(f"s_mov_b32 s{sKc}, 2")
        a(f"s_mov_b32 s{sBase}, s{sBbase}")
        a(f"s_mov_b32 s{sStride}, {1 if cfg.b521 else cfg.bstride}")
        for k in range(3):
            a(f"s_mov_b32 s{R_IK+k}, s{R_KB+k}")
            a(f"s_mov_b32 s{R_IV+k}, s{R_VB+k}")
        a.label(f"{lab}_B2")
        if cfg.b521:
            NB = 24
            a(f"s_mul_i32 s{sIdx}, s{sClaim}, 5")
            a(f"s_mov_b32 s{sRem}, 4")
            a(f"s_cmp_lt_u32 s{sClaim}, 8")
            a(f"s_cbranch_scc1 {lab}_have")
            a(f"s_lshl_b32 s{sIdx}, s{sClaim}, 1")
            a(f"s_add_u32 s{sIdx}, s{sIdx}, 24")
            a(f"s_mov_b32 s{sRem}, 1")
            a(f"s_cmp_lt_u32 s{sClaim}, 16")
            a(f"s_cbranch_scc1 {lab}_have")
            a(f"s_add_u32 s{sIdx}, s{sClaim}, 40")
            a(f"s_mov_b32 s{sRem}, 0")
            a(f"s_cmp_lt_u32 s{sClaim}, 24")
            a(f"s_cbranch_scc1 {lab}_have")
        else:
            if cfg.bstride == 8: a(f"s_mov_b32 s{sIdx}, s{sClaim}")
            else: a(f"s_lshl_b32 s{sIdx}, s{sClaim}, 2")
            a(f"s_mov_b32 s{sRem}, 3")
            a(f"s_cmp_lt_u32 s{sClaim}, 8")
            a(f"s_cbranch_scc1 {lab}_have")
            if cfg.bstride == 8: a(f"s_add_u32 s{sIdx}, s{sClaim}, 24")
            else:
                a(f"s_lshl_b32 s{sIdx}, s{sClaim}, 1")
                a(f"s_add_u32 s{sIdx}, s{sIdx}, 16")
            a(f"s_mov_b32 s{sRem}, 1")
            a(f"s_cmp_lt_u32 s{sClaim}, 16")
            a(f"s_cbranch_scc1 {lab}_have")
            if cfg.fast and not cfg.fastv:
                a(f"s_cmp_ge_u32 s{sClaim}, {cfg.fast}")
                a(f"s_cselect_b64 vcc, -1, vcc")
            a(f"s_add_u32 s{sIdx}, s{sClaim}, 32")
            a(f"s_mov_b32 s{sRem}, 0")
            if cfg.fast and cfg.fastv:
                a(f"s_sub_u32 s{sT0}, s{sClaim}, {cfg.fast}")
                a(f"s_cmp_lt_u32 s{sT0}, {32 - cfg.fast}")
                a(f"s_cselect_b64 vcc, -1, vcc")
            a(f"s_cmp_lt_u32 s{sClaim}, 32")
            a(f"s_cbranch_scc1 {lab}_have")
        a(f"s_mov_b32 s{sT0}, 0x7f000000")
        a(f"s_mov_b32 s{sK2}, 0")
        if cfg.dfast: a("s_mov_b64 vcc, -1")
        a(f"s_branch {lab}_go2")
        if cfg.slowm or cfg.stopc < (24 if cfg.b521 else 32):
            a.label(f"{lab}_skip")
            a(f"s_mov_b32 s{sClaim}, 0x7fffffff")
            a(f"s_branch {lab}_go2")
        a.label(f"{lab}_sw")
        state_switch()
        a("s_nop 1")
        a(f"s_branch {lab}_body")

    assert NS % 2 == 0 and NS >= 10
    a(f"s_mov_b32 s{sJ}, 0")
    a.label(f"{N}_sloop")
    a(f"s_cmp_eq_u32 s{sJ}, {2 if cfg.lateqb else 0}")
    a(f"s_cbranch_scc1 {N}_job0")
    a(f"s_cmp_eq_u32 s{sJ}, {4 if cfg.lateqb else 2}")
    a(f"s_cbranch_scc1 {N}_job2")
    a(f"s_cmp_eq_u32 s{sJ}, {cfg.J_GATHER}")
    a(f"s_cbranch_scc1 {N}_job8")
    a.label(f"{N}_jobret")
    top_static(); body(0, R_KA, R_VA)
    top_static(); body(1, R_KA, R_VA)
    a(f"s_add_u32 s{sJ}, s{sJ}, 2")
    a(f"s_cmp_lt_u32 s{sJ}, {NS-4}")
    a(f"s_cbranch_scc1 {N}_sloop")
    a(f"s_lshl_b32 s{sT0}, s{sV}, 5")
    a(f"v_lshlrev_b32 v{vW2}, 3, v{vBank}")
    a(f"v_add_u32 v{vW2}, s{sT0}, v{vW2}")
    vTid, vI32, vHH = T0, T0 + 1, T0 + 2
    a(f"s_lshl_b32 s{sT0}, s{sV}, 6")
    a(f"v_add_u32 v{vTid}, s{sT0}, v{vLane}")
    a(f"v_and_b32 v{vI32}, 31, v{vTid}")
    a(f"v_lshrrev_b32 v{vHH}, 5, v{vTid}")
    a(f"v_and_b32 v{vHH}, 3, v{vHH}")
    a(f"v_and_b32 v{vT}, 1, v{vI32}")
    a(f"v_lshlrev_b32 v{vT}, 10, v{vT}")
    a(f"v_lshrrev_b32 v{vT+1}, 1, v{vI32}")
    a(f"v_lshl_add_u32 v{vT+1}, v{vHH}, 4, v{vT+1}")
    a(f"v_lshl_add_u32 v{vLA_}, v{vT+1}, 4, v{vT}")
    a(f"s_cmp_eq_u32 s{sV}, 2")
    for (sr_, va, vb) in ((sT0, L_AM, L_BM), (sT1, L_MLA, L_MLB), (sT2, O_OA, O_OB), (sT3, O_MLA, O_MLB)):
        a(f"s_mov_b32 s{sr_}, {vb}")
        a(f"s_cmov_b32 s{sr_}, {va}")
    a(f"s_cselect_b32 s{sMrg+1}, 0, -1")
    a(f"s_mov_b32 s{sMrg}, -1")
    a(f"v_add_u32 v{vRA}, s{sT0}, v{vLA_}")
    a(f"v_lshlrev_b32 v{vML}, 3, v{vHH}")
    a(f"v_add_u32 v{vGM}, s{sT3}, v{vML}")
    a(f"v_add_u32 v{vGM}, s{sSlot}, v{vGM}")
    a(f"v_add_u32 v{vML}, s{sT1}, v{vML}")
    a(f"v_lshlrev_b32 v{vGy}, 9, v{vHH}")
    a(f"v_lshl_add_u32 v{vGy}, v{vI32}, 4, v{vGy}")
    a(f"v_add_u32 v{vGy}, s{sSlot}, v{vGy}")
    a(f"v_add_u32 v{vG}, s{sT2}, v{vGy}")
    a(f"v_cmp_eq_u32 s[{sMl0}:{sMl0+1}], 0, v{vI32}")
    a(f"s_and_b64 s[{sMl0}:{sMl0+1}], s[{sMl0}:{sMl0+1}], s[{sMrg}:{sMrg+1}]")
    a(f"s_and_b32 s{sT0}, s{sW}, 7")
    a(f"s_lshr_b32 s{sT1}, s{sW}, 3")
    a(f"s_and_b32 s{sT1}, s{sT1}, 3")
    a(f"s_lshr_b32 s{sT3}, s{sW}, 5")
    a(f"s_and_b32 s{sT3}, s{sT3}, 1")
    a(f"s_lshl_b32 s{sT3}, s{sT3}, 8")
    a(f"s_lshl_b32 s{sT2}, s{sT0}, 3")
    a(f"s_add_u32 s{sT2}, s{sT2}, s{sV}")
    a(f"v_lshlrev_b32 v{vT}, 6, v{vRow}")
    a(f"v_add_u32 v{vBm}, s{sT2}, v{vT}")
    a(f"v_lshlrev_b32 v{vBm}, 13, v{vBm}")
    a(f"s_lshl_b32 s{sT2}, s{sT1}, 9")
    a(f"s_add_u32 s{sT2}, s{sT2}, s{sT3}")
    a(f"s_add_u32 s{sT2}, s{sT2}, {O_OB}")
    a(f"v_lshl_add_u32 v{vBo}, v{vC}, 4, v{vBm}")
    a(f"v_add_u32 v{vBo}, s{sT2}, v{vBo}")
    a(f"s_lshl_b32 s{sT2}, s{sT1}, 3")
    a(f"s_add_u32 s{sT2}, s{sT2}, {O_MLB}")
    a(f"v_add_u32 v{vBm}, s{sT2}, v{vBm}")
    if cfg.PX == 1:
        a(f"s_lshl_b32 s{sT2}, s{sT0}, 2")
        a(f"s_add_u32 s{sT2}, s{sT2}, s{sT1}")
        a(f"s_lshl_b32 s{sT2}, s{sT2}, 1")
        a(f"s_add_u32 s{sT2}, s{sT2}, s{sV}")
    else:
        a(f"s_and_b32 s{sT2}, s{sV}, 1")
        a(f"s_mul_i32 s{sT2}, s{sT2}, 5")
        a(f"s_xor_b32 s{sT2}, s{sT2}, s{sT1}")
        a(f"s_lshl_b32 s{sIdx}, s{sT0}, 3")
        a(f"s_add_u32 s{sT2}, s{sT2}, s{sIdx}")
    a(f"v_add_u32 v{vAm}, s{sT2}, v{vT}")
    a(f"v_lshlrev_b32 v{vAm}, 13, v{vAm}")
    a(f"s_add_u32 s{sT3}, s{sT3}, {O_OA}")
    a(f"v_lshl_add_u32 v{vAo}, v{vC}, 4, v{vAm}")
    a(f"v_add_u32 v{vAo}, s{sT3}, v{vAo}")
    a(f"v_add_u32 v{vAm}, {O_MLA}, v{vAm}")
    a(f"s_lshl_b32 s{sT2}, s{sV}, 5")
    a(f"v_lshlrev_b32 v{vS2r}, 3, v{vRow}")
    a(f"v_add_u32 v{vS2r}, s{sT2}, v{vS2r}")
    if cfg.tail2:
        a(f"v_lshlrev_b32 v{vR1}, 8, v{vBank}")
        a(f"v_lshl_add_u32 v{vR1}, v{vRow}, 2, v{vR1}")
        a(f"v_add_u32 v{vR1}, s{sT2}, v{vR1}")
        a(f"v_lshlrev_b32 v{vR2}, 3, v{vBank}")
        a(f"v_lshlrev_b32 v{vO1}, 3, v{vRow}")
    else:
        vS, vMm = T0, T0 + 1
        a(f"v_lshrrev_b32 v{vS}, 1, v{vLane}")
        a(f"v_and_b32 v{vS}, 7, v{vS}")
        a(f"v_and_b32 v{vMm}, 1, v{vLane}")
        a(f"v_lshlrev_b32 v{vR1}, 10, v{vS}")
        a(f"v_lshl_add_u32 v{vR1}, v{vRow}, 8, v{vR1}")
        a(f"v_lshl_add_u32 v{vR1}, v{vMm}, 4, v{vR1}")
        a(f"v_add_u32 v{vR1}, s{sT2}, v{vR1}")
        a(f"v_lshlrev_b32 v{vR2}, 5, v{vS}")
        a(f"v_lshl_add_u32 v{vR2}, v{vRow}, 3, v{vR2}")
        a(f"v_cmp_gt_u32 s[{sS2}:{sS2+1}], 2, v{vS}")
        a(f"s_lshl_b32 s{sT0}, s{sV}, 8")
        a(f"v_lshlrev_b32 v{vO1}, 5, v{vRow}")
        a(f"v_lshl_add_u32 v{vO1}, v{vMm}, 4, v{vO1}")
        a(f"v_add_u32 v{vO1}, s{sT0}, v{vO1}")
        a(f"v_lshlrev_b32 v{vO2}, 5, v{vBank}")
        a(f"v_lshl_add_u32 v{vO2}, v{vRow}, 2, v{vO2}")
        a(f"v_add_u32 v{vO2}, s{sT0}, v{vO2}")

    a(f"s_and_b32 s{sT0}, s{sW}, 7")
    a(f"s_lshr_b32 s{sT1}, s{sW}, 3")
    a(f"s_and_b32 s{sT1}, s{sT1}, 7")
    a(f"s_lshr_b32 s{sT2}, s{sT0}, 1")
    a(f"s_lshl_b32 s{sT2}, s{sT2}, 19")
    a(f"s_lshl_b32 s{sT3}, s{sB}, 9")
    a(f"s_add_u32 s{sT2}, s{sT2}, s{sT3}")
    a(f"s_and_b32 s{sT3}, s{sT0}, 1")
    a(f"s_lshl_b32 s{sT3}, s{sT3}, 8")
    a(f"s_add_u32 s{sT2}, s{sT2}, s{sT3}")
    a(f"s_lshl_b32 s{sT3}, s{sT1}, 5")
    a(f"s_add_u32 s{sT2}, s{sT2}, s{sT3}")
    a(f"v_lshlrev_b32 v{vF}, 13, v{vLane}")
    a(f"v_add_u32 v{vF}, s{sT2}, v{vF}")
    a(f"v_and_b32 v{vT}, 1, v{vRow}")
    a(f"v_lshlrev_b32 v{vT}, 1, v{vT}")
    a(f"v_lshrrev_b32 v{vT+1}, 1, v{vRow}")
    a(f"v_add_u32 v{vT}, v{vT}, v{vT+1}")
    a(f"v_lshlrev_b32 v{vT}, 1, v{vT}")
    a(f"s_lshl_b32 s{sT2}, s{sB}, 10")
    a(f"s_lshl_b32 s{sT0}, s{sT0}, 7")
    a(f"s_lshl_b32 s{sT1}, s{sT1}, 4")
    a(f"s_add_u32 s{sT2}, s{sT2}, s{sT0}")
    a(f"s_add_u32 s{sT2}, s{sT2}, s{sT1}")
    a(f"v_add_u32 v{vOut}, s{sT2}, v{vT}")
    a(f"s_and_b32 s{sT0}, s{sW}, 0xf8")
    a(f"s_add_u32 s{sT0}, s{sT0}, s{sV}")
    a(f"s_lshl_b32 s{sT0}, s{sT0}, 8")
    a(f"s_add_u32 s{sT0}, s{sT0}, {WS_CNT}")
    a(f"v_mov_b32 v{vCntB}, s{sT0}")
    a(f"s_mov_b32 s{sCntB}, s{sT0}")
    a(f"s_mov_b32 s{sSpin}, 0")
    a(f"v_mov_b32 v{vT}, {L_FLAG}")
    a.label(f"{N}_fl")
    a(f"ds_read_b32 v{vT+1}, v{vT}")
    a("s_waitcnt lgkmcnt(0)")
    a(f"v_readfirstlane_b32 s{sT0}, v{vT+1}")
    a(f"s_cmp_eq_u32 s{sT0}, 1")
    a(f"s_cbranch_scc1 {N}_fld")
    spin_tail(f"{N}_fl", f"{N}_fld")
    a.label(f"{N}_fld")
    a(f"ds_read_b128 {vr(QB,4)}, v{vVoff} offset:{L_QBOP}")
    a("s_waitcnt lgkmcnt(0)")
    top_static(); body(0, R_KA, R_VA)
    top_static(); sclaim(sClaim, sCnt if NADT else sCntB); body(1, R_KA, R_VA)
    a(f"s_mov_b32 s{sCPh}, {1 if NADT else 3}")
    a(f"s_mov_b32 s{sChk}, 0")
    if cfg.slowm: a(f"s_mov_b32 s{sN2}, {NS}")
    a(f"s_mov_b32 s{sPhase}, 1")
    a(f"s_mov_b32 s{sKc}, 1")
    a(f"s_mov_b32 s{sRem}, 0")
    a(f"s_mov_b32 s{sStride}, 1")
    a(f"s_mov_b32 s{sK0}, 1")
    a(f"s_mov_b32 s{sK1}, 1")
    a(f"s_mov_b32 s{sBst}, 0")
    a("s_mov_b64 vcc, 0")
    assert NADT % cfg.CA == 0 and cfg.CA >= 2
    a.label(f"{N}_dloop")
    for st in range(2):
        top_dyn(st); body(st, R_IK, R_IV)
        a(f"s_mov_b32 s{sK0}, s{sK1}")
        a(f"s_mov_b32 s{sK1}, s{sK2}")
        a(f"s_cmp_eq_u32 s{sK0}, 0")
        a(f"s_cbranch_scc1 {N}_dend")
    a(f"s_branch {N}_dloop")
    for st in range(2): top_dyn_cold(st)
    a.label(f"{N}_dend")
    a(f"s_cmp_eq_u32 s{sBst}, 0")
    a(f"s_cbranch_scc0 {N}_dend2")
    state_switch()
    a.label(f"{N}_dend2")
    a("s_nop 7")
    stamp(3)

    a(f"ds_write_b128 v{vW1}, {vr(ACC,4)} offset:{L_BM}")
    a(f"ds_write_b128 v{vW1}, {vr(ACC+4,4)} offset:{L_BM+1024}")
    a(f"ds_write_b128 v{vW1}, {vr(ACCA,4)} offset:{L_AM}")
    a(f"ds_write_b128 v{vW1}, {vr(ACCA+4,4)} offset:{L_AM+1024}")
    for perm in ('v_permlane16_swap_b32', 'v_permlane32_swap_b32'):
        a(f"v_mov_b32 v{T0}, v{vL}")
        a(f"v_mov_b32 v{T0+1}, v{vLA}")
        a(f"{perm} v{vL}, v{T0}")
        a(f"{perm} v{vLA}, v{T0+1}")
        a(f"v_add_f32 v{vL}, v{vL}, v{T0}")
        a(f"v_add_f32 v{vLA}, v{vLA}, v{T0+1}")
    a(f"ds_write_b64 v{vW2}, {vr(vM,2)} offset:{L_MLB}")
    a(f"ds_write_b64 v{vW2}, {vr(vMA,2)} offset:{L_MLA}")
    a("s_waitcnt lgkmcnt(0)")
    a("s_barrier")
    stamp(4)
    a(f"s_cmp_lt_u32 s{sV}, 3")
    a(f"s_cbranch_scc0 {N}_nomerge")
    a(f"s_mov_b64 exec, s[{sMrg}:{sMrg+1}]")
    MLr, AC = 172, 188
    for vv in range(8):
        a(f"ds_read_b64 {vr(MLr+2*vv,2)}, v{vML} offset:{vv*32}")
    for vv in range(8):
        a(f"ds_read_b128 {vr(AC+4*vv,4)}, v{vRA} offset:{vv*2048}")
    a("s_waitcnt lgkmcnt(8)")
    Ms = 220
    a(f"v_max3_f32 v{Ms}, v{MLr}, v{MLr+2}, v{MLr+4}")
    a(f"v_max3_f32 v{Ms+1}, v{MLr+6}, v{MLr+8}, v{MLr+10}")
    a(f"v_max3_f32 v{Ms}, v{Ms}, v{MLr+12}, v{MLr+14}")
    a(f"v_max_f32 v{Ms}, v{Ms}, v{Ms+1}")
    for vv in range(8): a(f"v_sub_f32 v{MLr+2*vv}, v{MLr+2*vv}, v{Ms}")
    for vv in range(8): a(f"v_mul_f32 v{MLr+2*vv}, s{sL2E}, v{MLr+2*vv}")
    for vv in range(8): a(f"v_exp_f32 v{MLr+2*vv}, v{MLr+2*vv}")
    a("s_waitcnt lgkmcnt(0)")
    O4 = 224
    for r in range(4): a(f"v_mul_f32 v{O4+r}, v{MLr}, v{AC+r}")
    for vv in range(1, 8):
        for r in range(4): a(f"v_fma_f32 v{O4+r}, v{MLr+2*vv}, v{AC+4*vv+r}, v{O4+r}")
    a(f"buffer_store_dwordx4 {vr(O4,4)}, v{vG}, {sr(R_WS,4)}, 0 offen sc1")
    a(f"v_mul_f32 v{Ms+1}, v{MLr}, v{MLr+1}")
    for vv in range(1, 8): a(f"v_fma_f32 v{Ms+1}, v{MLr+2*vv}, v{MLr+2*vv+1}, v{Ms+1}")
    a(f"s_mov_b64 exec, s[{sMl0}:{sMl0+1}]")
    a(f"buffer_store_dwordx2 {vr(Ms,2)}, v{vGM}, {sr(R_WS,4)}, 0 offen sc1")
    a("s_mov_b64 exec, -1")
    stamp(5)
    a("s_nop 7")
    a.label(f"{N}_nomerge")

    OB4, MLB2, OA4, MLA2 = 180, 184, 188, 192
    PB = RING
    def h1_loads(o):
        a(f"buffer_load_dwordx4 {vr(PB+o,4)}, v{vBo}, {sr(R_WS,4)}, 0 offen sc1")
        a(f"buffer_load_dwordx2 {vr(PB+4+o,2)}, v{vBm}, {sr(R_WS,4)}, 0 offen sc1")
        a(f"buffer_load_dwordx4 {vr(PB+8+o,4)}, v{vAo}, {sr(R_WS,4)}, 0 offen sc1")
        a(f"buffer_load_dwordx2 {vr(PB+12+o,2)}, v{vAm}, {sr(R_WS,4)}, 0 offen sc1")
    def h1_check(o, lab):
        a(f"v_max3_u32 v{vT}, v{PB+o}, v{PB+o+1}, v{PB+o+2}")
        a(f"v_max3_u32 v{vT+1}, v{PB+o+3}, v{PB+4+o}, v{PB+4+o+1}")
        a(f"v_max3_u32 v{vT}, v{vT}, v{PB+8+o}, v{PB+8+o+1}")
        a(f"v_max3_u32 v{vT+1}, v{vT+1}, v{PB+8+o+2}, v{PB+8+o+3}")
        a(f"v_max3_u32 v{vT}, v{vT}, v{PB+12+o}, v{PB+12+o+1}")
        a(f"v_max_u32 v{vT}, v{vT}, v{vT+1}")
        a(f"v_cmp_eq_u32 vcc, -1, v{vT}")
        a("s_cmp_eq_u64 vcc, 0")
        a(f"s_cbranch_scc1 {lab}")
    def h1_stage(o):
        a(f"ds_write_b128 v{T0}, {vr(PB+o,4)} offset:{L_G1B}")
        a(f"ds_write_b64 v{vS2r}, {vr(PB+4+o,2)} offset:{L_G1MB}")
        a(f"s_cmp_lt_u32 s{sV}, 2")
        a(f"s_cbranch_scc0 {N}_g1n")
        a(f"ds_write_b128 v{T0}, {vr(PB+8+o,4)} offset:{L_G1A}")
        a(f"ds_write_b64 v{vS2r}, {vr(PB+12+o,2)} offset:{L_G1MA}")
    a(f"s_lshl_b32 s{sT2}, s{sV}, 10")
    a(f"v_add_u32 v{T0}, s{sT2}, v{vVoff}")
    a(f"s_mov_b32 s{sSpin}, 0")
    if cfg.pipe1:
        a(f"s_cmp_lt_u32 s{sV}, 2")
        a(f"s_cbranch_scc1 {N}_h1a")
        a(f"v_mov_b32 v{vAo}, v{vBo}")
        a(f"v_mov_b32 v{vAm}, v{vBm}")
        a.label(f"{N}_h1a")
        O2 = 16
        h1_loads(0)
        a.label(f"{N}_p1")
        h1_loads(O2)
        a("s_waitcnt vmcnt(4)")
        h1_check(0, f"{N}_p1d0")
        h1_loads(0)
        a("s_waitcnt vmcnt(4)")
        h1_check(O2, f"{N}_p1d1")
        a(f"s_add_u32 s{sSpin}, s{sSpin}, 1")
        a(f"s_cmp_gt_u32 s{sSpin}, {cfg.SPIN}")
        a(f"s_cbranch_scc0 {N}_p1")
        a.label(f"{N}_p1d1")
        h1_stage(O2)
        a(f"s_branch {N}_g1n")
        a.label(f"{N}_p1d0")
        h1_stage(0)
    else:
        a("s_waitcnt vmcnt(0)")
        for k in range(4): a(f"v_mov_b32 v{PB+8+k}, 0")
        a(f"v_mov_b32 v{PB+12}, 0")
        a(f"v_mov_b32 v{PB+13}, 0")
        if cfg.pre1: a(f"s_sleep {cfg.pre1}")
        a.label(f"{N}_p1")
        a(f"buffer_load_dwordx4 {vr(PB,4)}, v{vBo}, {sr(R_WS,4)}, 0 offen sc1")
        a(f"buffer_load_dwordx2 {vr(PB+4,2)}, v{vBm}, {sr(R_WS,4)}, 0 offen sc1")
        a(f"s_cmp_lt_u32 s{sV}, 2")
        a(f"s_cbranch_scc0 {N}_p1n")
        a(f"buffer_load_dwordx4 {vr(PB+8,4)}, v{vAo}, {sr(R_WS,4)}, 0 offen sc1")
        a(f"buffer_load_dwordx2 {vr(PB+12,2)}, v{vAm}, {sr(R_WS,4)}, 0 offen sc1")
        a.label(f"{N}_p1n")
        a("s_waitcnt vmcnt(0)")
        h1_check(0, f"{N}_p1d")
        spin_tail(f"{N}_p1", f"{N}_p1d", cfg.sleep1)
        a.label(f"{N}_p1d")
        h1_stage(0)
    a.label(f"{N}_g1n")
    stamp(6)
    if not cfg.tail2:
        for k in range(4): a(f"v_mov_b32 v{OA4+k}, 0")
        a(f"v_mov_b32 v{MLA2}, 0xff7fffff")
        a(f"v_mov_b32 v{MLA2+1}, 0")
    a("s_waitcnt lgkmcnt(0)")
    a("s_barrier")
    XO = 200
    GG = 204
    if cfg.tail2:
        MB, VB = 164, 180
        MA, VA = 196, 206
        for sp in range(8):
            a(f"ds_read_b64 {vr(MB+2*sp,2)}, v{vR2} offset:{L_G1MB + 32*sp}")
        for sp in range(2):
            a(f"ds_read_b64 {vr(MA+2*sp,2)}, v{vR2} offset:{L_G1MA + 32*sp}")
        for sp in range(8):
            for m in range(2):
                a(f"ds_read_b32 v{VB+2*sp+m}, v{vR1} offset:{L_G1B + 1024*sp + 16*m}")
        for sp in range(2):
            for m in range(2):
                a(f"ds_read_b32 v{VA+2*sp+m}, v{vR1} offset:{L_G1A + 1024*sp + 16*m}")
        a(f"ds_read_b64 {vr(GG,2)}, v{vO1} offset:{L_G}")
        a("s_waitcnt lgkmcnt(0)")
        mxB, mxA, t1 = 210, 211, 212
        a(f"v_max3_f32 v{mxB}, v{MB}, v{MB+2}, v{MB+4}")
        a(f"v_max3_f32 v{t1}, v{MB+6}, v{MB+8}, v{MB+10}")
        a(f"v_max_f32 v{mxA}, v{MA}, v{MA+2}")
        a(f"v_max3_f32 v{mxB}, v{mxB}, v{MB+12}, v{MB+14}")
        a(f"v_max_f32 v{mxB}, v{mxB}, v{t1}")
        for sp in range(2): a(f"v_sub_f32 v{MA+2*sp}, v{MA+2*sp}, v{mxA}")
        for sp in range(8): a(f"v_sub_f32 v{MB+2*sp}, v{MB+2*sp}, v{mxB}")
        for sp in range(2): a(f"v_mul_f32 v{MA+2*sp}, s{sL2E}, v{MA+2*sp}")
        for sp in range(8): a(f"v_mul_f32 v{MB+2*sp}, s{sL2E}, v{MB+2*sp}")
        for sp in range(2): a(f"v_exp_f32 v{MA+2*sp}, v{MA+2*sp}")
        for sp in range(8): a(f"v_exp_f32 v{MB+2*sp}, v{MB+2*sp}")
        a(f"v_mul_f32 v{mxA}, v{MA}, v{MA+1}")
        a(f"v_mul_f32 v{XO}, v{MA}, v{VA}")
        a(f"v_mul_f32 v{XO+1}, v{MA}, v{VA+1}")
        a(f"v_mul_f32 v{mxB}, v{MB}, v{MB+1}")
        a(f"v_mul_f32 v{XO+2}, v{MB}, v{VB}")
        a(f"v_mul_f32 v{XO+3}, v{MB}, v{VB+1}")
        a(f"v_fma_f32 v{mxA}, v{MA+2}, v{MA+3}, v{mxA}")
        a(f"v_fma_f32 v{XO}, v{MA+2}, v{VA+2}, v{XO}")
        a(f"v_fma_f32 v{XO+1}, v{MA+2}, v{VA+3}, v{XO+1}")
        a(f"v_rcp_f32 v{mxA}, v{mxA}")
        for sp in range(1, 8):
            a(f"v_fma_f32 v{mxB}, v{MB+2*sp}, v{MB+2*sp+1}, v{mxB}")
            a(f"v_fma_f32 v{XO+2}, v{MB+2*sp}, v{VB+2*sp}, v{XO+2}")
            a(f"v_fma_f32 v{XO+3}, v{MB+2*sp}, v{VB+2*sp+1}, v{XO+3}")
        a(f"v_rcp_f32 v{mxB}, v{mxB}")
        a(f"v_mul_f32 v{XO}, v{XO}, v{mxA}")
        a(f"v_mul_f32 v{XO+1}, v{XO+1}, v{mxA}")
        a(f"v_mul_f32 v{XO+2}, v{XO+2}, v{mxB}")
        a(f"v_mul_f32 v{XO+3}, v{XO+3}, v{mxB}")
        for k in range(4): a(f"v_cvt_pk_bf16_f32 v{XO+k}, v{XO+k}, v{XO+k}")
    else:
        a(f"ds_read_b128 {vr(OB4,4)}, v{vR1} offset:{L_G1B}")
        a(f"ds_read_b64 {vr(MLB2,2)}, v{vR2} offset:{L_G1MB}")
        a(f"s_mov_b64 exec, s[{sS2}:{sS2+1}]")
        a(f"ds_read_b128 {vr(OA4,4)}, v{vR1} offset:{L_G1A}")
        a(f"ds_read_b64 {vr(MLA2,2)}, v{vR2} offset:{L_G1MA}")
        a("s_mov_b64 exec, -1")
        GG = 204
        a(f"v_lshlrev_b32 v{vT}, 3, v{vRow}")
        a(f"ds_read_b64 {vr(GG,2)}, v{vT} offset:{L_G}")
        a("s_waitcnt lgkmcnt(0)")
        pairs = ((OB4, MLB2, 196, 197), (OA4, MLA2, 198, 199))
        for (o4, ml, Mx, sc) in pairs: a(f"v_max_f32_dpp v{Mx}, v{ml}, v{ml} row_ror:8 {FULL}")
        for n in (4, 2):
            for (o4, ml, Mx, sc) in pairs: a(f"v_max_f32_dpp v{Mx}, v{Mx}, v{Mx} row_ror:{n} {FULL}")
        for (o4, ml, Mx, sc) in pairs: a(f"v_sub_f32 v{sc}, v{ml}, v{Mx}")
        for (o4, ml, Mx, sc) in pairs: a(f"v_mul_f32 v{sc}, s{sL2E}, v{sc}")
        for (o4, ml, Mx, sc) in pairs: a(f"v_exp_f32 v{sc}, v{sc}")
        for (o4, ml, Mx, sc) in pairs:
            a(f"v_mul_f32 v{ml+1}, v{ml+1}, v{sc}")
        for (o4, ml, Mx, sc) in pairs:
            for r in range(4): a(f"v_mul_f32 v{o4+r}, v{o4+r}, v{sc}")
        for n in (8, 4, 2):
            for (o4, ml, Mx, sc) in pairs:
                for r in [ml + 1] + [o4 + k for k in range(4)]:
                    a(f"v_add_f32_dpp v{r}, v{r}, v{r} row_ror:{n} {FULL}")
        for (o4, ml, Mx, sc) in pairs: a(f"v_rcp_f32 v{sc}, v{ml+1}")
        for (o4, ml, Mx, sc) in reversed(pairs):
            for r in range(4): a(f"v_mul_f32 v{o4+r}, v{o4+r}, v{sc}")
        a(f"ds_write_b128 v{vO1}, {vr(OA4,4)} offset:{L_OT}")
        a(f"ds_write_b128 v{vO1}, {vr(OB4,4)} offset:{L_OT+128}")
        XO = 200
        a("s_waitcnt lgkmcnt(0)")
        a(f"ds_read_b32 v{XO}, v{vO2} offset:{L_OT}")
        a(f"ds_read_b32 v{XO+1}, v{vO2} offset:{L_OT+16}")
        a(f"ds_read_b32 v{XO+2}, v{vO2} offset:{L_OT+128}")
        a(f"ds_read_b32 v{XO+3}, v{vO2} offset:{L_OT+144}")
        a("s_waitcnt lgkmcnt(0)")
        for k in range(4): a(f"v_cvt_pk_bf16_f32 v{XO+k}, v{XO+k}, v{XO+k}")

    YA, YB = DD, DD + 8
    for k, (wo, acc) in enumerate(((WOA, YA), (WOB, YB), (WOA + 4, YA), (WOB + 4, YB))):
        win_from(XO + (0, 2, 1, 3)[k])
        pv(wo, acc, acc + 4, k < 2)
    for k in range(8): a(f"v_mul_f32 v{YA+k}, v{YA+k}, v{GG}")
    for k in range(8): a(f"v_fma_f32 v{YA+k}, v{YB+k}, v{GG+1}, v{YA+k}")
    a(f"ds_write_b128 v{vW1}, {vr(YA,4)} offset:{L_YP}")
    a(f"ds_write_b128 v{vW1}, {vr(YA+4,4)} offset:{L_YP+1024}")
    a("s_waitcnt lgkmcnt(0)")
    a("s_barrier")
    stamp(7)
    a(f"s_cmp_lt_u32 s{sV}, 2")
    a(f"s_cbranch_scc0 {N}_noy")
    for vv in range(8):
        a(f"ds_read_b128 {vr(AC+4*vv,4)}, v{vLA_} offset:{L_YP + vv*2048}")
    for step in (4, 2, 1):
        if step == 4: a("s_waitcnt lgkmcnt(0)")
        for g in range(step):
            for r in range(4):
                a(f"v_add_f32 v{AC+4*g+r}, v{AC+4*g+r}, v{AC+4*(g+step)+r}")
    a(f"buffer_store_dwordx4 {vr(AC,4)}, v{vGy}, {sr(R_WS,4)}, 0 offen offset:{O_Y} sc1")
    stamp(8)
    a(f"s_branch {N}_done")
    a.label(f"{N}_noy")
    a(f"s_cmp_eq_u32 s{sV}, 2")
    a(f"s_cbranch_scc0 {N}_done")
    F = 180
    P2 = RING + 32
    def h2_loads(r):
        a(f"buffer_load_dwordx4 {vr(r,4)}, v{vF}, {sr(R_WS,4)}, 0 offen offset:{O_Y} sc1")
        a(f"buffer_load_dwordx4 {vr(r+4,4)}, v{vF}, {sr(R_WS,4)}, 0 offen offset:{O_Y+16} sc1")
    def h2_check(r, lab):
        a(f"v_max3_u32 v{vT}, v{r}, v{r+1}, v{r+2}")
        a(f"v_max3_u32 v{vT+1}, v{r+3}, v{r+4}, v{r+5}")
        a(f"v_max3_u32 v{vT}, v{vT}, v{r+6}, v{r+7}")
        a(f"v_max_u32 v{vT}, v{vT}, v{vT+1}")
        a(f"v_cmp_eq_u32 vcc, -1, v{vT}")
        a("s_cmp_eq_u64 vcc, 0")
        a(f"s_cbranch_scc1 {lab}")
    a(f"s_mov_b32 s{sSpin}, 0")
    if cfg.pipe2:
        h2_loads(P2)
        a.label(f"{N}_p2")
        h2_loads(P2 + 8)
        a("s_waitcnt vmcnt(2)")
        h2_check(P2, f"{N}_p2d0")
        h2_loads(P2)
        a("s_waitcnt vmcnt(2)")
        h2_check(P2 + 8, f"{N}_p2d1")
        a(f"s_add_u32 s{sSpin}, s{sSpin}, 1")
        a(f"s_cmp_gt_u32 s{sSpin}, {cfg.SPIN}")
        a(f"s_cbranch_scc0 {N}_p2")
        a.label(f"{N}_p2d1")
        for k in range(8): a(f"v_mov_b32 v{F+k}, v{P2+8+k}")
        a(f"s_branch {N}_p2d")
        a.label(f"{N}_p2d0")
        for k in range(8): a(f"v_mov_b32 v{F+k}, v{P2+k}")
        a.label(f"{N}_p2d")
    else:
        if cfg.pre2: a(f"s_sleep {cfg.pre2}")
        a.label(f"{N}_p2")
        h2_loads(F)
        a("s_waitcnt vmcnt(0)")
        h2_check(F, f"{N}_p2d")
        spin_tail(f"{N}_p2", f"{N}_p2d", cfg.sleep2)
        a.label(f"{N}_p2d")
    stamp(9)
    for k in range(4): a(f"v_permlane32_swap_b32 v{F+2*k}, v{F+2*k+1}")
    for k in range(4): a(f"v_add_f32 v{F+2*k}, v{F+2*k}, v{F+2*k+1}")
    a(f"v_permlane16_swap_b32 v{F}, v{F+2}")
    a(f"v_permlane16_swap_b32 v{F+4}, v{F+6}")
    a(f"v_add_f32 v{F}, v{F}, v{F+2}")
    a(f"v_add_f32 v{F+4}, v{F+4}, v{F+6}")
    for n in (8, 4, 2, 1):
        a(f"v_add_f32_dpp v{F}, v{F}, v{F} row_ror:{n} {FULL}")
        a(f"v_add_f32_dpp v{F+4}, v{F+4}, v{F+4} row_ror:{n} {FULL}")
    a(f"v_cvt_pk_bf16_f32 v{F}, v{F}, v{F+4}")
    a("s_mov_b32 exec_lo, 0x00010001")
    a("s_mov_b32 exec_hi, 0x00010001")
    osc = 'sc1' if cfg.outsc1 else ''
    a(f"buffer_store_short v{F}, v{vOut}, {sr(R_OUT,4)}, 0 offen {osc}")
    a(f"buffer_store_short_d16_hi v{F}, v{vOut}, {sr(R_OUT,4)}, 0 offen offset:8 {osc}")
    a("s_mov_b64 exec, -1")
    stamp(10)
    a(f"s_branch {N}_done")

    a.label(f"{N}_job0")
    a(f"s_add_u32 s{sT0}, s{sW}, 0")
    a(f"s_and_b32 s{sT0}, s{sT0}, 7")
    a(f"s_cmp_eq_u32 s{sV}, s{sT0}")
    a(f"s_cbranch_scc0 {N}_jobret")
    S = TMP
    if cfg.lateqb:
        a(f"s_mov_b32 s{sSpin}, 0")
        a(f"v_mov_b32 v{vT}, {L_FLAG}")
        a.label(f"{N}_qbw")
        a(f"ds_read_b32 v{vT+1}, v{vT} offset:4")
        a("s_waitcnt lgkmcnt(0)")
        a(f"v_readfirstlane_b32 s{sT0}, v{vT+1}")
        a(f"s_cmp_ge_u32 s{sT0}, 8")
        a(f"s_cbranch_scc1 {N}_qbwd")
        spin_tail(f"{N}_qbw", f"{N}_qbwd")
        a.label(f"{N}_qbwd")
    for vv in range(8):
        for m in range(2):
            a(f"ds_read_b128 {vr(S + 8*vv + 4*m, 4)}, v{vVoff} offset:{L_QBP + vv*2048 + m*1024}")
    a(f"s_lshl_b32 s{sT0}, s{sW}, 11")
    a(f"s_add_u32 s{sT0}, s{sT0}, {WS_QB}")
    a(f"v_lshlrev_b32 v{vT}, 5, v{vC}")
    a(f"v_lshl_add_u32 v{vT}, v{vRow}, 9, v{vT}")
    a(f"v_add_u32 v{vT}, s{sT0}, v{vT}")
    a("s_waitcnt lgkmcnt(0)")
    tree_sum8(S)
    a(f"buffer_store_dwordx4 {vr(S,4)}, v{vT}, {sr(R_WS,4)}, 0 offen sc1")
    a(f"buffer_store_dwordx4 {vr(S+4,4)}, v{vT}, {sr(R_WS,4)}, 0 offen offset:16 sc1")
    for k in range(4): a(f"v_mov_b32 v{T0+2+k}, -1")
    a(f"v_add_u32 v{vT}, s{sSlot}, v{vVoff}")
    if not cfg.noclear:
        for k in range(4):
            a(f"buffer_store_dwordx4 {vr(T0+2,4)}, v{vT}, {sr(R_WS,4)}, 0 offen offset:{k*1024} sc1")
        a(f"v_add_u32 v{vT}, 4096, v{vT}")
        a(f"buffer_store_dwordx4 {vr(T0+2,4)}, v{vT}, {sr(R_WS,4)}, 0 offen sc1")
    a(f"v_mov_b32 v{vT+1}, 0")
    a(f"v_lshlrev_b32 v{T0}, 8, v{vLane}")
    a("s_mov_b64 exec, 0xff")
    pair_half(sT0, sT1)
    a(f"s_cmp_eq_u32 s{sT1}, 0")
    a(f"s_cbranch_scc0 {N}_noclrA")
    a(f"s_lshl_b32 s{sT0}, s{sT0}, 11")
    a(f"s_add_u32 s{sT0}, s{sT0}, {WS_CNT + 65536}")
    a(f"v_add_u32 v{vT}, s{sT0}, v{T0}")
    a(f"buffer_store_dword v{vT+1}, v{vT}, {sr(R_WS,4)}, 0 offen sc1")
    a.label(f"{N}_noclrA")
    a(f"s_and_b32 s{sT0}, s{sW}, 7")
    a(f"s_cmp_eq_u32 s{sT0}, 0")
    a(f"s_cbranch_scc0 {N}_noclrB")
    a(f"s_lshl_b32 s{sT0}, s{sW}, 8")
    a(f"s_add_u32 s{sT0}, s{sT0}, {WS_CNT}")
    a(f"v_add_u32 v{vT}, s{sT0}, v{T0}")
    a(f"buffer_store_dword v{vT+1}, v{vT}, {sr(R_WS,4)}, 0 offen sc1")
    a.label(f"{N}_noclrB")
    a("s_waitcnt vmcnt(0)")
    a("s_mov_b64 exec, 1")
    a(f"v_mov_b32 v{vT}, 0")
    a(f"global_atomic_add v{vT}, v{vOne}, s[{P_DBG}:{P_DBG+1}] sc1")
    a("s_mov_b64 exec, -1")
    stamp(19)
    a("s_nop 7")
    a(f"s_branch {N}_jobret")
    a.label(f"{N}_job2")
    a(f"s_add_u32 s{sT0}, s{sW}, 3")
    a(f"s_and_b32 s{sT0}, s{sT0}, 7")
    a(f"s_cmp_eq_u32 s{sV}, s{sT0}")
    a(f"s_cbranch_scc0 {N}_jobret")
    GX, GW = 164, 180
    a(f"v_lshlrev_b32 v{vT+1}, 6, v{vC}")
    a(f"v_lshl_add_u32 v{vT}, v{vRow}, 10, v{vT+1}")
    for k in range(4):
        a(f"buffer_load_dwordx4 {vr(GX+4*k,4)}, v{vT}, {sr(R_X,4)}, 0 offen offset:{16*k}")
        a(f"buffer_load_dwordx4 {vr(GW+4*k,4)}, v{vT+1}, {sr(R_GW,4)}, 0 offen offset:{16*k}")
    a("s_waitcnt vmcnt(0)")
    z, t0, t1, t2, t3 = 196, 197, 198, 199, 200
    a(f"v_mov_b32 v{z}, 0")
    for k in range(16):
        a(f"v_lshlrev_b32 v{t0}, 16, v{GX+k}")
        a(f"v_lshlrev_b32 v{t1}, 16, v{GW+k}")
        a(f"v_and_b32 v{t2}, 0xffff0000, v{GX+k}")
        a(f"v_and_b32 v{t3}, 0xffff0000, v{GW+k}")
        a(f"v_mul_f32 v{t0}, v{t0}, v{t1}")
        a(f"v_mul_f32 v{t2}, v{t2}, v{t3}")
        a(f"v_cvt_pk_bf16_f32 v{t0}, v{t0}, v{t2}")
        a(f"v_lshlrev_b32 v{t1}, 16, v{t0}")
        a(f"v_and_b32 v{t0}, 0xffff0000, v{t0}")
        a(f"v_add_f32 v{z}, v{z}, v{t1}")
        a(f"v_add_f32 v{z}, v{z}, v{t0}")
    for n in (8, 4, 2, 1):
        a(f"v_add_f32_dpp v{z}, v{z}, v{z} row_ror:{n} {FULL}")
    a(f"v_cvt_pk_bf16_f32 v{z}, v{z}, v{z}")
    a(f"v_and_b32 v{z}, 0xffff0000, v{z}")
    a(f"v_mul_f32 v{z}, s{sNL2E}, v{z}")
    a(f"v_exp_f32 v{z}, v{z}")
    a(f"v_add_f32 v{z}, 1.0, v{z}")
    a(f"v_rcp_f32 v{z}, v{z}")
    g0 = 198
    a(f"v_cvt_pk_bf16_f32 v{g0}, v{z}, v{z}")
    a(f"v_and_b32 v{g0}, 0xffff0000, v{g0}")
    a(f"v_sub_f32 v{g0+1}, 1.0, v{g0}")
    a(f"v_cvt_pk_bf16_f32 v{g0+1}, v{g0+1}, v{g0+1}")
    a(f"v_and_b32 v{g0+1}, 0xffff0000, v{g0+1}")
    a(f"v_lshlrev_b32 v{vT}, 3, v{vRow}")
    a(f"ds_write_b64 v{vT}, {vr(g0,2)} offset:{L_G}")
    a("s_waitcnt lgkmcnt(0)")
    a("s_nop 7")
    a(f"s_branch {N}_jobret")
    a.label(f"{N}_job8")
    a(f"s_add_u32 s{sT0}, s{sW}, 5")
    a(f"s_and_b32 s{sT0}, s{sT0}, 7")
    a(f"s_cmp_eq_u32 s{sV}, s{sT0}")
    a(f"s_cbranch_scc0 {N}_jobret")
    a(f"s_mov_b32 s{sSpin}, 0")
    a(f"v_mov_b32 v{vT}, 0")
    a.label(f"{N}_c0")
    a(f"global_load_dword v{vT+1}, v{vT}, s[{P_DBG}:{P_DBG+1}] sc1")
    a("s_waitcnt vmcnt(0)")
    a(f"v_readfirstlane_b32 s{sT0}, v{vT+1}")
    a(f"s_cmp_ge_u32 s{sT0}, 256")
    a(f"s_cbranch_scc1 {N}_c0d")
    a(f"s_add_u32 s{sSpin}, s{sSpin}, 1")
    a(f"s_cmp_gt_u32 s{sSpin}, {cfg.SPIN}")
    a(f"s_cbranch_scc1 {N}_c0d")
    a("s_sleep 16")
    a(f"s_branch {N}_c0")
    a.label(f"{N}_c0d")
    stamp(15)
    a(f"s_lshr_b32 s{sT0}, s{sW}, 3")
    a(f"s_and_b32 s{sT0}, s{sT0}, 7")
    a(f"s_lshl_b32 s{sT0}, s{sT0}, 16")
    a(f"s_lshl_b32 s{sT1}, s{sB}, 9")
    a(f"s_add_u32 s{sT0}, s{sT0}, s{sT1}")
    a(f"s_add_u32 s{sT0}, s{sT0}, {WS_QB}")
    a(f"v_lshlrev_b32 v{vT}, 14, v{vBank}")
    a(f"v_lshl_add_u32 v{vT}, v{vRow}, 7, v{vT}")
    a(f"v_lshl_add_u32 v{vT}, v{vQ}, 5, v{vT}")
    a(f"v_add_u32 v{vT}, s{sT0}, v{vT}")
    S2 = TMP
    for sl in range(8):
        a(f"s_mov_b32 s{sT1}, {(sl // 2) * 4096}")
        for m in range(2):
            a(f"buffer_load_dwordx4 {vr(S2 + 8*sl + 4*m, 4)}, v{vT}, {sr(R_WS,4)}, s{sT1} offen offset:{(sl % 2) * 2048 + 16*m} sc1")
    a("s_waitcnt vmcnt(0)")
    tree_sum8(S2)
    for k in range(4):
        a(f"v_cvt_pk_bf16_f32 v{S2+8+k}, v{S2+2*k}, v{S2+2*k+1}")
    a(f"ds_write_b128 v{vVoff}, {vr(S2+8,4)} offset:{L_QBOP}")
    a("s_waitcnt lgkmcnt(0)")
    a(f"v_mov_b32 v{vT}, {L_FLAG}")
    a(f"ds_write_b32 v{vT}, v{vOne}")
    a("s_waitcnt lgkmcnt(0)")
    stamp(18)
    a("s_nop 7")
    a(f"s_branch {N}_jobret")

    a.label(f"{N}_done")
    a("s_endpgm")
    body_text, npad = a.text()
    kd = f"""
.section .rodata,"a"
.p2align 6
.amdhsa_kernel {N}
  .amdhsa_next_free_vgpr {NVGPR}
  .amdhsa_next_free_sgpr 102
  .amdhsa_accum_offset {NVGPR}
  .amdhsa_group_segment_fixed_size 0
  .amdhsa_kernarg_size 112
  .amdhsa_user_sgpr_count 2
  .amdhsa_user_sgpr_kernarg_segment_ptr 1
  .amdhsa_system_sgpr_workgroup_id_x 1
  .amdhsa_float_denorm_mode_32 3
.end_amdhsa_kernel
"""
    return body_text, kd, npad

HEADER = open('gated_mix__mha_block_cached__gqa_block_cached__decode.s.ref').read().split('; Override launch geometry')[0]

def full_file(cfg):
    body, kd, npad = build(cfg)
    s = HEADER
    s += f"; @launch grid=(256,1,1) block=(512,1,1) lds={LDS_BYTES}\n"
    s += '.amdgcn_target "amdgcn-amd-amdhsa--gfx950"\n.text\n'
    s += body + "\n" + kd
    return s, npad

if __name__ == '__main__':
    cfg = Cfg()
    out = sys.argv[1]
    for kv in sys.argv[2:]:
        k, v = kv.split('=', 1)
        cur = getattr(cfg, k)
        setattr(cfg, k, type(cur)(int(v, 0)) if isinstance(cur, (bool, int)) else v)
    s, npad = full_file(cfg)
    open(out, 'w').write(s)
    print('written', out, len(s), 'bytes; nop pads', npad)
```

```python
import sys, os
sys.path.insert(0, os.path.dirname(os.path.abspath(__file__)))
from asmlib import Asm

KNAME = 'gated_mix__mha_block_cached__gqa_block_cached__decode_kernel'

class Cfg:
    D = 3
    PD = 3
    D0 = 0
    N0 = 2
    I0 = 8
    SPIN = 200000
    J_POLL = 4
    stopc = 20
    pre1 = 16; sleep1 = 8; pre2 = 22; sleep2 = 4
    natwait = True
    outfl = ''
    diag = False; tlog = False; xorid = 0
    name = KNAME

sRem, sStride = 0, 1
sW, sV = 2, 3
P_X, P_KA, P_VA, P_WQA, P_WOA, P_BX, P_KB, P_VB = 4, 6, 8, 10, 12, 14, 16, 18
P_WQB, P_WOB, P_GW, P_OUT = 20, 22, 24, 26
P_DBG, P_WS = 28, 30
R_IK, R_IV = 4, 8
sMrg, sMl0, sS2 = 12, 14, 16
sPhase, sBase, sKc, sBst = 18, 20, 21, 23
sK0, sK1, sK2 = 24, 25, 26
sLog = 27
R_KA, R_VA, R_KB, R_VB = 32, 36, 40, 44
R_WQA, R_WQB, R_WOA, R_WOB = 48, 52, 56, 60
R_X, R_GW, R_WS, R_OUT = 64, 68, 72, 76
sB, sOff, sJ, sClaim = 80, 81, 82, 83
sT0, sT1, sT2, sT3 = 85, 86, 87, 88
sBbase = 89
sScale, sL2E, sNL2E = 90, 91, 92
sSpin, sSlot, sIdx = 93, 94, 95
sSelLo, sSelHi = 96, 97
sStamp = 98
sCntB = 101

vLane = 0
vKoff, vVoff, vKcur, vVcur = 1, 2, 3, 4
vMask0, vMask1 = 5, 6
vPoll, vOne = 7, 8
vRow, vBank, vQ, vC = 10, 11, 12, 13
vT = 14
RING = 16
QOP, QB = 80, 84
ACC, ACCA = 88, 96
vM, vL, vMA, vLA = 104, 105, 106, 107
DD = 108
Y = 124
PP = 128
WIN = 132
vAl, vAT, vNM, vMn = 138, 139, 140, 141
T0 = 142
WOA, WOB = 148, 156
TMP = 164
vW1, vW2, vRA, vML, vG, vGM, vBo, vBm, vAo, vAm, vS2r, vR1, vR2, vO1, vO2, vLA_, vGy, vF, vOut = range(228, 247)
NVGPR = 256

L_QBOP = 0
L_MLB, L_MLA = 1024, 1280
L_OT = 1536
L_G = 3584
L_FLAG = 3648
L_QA, L_QBP = 4096, 20480
L_BM, L_AM = 36864, 53248
L_YP = L_QA
L_G1B, L_G1A, L_G1MB, L_G1MA = L_QBP, L_QBP + 8192, L_QBP + 10240, L_QBP + 10496
LDS_BYTES = 69632

O_Y, O_OB, O_OA, O_MLB, O_MLA = 0, 2048, 4096, 4608, 4640
WS_QB = 2 << 20
WS_CNT = 3 << 20
WS_STAMP = (3 << 20) + (512 << 10)
WS_TLOG = 4 << 20

def vr(a, n): return f"v[{a}:{a+n-1}]"
def sr(a, n): return f"s[{a}:{a+n-1}]"
def kslot(st, u): return RING + 32 * st + 4 * u
def vslot(st, u): return RING + 32 * st + 16 + 4 * u
MFMA = 'v_mfma_f32_16x16x32_bf16'
FULL = 'row_mask:0xf bank_mask:0xf'
NS = 32

def build(cfg):
    a = Asm()
    c = a.comment
    N = cfg.name
    D = cfg.D
    WS_BYTES = (8 << 20) if (cfg.diag or cfg.tlog) else (4 << 20)
    def stamp(i):
        if not cfg.diag: return
        a(f"s_memrealtime s[{sStamp}:{sStamp+1}]")
        a("s_waitcnt lgkmcnt(0)")
        a(f"v_mov_b32 v{vT}, s{sStamp}")
        a(f"s_lshl_b32 s{sT3}, s{sW}, 3")
        a(f"s_add_u32 s{sT3}, s{sT3}, s{sV}")
        a(f"s_lshl_b32 s{sT3}, s{sT3}, 7")
        a(f"s_add_u32 s{sT3}, s{sT3}, {WS_STAMP + 4*i}")
        a(f"v_mov_b32 v{vT+1}, s{sT3}")
        a(f"buffer_store_dword v{vT}, v{vT+1}, {sr(R_WS,4)}, 0 offen")
    def tlog():
        if not cfg.tlog: return
        a(f"s_memrealtime s[{sStamp}:{sStamp+1}]")
        a("s_waitcnt lgkmcnt(0)")
        a(f"v_mov_b32 v{vT}, s{sStamp}")
        a(f"v_mov_b32 v{vT+1}, s{sLog}")
        a("s_mov_b64 exec, 1")
        a(f"buffer_store_dword v{vT}, v{vT+1}, {sr(R_WS,4)}, 0 offen")
        a("s_mov_b64 exec, -1")
        a(f"s_add_u32 s{sLog}, s{sLog}, 4")
    def srd(r, p, size):
        a(f"s_mov_b32 s{r}, s{p}")
        a(f"s_and_b32 s{r+1}, s{p+1}, 0xffff")
        a(f"s_mov_b32 s{r+2}, {hex(size)}")
        a(f"s_mov_b32 s{r+3}, 0x20000")
    def pv(data, acc0, acc1, first):
        c0 = '0' if first else vr(acc0, 4)
        c1 = '0' if first else vr(acc1, 4)
        a(f"{MFMA} {vr(acc0,4)}, {vr(WIN+2,4)}, {vr(data,4)}, {c0}")
        a(f"{MFMA} {vr(acc1,4)}, {vr(WIN,4)}, {vr(data,4)}, {c1}")
    def win_from(pp):
        a(f"v_and_b32 v{WIN+2}, v{pp}, v{vMask0}")
        a(f"v_and_b32 v{WIN+3}, v{pp}, v{vMask1}")
    def xrow(op, r, t):
        a(f"v_mov_b32 v{t}, v{r}")
        a(f"v_permlane16_swap_b32 v{r}, v{t}")
        a(f"{op} v{r}, v{r}, v{t}")
        a(f"v_mov_b32 v{t}, v{r}")
        a(f"v_permlane32_swap_b32 v{r}, v{t}")
        a(f"{op} v{r}, v{r}, v{t}")
    def spin_tail(lab_loop, lab_done, slp=2):
        a(f"s_add_u32 s{sSpin}, s{sSpin}, 1")
        a(f"s_cmp_gt_u32 s{sSpin}, {cfg.SPIN}")
        a(f"s_cbranch_scc1 {lab_done}")
        if slp: a(f"s_sleep {slp}")
        a(f"s_branch {lab_loop}")
    def tree_sum8(base):
        for step in (4, 2, 1):
            for g in range(step):
                for k in range(8):
                    a(f"v_add_f32 v{base+8*g+k}, v{base+8*g+k}, v{base+8*(g+step)+k}")
    def kv_load(st, isV, u, rk=R_KA, rv=R_VA):
        slot = vslot(st, u) if isV else kslot(st, u)
        r = rv if isV else rk
        va = vVcur if isV else vKcur
        a(f"buffer_load_dwordx4 {vr(slot,4)}, v{va}, {sr(r,4)}, 0 offen offset:{u*1024} nt")
    def is_role(cst, lab_else):
        a(f"s_add_u32 s{sT0}, s{sW}, {cst}")
        a(f"s_and_b32 s{sT0}, s{sT0}, 7")
        a(f"s_cmp_eq_u32 s{sV}, s{sT0}")
        a(f"s_cbranch_scc0 {lab_else}")
    R_PUB, R_GATE, R_GATH = 0, 3, 5

    a(f".globl {N}")
    a(".p2align 8")
    a(f".type {N},@function")
    a.label(N)
    c("workgroups beyond the 256 that carry work leave at once")
    a(f"s_cmp_ge_u32 s{sW}, 256")
    a(f"s_cbranch_scc1 {N}_done")
    if cfg.xorid: a(f"s_xor_b32 s{sW}, s{sW}, {cfg.xorid}")
    if cfg.diag: a("s_memrealtime s[100:101]")
    a(f"s_load_dwordx16 s[4:19], s[0:1], 0")
    a(f"s_load_dwordx8 s[20:27], s[0:1], 64")
    a(f"s_load_dwordx4 s[28:31], s[0:1], 96")
    c("lane = 16*row + 4*bank + q ; c = lane & 15 ; wave id in s3")
    a(f"v_lshrrev_b32 v1, 6, v0")
    a(f"v_and_b32 v{vLane}, 63, v0")
    a(f"v_readfirstlane_b32 s{sV}, v1")
    a(f"v_lshrrev_b32 v{vRow}, 4, v{vLane}")
    a(f"v_lshrrev_b32 v{vBank}, 2, v{vLane}")
    a(f"v_and_b32 v{vBank}, 3, v{vBank}")
    a(f"v_and_b32 v{vQ}, 3, v{vLane}")
    a(f"v_and_b32 v{vC}, 15, v{vLane}")
    a(f"v_lshlrev_b32 v{vVoff}, 4, v{vLane}")
    WQA, WQB, XA, XB = 164, 228, 236, 244
    vWa, vWb, vWo = T0, T0 + 1, T0 + 3
    c("x offsets.  XA: bank*1024 + wave*128 + row*32 ; XB: bank*1024 + slice*128 + wave*16 + row*4")
    a(f"v_lshlrev_b32 v{vT+1}, 10, v{vBank}")
    a(f"s_lshl_b32 s{sT0}, s{sV}, 7")
    a(f"v_lshl_add_u32 v{vT}, v{vRow}, 5, v{vT+1}")
    a(f"v_add_u32 v{vT}, s{sT0}, v{vT}")
    a(f"s_and_b32 s{sT1}, s{sW}, 7")
    a(f"s_lshl_b32 s{sT2}, s{sT1}, 7")
    a(f"s_lshl_b32 s{sT3}, s{sV}, 4")
    a(f"s_add_u32 s{sT2}, s{sT2}, s{sT3}")
    a(f"v_lshl_add_u32 v{vT+1}, v{vRow}, 2, v{vT+1}")
    a(f"v_add_u32 v{vT+1}, s{sT2}, v{vT+1}")
    c("wq lane offsets.  A: 16 rows per DPP row ; B: 2 rows per DPP row ; + c*16")
    a(f"v_lshlrev_b32 v{vWa}, 4, v{vC}")
    a(f"v_lshl_add_u32 v{vWb}, v{vRow}, 14, v{vWa}")
    a(f"v_lshl_add_u32 v{vWo}, v{vRow}, 10, v{vWa}")
    a(f"v_lshl_add_u32 v{vWa}, v{vRow}, 17, v{vWa}")
    c("wq_A scalar offset (s85): wave*64 rows*8192 + head*256, head = (w>>1)&31")
    a(f"s_lshr_b32 s{sT0}, s{sW}, 1")
    a(f"s_and_b32 s{sT0}, s{sT0}, 31")
    a(f"s_lshl_b32 s{sT0}, s{sT0}, 8")
    a(f"s_lshl_b32 s{sT2}, s{sV}, 19")
    a(f"s_add_u32 s{sT0}, s{sT0}, s{sT2}")
    c("wq_B scalar offset (s86): (8*slice + wave)*8 rows*8192 + (w>>3)*256, slice = w&7")
    a(f"s_lshl_b32 s{sT1}, s{sT1}, 3")
    a(f"s_add_u32 s{sT1}, s{sT1}, s{sV}")
    a(f"s_lshl_b32 s{sT1}, s{sT1}, 16")
    a(f"s_lshr_b32 s{sT2}, s{sW}, 3")
    a(f"s_lshl_b32 s{sT2}, s{sT2}, 8")
    a(f"s_add_u32 s{sT1}, s{sT1}, s{sT2}")
    a(f"s_lshr_b32 s{sB}, s{sW}, 6")
    a(f"s_lshl_b32 s{sSlot}, s{sW}, 13")
    a("s_waitcnt lgkmcnt(0)")
    srd(R_X, P_X, 4096)
    srd(R_WQA, P_WQA, 4 << 20)
    c("x: group kk of a wave's 16 rows per DPP row is row group (kk + b) & 3, so the four workgroups of an XCD that share")
    c("a head first-touch different weight lines")
    for kk in range(4):
        a(f"s_add_u32 s{sT2}, s{sB}, {kk}")
        a(f"s_and_b32 s{sT2}, s{sT2}, 3")
        a(f"s_lshl_b32 s{sT2}, s{sT2}, 3")
        a(f"buffer_load_dwordx2 {vr(XA+2*kk,2)}, v{vT}, {sr(R_X,4)}, s{sT2} offen")
    a(f"buffer_load_dword v{XB}, v{vT+1}, {sr(R_X,4)}, 0 offen")
    for kk in range(4):
        a(f"s_add_u32 s{sT2}, s{sB}, {kk}")
        a(f"s_and_b32 s{sT2}, s{sT2}, 3")
        a(f"s_lshl_b32 s{sT2}, s{sT2}, 15")
        a(f"s_add_u32 s{sT2}, s{sT2}, s{sT0}")
        for q in range(4):
            i = 4 * kk + q
            a(f"buffer_load_dwordx4 {vr(WQA+4*i,4)}, v{vWa}, {sr(R_WQA,4)}, s{sT2} offen nt")
            if q < 3: a(f"s_add_u32 s{sT2}, s{sT2}, 8192")
    srd(R_WQB, P_WQB, 4 << 20)
    a(f"buffer_load_dwordx4 {vr(WQB,4)}, v{vWb}, {sr(R_WQB,4)}, s{sT1} offen nt")
    a(f"s_add_u32 s{sT1}, s{sT1}, 8192")
    a(f"buffer_load_dwordx4 {vr(WQB+4,4)}, v{vWb}, {sr(R_WQB,4)}, s{sT1} offen nt")
    c("wo rows of this workgroup's output unit: head hU = 4*(w&7) + ((w>>3)&3), column group w>>6, row half (w>>5)&1")
    srd(R_WOA, P_WOA, 4 << 20)
    srd(R_WOB, P_WOB, 4 << 20)
    a(f"s_and_b32 s{sT0}, s{sW}, 7")
    a(f"s_lshl_b32 s{sT0}, s{sT0}, 2")
    a(f"s_lshr_b32 s{sT1}, s{sW}, 3")
    a(f"s_and_b32 s{sT1}, s{sT1}, 3")
    a(f"s_add_u32 s{sT0}, s{sT0}, s{sT1}")
    a(f"s_lshl_b32 s{sT0}, s{sT0}, 4")
    a(f"s_lshr_b32 s{sT1}, s{sW}, 5")
    a(f"s_and_b32 s{sT1}, s{sT1}, 1")
    a(f"s_lshl_b32 s{sT1}, s{sT1}, 3")
    a(f"s_add_u32 s{sT0}, s{sT0}, s{sT1}")
    a(f"s_add_u32 s{sT0}, s{sT0}, s{sV}")
    a(f"s_lshl_b32 s{sT0}, s{sT0}, 13")
    a(f"s_lshr_b32 s{sT1}, s{sW}, 6")
    a(f"s_lshl_b32 s{sT1}, s{sT1}, 8")
    a(f"s_add_u32 s{sT0}, s{sT0}, s{sT1}")
    a(f"s_add_u32 s{sT1}, s{sT0}, 4096")
    a(f"buffer_load_dwordx4 {vr(WOA,4)}, v{vWo}, {sr(R_WOA,4)}, s{sT0} offen nt")
    a(f"buffer_load_dwordx4 {vr(WOA+4,4)}, v{vWo}, {sr(R_WOA,4)}, s{sT1} offen nt")
    a(f"buffer_load_dwordx4 {vr(WOB,4)}, v{vWo}, {sr(R_WOB,4)}, s{sT0} offen nt")
    a(f"buffer_load_dwordx4 {vr(WOB+4,4)}, v{vWo}, {sr(R_WOB,4)}, s{sT1} offen nt")
    srd(R_WS, P_WS, WS_BYTES)
    srd(R_GW, P_GW, 1024)
    extra = [0]
    c("lane constants and descriptors")
    a(f"v_lshlrev_b32 v{vKoff}, 8, v{vBank}")
    a(f"v_lshl_add_u32 v{vKoff}, v{vRow}, 6, v{vKoff}")
    a(f"v_lshl_add_u32 v{vKoff}, v{vQ}, 4, v{vKoff}")
    a(f"v_and_b32 v{vT}, 1, v{vQ}")
    a(f"v_cmp_eq_u32 vcc, 0, v{vT}")
    a(f"v_mov_b32 v{vT}, 0xffff0000")
    a(f"v_mov_b32 v{vT+1}, 0x0000ffff")
    a(f"v_cndmask_b32 v{vT}, v{vT}, v{vT+1}, vcc")
    a(f"v_cmp_gt_u32 vcc, 2, v{vQ}")
    a(f"v_cndmask_b32 v{vMask0}, 0, v{vT}, vcc")
    a(f"v_cndmask_b32 v{vMask1}, v{vT}, 0, vcc")
    for k in (0, 1, 4, 5): a(f"v_mov_b32 v{WIN+k}, 0")
    a(f"v_mov_b32 v{vOne}, 1")
    a(f"s_mov_b32 s{sScale}, 0x3db504f3")
    a(f"s_mov_b32 s{sL2E}, 0x3fb8aa3b")
    a(f"s_mov_b32 s{sNL2E}, 0xbfb8aa3b")
    a(f"s_mov_b32 s{sSelLo}, 0x01000100")
    a(f"s_mov_b32 s{sSelHi}, 0x03020302")
    srd(R_KA, P_KA, 256 << 20)
    srd(R_VA, P_VA, 256 << 20)
    srd(R_KB, P_KB, 64 << 20)
    srd(R_VB, P_VB, 64 << 20)
    srd(R_OUT, P_OUT, 4096)
    if cfg.tlog:
        a(f"s_lshl_b32 s{sLog}, s{sW}, 3")
        a(f"s_add_u32 s{sLog}, s{sLog}, s{sV}")
        a(f"s_lshl_b32 s{sLog}, s{sLog}, 8")
        a(f"s_add_u32 s{sLog}, s{sLog}, {WS_TLOG}")
    for k in range(3):
        a(f"s_mov_b32 s{R_IK+k}, s{R_KA+k}")
        a(f"s_mov_b32 s{R_IV+k}, s{R_VA+k}")
    a(f"s_mov_b32 s{R_IK+3}, 0x20000")
    a(f"s_mov_b32 s{R_IV+3}, 0x20000")
    c("A: this wave streams piece (stripe j, column wave) of the workgroup's 1 MiB: offset w*1M + j*32K + wave*4K")
    a(f"s_lshl_b32 s{sOff}, s{sW}, 20")
    a(f"s_lshl_b32 s{sT1}, s{sV}, 12")
    a(f"s_add_u32 s{sOff}, s{sOff}, s{sT1}")
    c("B: column `wave` of group w>>3 (2 MiB, 64 stripes)")
    a(f"s_lshr_b32 s{sBbase}, s{sW}, 3")
    a(f"s_lshl_b32 s{sBbase}, s{sBbase}, 21")
    a(f"s_add_u32 s{sBbase}, s{sBbase}, s{sT1}")
    a(f"v_add_u32 v{vKcur}, s{sOff}, v{vKoff}")
    a(f"v_add_u32 v{vVcur}, s{sOff}, v{vVoff}")
    a(f"v_mov_b32 v{vT}, {L_FLAG}")
    a(f"v_mov_b32 v{vT+1}, 0")
    a(f"ds_write_b32 v{vT}, v{vT+1}")
    if cfg.diag:
        stamp(12)
        a(f"s_sub_u32 s{sT3}, s{sT3}, 4")
        a(f"v_mov_b32 v{vT+1}, s{sT3}")
        a(f"v_mov_b32 v{vT}, s100")
        a(f"buffer_store_dword v{vT}, v{vT+1}, {sr(R_WS,4)}, 0 offen")
    c("q_A partial over this wave's 64 rows.  Younger than wq_A item i: the later items, wq_B (2), wo (4), K/V loads")
    QA0, QA1 = DD, DD + 4
    QB0, QB1 = DD + 8, DD + 12
    nkv = 0
    kvseq = [(0, 0, u) for u in range(4)] + [(0, 1, u) for u in range(4)]
    for i in range(16):
        a(f"s_waitcnt vmcnt({(15 - i) + 6 + nkv})")
        if i == 0: stamp(13)
        sel = sSelLo if i % 2 == 0 else sSelHi
        x = XA + i // 2
        a(f"v_perm_b32 v{PP}, v{x}, v{x}, s{sel}")
        win_from(PP)
        pv(WQA + 4 * i, QA0, QA1, i == 0)
        if i >= cfg.I0 and nkv < 8:
            kv_load(*kvseq[nkv]); nkv += 1
    c("q_B partial over this wave's 8 rows of the slice")
    for i in range(2):
        a(f"s_waitcnt vmcnt({(1 - i) + 4 + nkv})")
        sel = sSelLo if i == 0 else sSelHi
        a(f"v_perm_b32 v{PP}, v{XB}, v{XB}, s{sel}")
        win_from(PP)
        pv(WQB + 4 * i, QB0, QB1, i == 0)
    a(f"s_lshl_b32 s{sT0}, s{sV}, 11")
    a(f"v_add_u32 v{vW1}, s{sT0}, v{vVoff}")
    a(f"ds_write_b128 v{vW1}, {vr(QA0,4)} offset:{L_QA}")
    a(f"ds_write_b128 v{vW1}, {vr(QA1,4)} offset:{L_QA+1024}")
    a(f"ds_write_b128 v{vW1}, {vr(QB0,4)} offset:{L_QBP}")
    a(f"ds_write_b128 v{vW1}, {vr(QB1,4)} offset:{L_QBP+1024}")
    while nkv < 8:
        kv_load(*kvseq[nkv]); nkv += 1
    a("s_waitcnt lgkmcnt(0)")
    stamp(14)
    a("s_barrier")
    c("q_A operand: lane (row, bank, q) sums QA[wave'][m][16*b + 4*row + q] over the 8 waves, rounds to bf16")
    a(f"s_lshl_b32 s{sT0}, s{sB}, 8")
    a(f"v_lshlrev_b32 v{vT}, 6, v{vRow}")
    a(f"v_lshl_add_u32 v{vT}, v{vQ}, 4, v{vT}")
    a(f"v_add_u32 v{vT}, s{sT0}, v{vT}")
    S = TMP
    for vv in range(8):
        for m in range(2):
            a(f"ds_read_b128 {vr(S + 8*vv + 4*m, 4)}, v{vT} offset:{L_QA + vv*2048 + m*1024}")
    a(f"s_add_u32 s{sOff}, s{sOff}, 32768")
    a(f"v_add_u32 v{vKcur}, s{sOff}, v{vKoff}")
    a(f"v_add_u32 v{vVcur}, s{sOff}, v{vVoff}")
    a(f"s_add_u32 s{sOff}, s{sOff}, 32768")
    a("s_waitcnt lgkmcnt(0)")
    tree_sum8(S)
    for k in range(4):
        a(f"v_cvt_pk_bf16_f32 v{QOP+k}, v{S+2*k}, v{S+2*k+1}")
    c("publisher wave: reduce and publish the q_B partial, clear, then stream on with the stores discounted")
    is_role(R_PUB, f"{N}_nopub")
    for vv in range(8):
        for m in range(2):
            a(f"ds_read_b128 {vr(S + 8*vv + 4*m, 4)}, v{vVoff} offset:{L_QBP + vv*2048 + m*1024}")
    a(f"s_lshl_b32 s{sT0}, s{sW}, 11")
    a(f"s_add_u32 s{sT0}, s{sT0}, {WS_QB}")
    a(f"v_lshlrev_b32 v{vT}, 5, v{vC}")
    a(f"v_lshl_add_u32 v{vT}, v{vRow}, 9, v{vT}")
    a(f"v_add_u32 v{vT}, s{sT0}, v{vT}")
    a("s_waitcnt lgkmcnt(0)")
    tree_sum8(S)
    a(f"buffer_store_dwordx4 {vr(S,4)}, v{vT}, {sr(R_WS,4)}, 0 offen sc1")
    a(f"buffer_store_dwordx4 {vr(S+4,4)}, v{vT}, {sr(R_WS,4)}, 0 offen offset:16 sc1")
    c("mark this workgroup's hand-off slots empty (all ones); workgroup 8k zeroes the claim counters of group k")
    for k in range(4): a(f"v_mov_b32 v{PP+k}, -1")
    a(f"v_add_u32 v{vT}, s{sSlot}, v{vVoff}")
    for k in range(4):
        a(f"buffer_store_dwordx4 {vr(PP,4)}, v{vT}, {sr(R_WS,4)}, 0 offen offset:{k*1024} sc1")
    a(f"v_add_u32 v{vT}, 4096, v{vT}")
    a(f"buffer_store_dwordx4 {vr(PP,4)}, v{vT}, {sr(R_WS,4)}, 0 offen sc1")
    a(f"s_and_b32 s{sT0}, s{sW}, 7")
    a(f"s_cmp_eq_u32 s{sT0}, 0")
    a(f"s_cbranch_scc0 {N}_noclr")
    a(f"s_lshl_b32 s{sT0}, s{sW}, 8")
    a(f"s_add_u32 s{sT0}, s{sT0}, {WS_CNT}")
    a(f"v_lshlrev_b32 v{vT}, 8, v{vLane}")
    a(f"v_add_u32 v{vT}, s{sT0}, v{vT}")
    a(f"v_mov_b32 v{vT+1}, 0")
    a("s_mov_b64 exec, 0xff")
    a(f"buffer_store_dword v{vT+1}, v{vT}, {sr(R_WS,4)}, 0 offen sc1")
    a("s_mov_b64 exec, -1")
    a.label(f"{N}_noclr")
    for isV in (0, 1):
        for u in range(4):
            a(f"s_waitcnt vmcnt({cfg.PD - 1 + 7})"); kv_load(1, isV, u)
    a(f"s_branch {N}_t1d")
    a.label(f"{N}_nopub")
    for isV in (0, 1):
        for u in range(4):
            a(f"s_waitcnt vmcnt({cfg.PD-1})"); kv_load(1, isV, u)
    a.label(f"{N}_t1d")
    for k in range(8): a(f"v_mov_b32 v{ACC+k}, 0")
    a(f"v_mov_b32 v{vM}, 0xff7fffff")
    a(f"v_mov_b32 v{vL}, 0")
    stamp(1)

    uid = [0]
    Dcur = [D]
    def issue(st, isV, u, rk, rv):
        D = Dcur[0]
        if rk == R_IK:
            uid[0] += 1
            a(f"s_cbranch_vccnz {N}_f{uid[0]}")
            a(f"s_waitcnt vmcnt({D-1})")
            a.label(f"{N}_f{uid[0]}")
        else:
            a(f"s_waitcnt vmcnt({D-1})")
        kv_load(st, isV, u, rk, rv)
    def diag(u0, u1):
        for cc in range(4):
            for u in (u0, u1):
                d = DD + 4 * u + cc
                qp = f"quad_perm:[{cc},{cc},{cc},{cc}]"
                if cc == 0: a(f"v_mov_b32_dpp v{Y+u}, v{d} {qp} {FULL}")
                else:       a(f"v_add_f32_dpp v{Y+u}, v{d}, v{Y+u} {qp} {FULL}")
    def round4():
        a(f"v_cvt_pk_bf16_f32 v{T0}, v{Y}, v{Y+1}")
        a(f"v_cvt_pk_bf16_f32 v{T0+1}, v{Y+2}, v{Y+3}")
        a(f"v_lshlrev_b32 v{Y}, 16, v{T0}")
        a(f"v_and_b32 v{Y+1}, 0xffff0000, v{T0}")
        a(f"v_lshlrev_b32 v{Y+2}, 16, v{T0+1}")
        a(f"v_and_b32 v{Y+3}, 0xffff0000, v{T0+1}")
    def body(st, rk, rv):
        c(f"--- mini-tile in ring set {st}: 16 keys.  QK^T, online softmax, PV; issues the tile two ahead")
        a("s_waitcnt vmcnt(12)")
        for u in range(4):
            a(f"{MFMA} {vr(DD+4*u,4)}, {vr(kslot(st,u),4)}, {vr(QOP,4)}, 0")
        issue(st, 0, 0, rk, rv)
        diag(0, 1)
        issue(st, 0, 1, rk, rv)
        diag(2, 3)
        round4()
        issue(st, 0, 2, rk, rv)
        for u in range(4): a(f"v_mul_f32 v{Y+u}, s{sScale}, v{Y+u}")
        round4()
        a(f"v_max3_f32 v{T0+2}, v{Y}, v{Y+1}, v{Y+2}")
        a(f"v_max_f32 v{T0+2}, v{T0+2}, v{Y+3}")
        xrow('v_max_f32', T0 + 2, T0 + 3)
        a(f"v_max_f32 v{vMn}, v{vM}, v{T0+2}")
        issue(st, 0, 3, rk, rv)
        a(f"v_sub_f32 v{vAl}, v{vM}, v{vMn}")
        a(f"v_mul_f32 v{vNM}, s{sNL2E}, v{vMn}")
        a(f"v_mul_f32 v{vAl}, s{sL2E}, v{vAl}")
        for u in range(4): a(f"v_fma_f32 v{Y+u}, v{Y+u}, s{sL2E}, v{vNM}")
        a(f"v_exp_f32 v{vAl}, v{vAl}")
        for u in range(4): a(f"v_exp_f32 v{Y+u}, v{Y+u}")
        a(f"v_mov_b32 v{vM}, v{vMn}")
        for h in range(4):
            a(f"v_mov_b32_dpp v{vAT}, v{vAl} row_newbcast:{4*h} row_mask:{hex(1<<h)} bank_mask:0xf")
        a(f"v_fma_f32 v{vL}, v{vL}, v{vAl}, v{Y}")
        for u in range(4): a(f"v_cvt_pk_bf16_f32 v{PP+u}, v{Y+u}, v{Y+u}")
        a(f"v_add_f32 v{T0}, v{Y+1}, v{Y+2}")
        a(f"v_add_f32 v{vL}, v{vL}, v{Y+3}")
        a(f"v_add_f32 v{vL}, v{vL}, v{T0}")
        for k in range(8): a(f"v_mul_f32 v{ACC+k}, v{ACC+k}, v{vAT}")
        a("s_waitcnt vmcnt(12)")
        for u in range(4):
            win_from(PP + u)
            pv(vslot(st, u), ACC, ACC + 4, False)
            issue(st, 1, u, rk, rv)
        tlog()
    def top_static():
        a(f"v_add_u32 v{vKcur}, s{sOff}, v{vKoff}")
        a(f"v_add_u32 v{vVcur}, s{sOff}, v{vVoff}")
        a(f"s_add_u32 s{sOff}, s{sOff}, 32768")
    def sclaim():
        a(f"s_mov_b32 s{sClaim}, 1")
        a(f"s_atomic_add s{sClaim}, s[{P_WS}:{P_WS+1}], s{sCntB} glc")
    def state_switch():
        a("s_nop 7")
        for k in range(8): a(f"v_mov_b32 v{ACCA+k}, v{ACC+k}")
        a(f"v_mov_b32 v{vMA}, v{vM}")
        a(f"v_mov_b32 v{vLA}, v{vL}")
        for k in range(8): a(f"v_mov_b32 v{ACC+k}, 0")
        a(f"v_mov_b32 v{vM}, 0xff7fffff")
        a(f"v_mov_b32 v{vL}, 0")
        for k in range(4): a(f"v_mov_b32 v{QOP+k}, v{QB+k}")
        a(f"s_mov_b32 s{sBst}, 1")
        stamp(2)
    def top_dyn(st):
        lab = f"{N}_d{st}"
        c("next B piece: the rest of the current chunk, else the chunk claimed one tile ago")
        a(f"s_cmp_eq_u32 s{sRem}, 0")
        a(f"s_cbranch_scc1 {lab}_new")
        a(f"s_add_u32 s{sIdx}, s{sIdx}, 1")
        a(f"s_sub_u32 s{sRem}, s{sRem}, 1")
        a.label(f"{lab}_have")
        a(f"s_lshl_b32 s{sT0}, s{sIdx}, 15")
        a(f"s_add_u32 s{sT0}, s{sT0}, s{sBbase}")
        a(f"s_mov_b32 s{sK2}, s{sKc}")
        a(f"s_mov_b32 s{sKc}, 3")
        a(f"s_cmp_eq_u32 s{sRem}, 0")
        a(f"s_cbranch_scc0 {lab}_go2")
        a(f"s_cmp_ge_u32 s{sClaim}, {cfg.stopc}")
        a(f"s_cbranch_scc1 {lab}_skip")
        sclaim()
        a.label(f"{lab}_go2")
        a(f"v_add_u32 v{vKcur}, s{sT0}, v{vKoff}")
        a(f"v_add_u32 v{vVcur}, s{sT0}, v{vVoff}")
        a(f"s_cmp_eq_u32 s{sK0}, 2")
        a(f"s_cbranch_scc1 {lab}_sw")
        a.label(f"{lab}_body")
    def top_dyn_cold(st):
        lab = f"{N}_d{st}"
        a.label(f"{lab}_new")
        c("chunks of a column (64 stripes, 8 waves): claims 0..7 -> 5 stripes, 8..15 -> 2, 16..23 -> 1")
        a("s_waitcnt lgkmcnt(0)")
        a(f"s_mul_i32 s{sIdx}, s{sClaim}, 5")
        a(f"s_mov_b32 s{sRem}, 4")
        a(f"s_cmp_lt_u32 s{sClaim}, 8")
        a(f"s_cbranch_scc1 {lab}_have")
        a(f"s_lshl_b32 s{sIdx}, s{sClaim}, 1")
        a(f"s_add_u32 s{sIdx}, s{sIdx}, 24")
        a(f"s_mov_b32 s{sRem}, 1")
        a(f"s_cmp_lt_u32 s{sClaim}, 16")
        a(f"s_cbranch_scc1 {lab}_have")
        a(f"s_add_u32 s{sIdx}, s{sClaim}, 40")
        a(f"s_mov_b32 s{sRem}, 0")
        a(f"s_cmp_lt_u32 s{sClaim}, 24")
        a(f"s_cbranch_scc1 {lab}_have")
        c("column exhausted: out-of-range (zero-fill) dummy tile, no throttle, no further claims")
        a(f"s_mov_b32 s{sT0}, 0x7f000000")
        a(f"s_mov_b32 s{sK2}, 0")
        a("s_mov_b64 vcc, -1")
        a(f"s_branch {lab}_go2")
        a.label(f"{lab}_skip")
        c("a wave that got one of the last four pieces does not claim again; every wave makes exactly one claim >= 20,")
        c("so the eight such claims hand out pieces 20..23")
        a(f"s_mov_b32 s{sClaim}, 0x7fffffff")
        a(f"s_branch {lab}_go2")
        a.label(f"{lab}_sw")
        state_switch()
        a("s_nop 1")
        a(f"s_branch {lab}_body")

    a(f"s_mov_b32 s{sJ}, 0")
    if cfg.D0:
        c("first tiles with a wider window: the workgroup catches up the time its q projection took")
        is_role(R_PUB, f"{N}_j0r")
        a("s_waitcnt vmcnt(8)")
        a(f"s_mov_b32 s{sT0}, 1")
        a(f"s_atomic_add s{sT0}, s[{P_DBG}:{P_DBG+1}], 0x0")
        a("s_waitcnt lgkmcnt(0)")
        stamp(19)
        a.label(f"{N}_j0r")
        Dcur[0] = cfg.D0
        for jj in range(0, cfg.N0, 2):
            top_static(); body(0, R_KA, R_VA)
            top_static(); body(1, R_KA, R_VA)
        Dcur[0] = D
        a(f"s_mov_b32 s{sJ}, {cfg.N0}")
        assert cfg.N0 == 2
    a.label(f"{N}_sloop")
    a(f"s_cmp_eq_u32 s{sJ}, 0")
    a(f"s_cbranch_scc1 {N}_job0")
    a(f"s_cmp_eq_u32 s{sJ}, 2")
    a(f"s_cbranch_scc1 {N}_job2")
    a(f"s_cmp_eq_u32 s{sJ}, {cfg.J_POLL}")
    a(f"s_cbranch_scc1 {N}_jobp")
    a(f"s_cmp_eq_u32 s{sJ}, {cfg.J_POLL + 2}")
    a(f"s_cbranch_scc1 {N}_jobg")
    a.label(f"{N}_jobret")
    top_static(); body(0, R_KA, R_VA)
    top_static(); body(1, R_KA, R_VA)
    a(f"s_add_u32 s{sJ}, s{sJ}, 2")
    a(f"s_cmp_lt_u32 s{sJ}, {NS-4}")
    a(f"s_cbranch_scc1 {N}_sloop")
    c("address registers of the tail, computed while streaming")
    a(f"s_lshl_b32 s{sT0}, s{sV}, 5")
    a(f"v_lshlrev_b32 v{vW2}, 3, v{vBank}")
    a(f"v_add_u32 v{vW2}, s{sT0}, v{vW2}")
    vTid, vI32, vHH = T0, T0 + 1, T0 + 2
    a(f"s_lshl_b32 s{sT0}, s{sV}, 6")
    a(f"v_add_u32 v{vTid}, s{sT0}, v{vLane}")
    a(f"v_and_b32 v{vI32}, 31, v{vTid}")
    a(f"v_lshrrev_b32 v{vHH}, 5, v{vTid}")
    a(f"v_and_b32 v{vHH}, 3, v{vHH}")
    a(f"v_and_b32 v{vT}, 1, v{vI32}")
    a(f"v_lshlrev_b32 v{vT}, 10, v{vT}")
    a(f"v_lshrrev_b32 v{vT+1}, 1, v{vI32}")
    a(f"v_lshl_add_u32 v{vT+1}, v{vHH}, 4, v{vT+1}")
    a(f"v_lshl_add_u32 v{vLA_}, v{vT+1}, 4, v{vT}")
    a(f"s_cmp_eq_u32 s{sV}, 2")
    for (sr_, va, vb) in ((sT0, L_AM, L_BM), (sT1, L_MLA, L_MLB), (sT2, O_OA, O_OB), (sT3, O_MLA, O_MLB)):
        a(f"s_mov_b32 s{sr_}, {vb}")
        a(f"s_cmov_b32 s{sr_}, {va}")
    a(f"s_cselect_b32 s{sMrg+1}, 0, -1")
    a(f"s_mov_b32 s{sMrg}, -1")
    a(f"v_add_u32 v{vRA}, s{sT0}, v{vLA_}")
    a(f"v_lshlrev_b32 v{vML}, 3, v{vHH}")
    a(f"v_add_u32 v{vGM}, s{sT3}, v{vML}")
    a(f"v_add_u32 v{vGM}, s{sSlot}, v{vGM}")
    a(f"v_add_u32 v{vML}, s{sT1}, v{vML}")
    a(f"v_lshlrev_b32 v{vGy}, 9, v{vHH}")
    a(f"v_lshl_add_u32 v{vGy}, v{vI32}, 4, v{vGy}")
    a(f"v_add_u32 v{vGy}, s{sSlot}, v{vGy}")
    a(f"v_add_u32 v{vG}, s{sT2}, v{vGy}")
    a(f"v_cmp_eq_u32 s[{sMl0}:{sMl0+1}], 0, v{vI32}")
    a(f"s_and_b64 s[{sMl0}:{sMl0+1}], s[{sMl0}:{sMl0+1}], s[{sMrg}:{sMrg+1}]")
    a(f"s_and_b32 s{sT0}, s{sW}, 7")
    a(f"s_lshr_b32 s{sT1}, s{sW}, 3")
    a(f"s_and_b32 s{sT1}, s{sT1}, 3")
    a(f"s_lshr_b32 s{sT3}, s{sW}, 5")
    a(f"s_and_b32 s{sT3}, s{sT3}, 1")
    a(f"s_lshl_b32 s{sT3}, s{sT3}, 8")
    a(f"s_lshl_b32 s{sT2}, s{sT0}, 3")
    a(f"s_add_u32 s{sT2}, s{sT2}, s{sV}")
    a(f"v_lshlrev_b32 v{vT}, 6, v{vRow}")
    a(f"v_add_u32 v{vBm}, s{sT2}, v{vT}")
    a(f"v_lshlrev_b32 v{vBm}, 13, v{vBm}")
    a(f"s_lshl_b32 s{sT2}, s{sT1}, 9")
    a(f"s_add_u32 s{sT2}, s{sT2}, s{sT3}")
    a(f"s_add_u32 s{sT2}, s{sT2}, {O_OB}")
    a(f"v_lshl_add_u32 v{vBo}, v{vC}, 4, v{vBm}")
    a(f"v_add_u32 v{vBo}, s{sT2}, v{vBo}")
    a(f"s_lshl_b32 s{sT2}, s{sT1}, 3")
    a(f"s_add_u32 s{sT2}, s{sT2}, {O_MLB}")
    a(f"v_add_u32 v{vBm}, s{sT2}, v{vBm}")
    a(f"s_lshl_b32 s{sT2}, s{sT0}, 2")
    a(f"s_add_u32 s{sT2}, s{sT2}, s{sT1}")
    a(f"s_lshl_b32 s{sT2}, s{sT2}, 1")
    a(f"s_add_u32 s{sT2}, s{sT2}, s{sV}")
    a(f"v_add_u32 v{vAm}, s{sT2}, v{vT}")
    a(f"v_lshlrev_b32 v{vAm}, 13, v{vAm}")
    a(f"s_add_u32 s{sT3}, s{sT3}, {O_OA}")
    a(f"v_lshl_add_u32 v{vAo}, v{vC}, 4, v{vAm}")
    a(f"v_add_u32 v{vAo}, s{sT3}, v{vAo}")
    a(f"v_add_u32 v{vAm}, {O_MLA}, v{vAm}")
    a(f"s_lshl_b32 s{sT2}, s{sV}, 5")
    a(f"v_lshlrev_b32 v{vS2r}, 3, v{vRow}")
    a(f"v_add_u32 v{vS2r}, s{sT2}, v{vS2r}")
    vS, vMm = T0, T0 + 1
    a(f"v_lshrrev_b32 v{vS}, 1, v{vLane}")
    a(f"v_and_b32 v{vS}, 7, v{vS}")
    a(f"v_and_b32 v{vMm}, 1, v{vLane}")
    a(f"v_lshlrev_b32 v{vR1}, 10, v{vS}")
    a(f"v_lshl_add_u32 v{vR1}, v{vRow}, 8, v{vR1}")
    a(f"v_lshl_add_u32 v{vR1}, v{vMm}, 4, v{vR1}")
    a(f"v_add_u32 v{vR1}, s{sT2}, v{vR1}")
    a(f"v_lshlrev_b32 v{vR2}, 5, v{vS}")
    a(f"v_lshl_add_u32 v{vR2}, v{vRow}, 3, v{vR2}")
    a(f"v_cmp_gt_u32 s[{sS2}:{sS2+1}], 2, v{vS}")
    a(f"s_lshl_b32 s{sT0}, s{sV}, 8")
    a(f"v_lshlrev_b32 v{vO1}, 5, v{vRow}")
    a(f"v_lshl_add_u32 v{vO1}, v{vMm}, 4, v{vO1}")
    a(f"v_add_u32 v{vO1}, s{sT0}, v{vO1}")
    a(f"v_lshlrev_b32 v{vO2}, 5, v{vBank}")
    a(f"v_lshl_add_u32 v{vO2}, v{vRow}, 2, v{vO2}")
    a(f"v_add_u32 v{vO2}, s{sT0}, v{vO2}")
    a(f"s_and_b32 s{sT0}, s{sW}, 7")
    a(f"s_lshr_b32 s{sT1}, s{sW}, 3")
    a(f"s_and_b32 s{sT1}, s{sT1}, 7")
    a(f"s_lshr_b32 s{sT2}, s{sT0}, 1")
    a(f"s_lshl_b32 s{sT2}, s{sT2}, 19")
    a(f"s_lshl_b32 s{sT3}, s{sB}, 9")
    a(f"s_add_u32 s{sT2}, s{sT2}, s{sT3}")
    a(f"s_and_b32 s{sT3}, s{sT0}, 1")
    a(f"s_lshl_b32 s{sT3}, s{sT3}, 8")
    a(f"s_add_u32 s{sT2}, s{sT2}, s{sT3}")
    a(f"s_lshl_b32 s{sT3}, s{sT1}, 5")
    a(f"s_add_u32 s{sT2}, s{sT2}, s{sT3}")
    a(f"v_lshlrev_b32 v{vF}, 13, v{vLane}")
    a(f"v_add_u32 v{vF}, s{sT2}, v{vF}")
    a(f"v_and_b32 v{vT}, 1, v{vRow}")
    a(f"v_lshlrev_b32 v{vT}, 1, v{vT}")
    a(f"v_lshrrev_b32 v{vT+1}, 1, v{vRow}")
    a(f"v_add_u32 v{vT}, v{vT}, v{vT+1}")
    a(f"v_lshlrev_b32 v{vT}, 1, v{vT}")
    a(f"s_lshl_b32 s{sT2}, s{sB}, 10")
    a(f"s_lshl_b32 s{sT0}, s{sT0}, 7")
    a(f"s_lshl_b32 s{sT1}, s{sT1}, 4")
    a(f"s_add_u32 s{sT2}, s{sT2}, s{sT0}")
    a(f"s_add_u32 s{sT2}, s{sT2}, s{sT1}")
    a(f"v_add_u32 v{vOut}, s{sT2}, v{vT}")
    a(f"s_and_b32 s{sT0}, s{sW}, 0xf8")
    a(f"s_add_u32 s{sT0}, s{sT0}, s{sV}")
    a(f"s_lshl_b32 s{sT0}, s{sT0}, 8")
    a(f"s_add_u32 s{sCntB}, s{sT0}, {WS_CNT}")
    c("the q_B operand must be in LDS (its flag also says that every workgroup has cleared its slots and counters)")
    a(f"s_mov_b32 s{sSpin}, 0")
    a(f"v_mov_b32 v{vT}, {L_FLAG}")
    a.label(f"{N}_fl")
    a(f"ds_read_b32 v{vT+1}, v{vT}")
    a("s_waitcnt lgkmcnt(0)")
    a(f"v_readfirstlane_b32 s{sT0}, v{vT+1}")
    a(f"s_cmp_eq_u32 s{sT0}, 1")
    a(f"s_cbranch_scc1 {N}_fld")
    spin_tail(f"{N}_fl", f"{N}_fld")
    a.label(f"{N}_fld")
    a(f"ds_read_b128 {vr(QB,4)}, v{vVoff} offset:{L_QBOP}")
    a("s_waitcnt lgkmcnt(0)")
    top_static(); body(0, R_KA, R_VA)
    top_static(); sclaim(); body(1, R_KA, R_VA)
    c("from here on the issue side runs on branch B; kinds: 1 = A tile, 2 = first B tile, 3 = B tile, 0 = none")
    for k in range(3):
        a(f"s_mov_b32 s{R_IK+k}, s{R_KB+k}")
        a(f"s_mov_b32 s{R_IV+k}, s{R_VB+k}")
    a(f"s_mov_b32 s{sKc}, 2")
    a(f"s_mov_b32 s{sRem}, 0")
    a(f"s_mov_b32 s{sK0}, 1")
    a(f"s_mov_b32 s{sK1}, 1")
    a(f"s_mov_b32 s{sBst}, 0")
    a("s_mov_b64 vcc, 0")
    a.label(f"{N}_dloop")
    for st in range(2):
        top_dyn(st); body(st, R_IK, R_IV)
        a(f"s_mov_b32 s{sK0}, s{sK1}")
        a(f"s_mov_b32 s{sK1}, s{sK2}")
        a(f"s_cmp_eq_u32 s{sK0}, 0")
        a(f"s_cbranch_scc1 {N}_dend")
    a(f"s_branch {N}_dloop")
    for st in range(2): top_dyn_cold(st)
    a.label(f"{N}_dend")
    a(f"s_cmp_eq_u32 s{sBst}, 0")
    a(f"s_cbranch_scc0 {N}_dend2")
    state_switch()
    a.label(f"{N}_dend2")
    a("s_nop 7")
    stamp(3)

    c("=== tail: per-wave softmax states to LDS")
    a(f"ds_write_b128 v{vW1}, {vr(ACC,4)} offset:{L_BM}")
    a(f"ds_write_b128 v{vW1}, {vr(ACC+4,4)} offset:{L_BM+1024}")
    a(f"ds_write_b128 v{vW1}, {vr(ACCA,4)} offset:{L_AM}")
    a(f"ds_write_b128 v{vW1}, {vr(ACCA+4,4)} offset:{L_AM+1024}")
    for perm in ('v_permlane16_swap_b32', 'v_permlane32_swap_b32'):
        a(f"v_mov_b32 v{T0}, v{vL}")
        a(f"v_mov_b32 v{T0+1}, v{vLA}")
        a(f"{perm} v{vL}, v{T0}")
        a(f"{perm} v{vLA}, v{T0+1}")
        a(f"v_add_f32 v{vL}, v{vL}, v{T0}")
        a(f"v_add_f32 v{vLA}, v{vLA}, v{T0+1}")
    a(f"ds_write_b64 v{vW2}, {vr(vM,2)} offset:{L_MLB}")
    a(f"ds_write_b64 v{vW2}, {vr(vMA,2)} offset:{L_MLA}")
    a("s_waitcnt lgkmcnt(0)")
    a("s_barrier")
    stamp(4)
    c("waves 0,1 merge the four B heads, wave 2 (32 lanes) merges A; results are published (slots were all-ones)")
    a(f"s_cmp_lt_u32 s{sV}, 3")
    a(f"s_cbranch_scc0 {N}_nomerge")
    a(f"s_mov_b64 exec, s[{sMrg}:{sMrg+1}]")
    MLr, AC = 172, 188
    for vv in range(8):
        a(f"ds_read_b64 {vr(MLr+2*vv,2)}, v{vML} offset:{vv*32}")
    for vv in range(8):
        a(f"ds_read_b128 {vr(AC+4*vv,4)}, v{vRA} offset:{vv*2048}")
    a("s_waitcnt lgkmcnt(8)")
    Ms = 220
    a(f"v_max3_f32 v{Ms}, v{MLr}, v{MLr+2}, v{MLr+4}")
    a(f"v_max3_f32 v{Ms+1}, v{MLr+6}, v{MLr+8}, v{MLr+10}")
    a(f"v_max3_f32 v{Ms}, v{Ms}, v{MLr+12}, v{MLr+14}")
    a(f"v_max_f32 v{Ms}, v{Ms}, v{Ms+1}")
    for vv in range(8): a(f"v_sub_f32 v{MLr+2*vv}, v{MLr+2*vv}, v{Ms}")
    for vv in range(8): a(f"v_mul_f32 v{MLr+2*vv}, s{sL2E}, v{MLr+2*vv}")
    for vv in range(8): a(f"v_exp_f32 v{MLr+2*vv}, v{MLr+2*vv}")
    a("s_waitcnt lgkmcnt(0)")
    O4 = 224
    for r in range(4): a(f"v_mul_f32 v{O4+r}, v{MLr}, v{AC+r}")
    for vv in range(1, 8):
        for r in range(4): a(f"v_fma_f32 v{O4+r}, v{MLr+2*vv}, v{AC+4*vv+r}, v{O4+r}")
    a(f"buffer_store_dwordx4 {vr(O4,4)}, v{vG}, {sr(R_WS,4)}, 0 offen sc1")
    a(f"v_mul_f32 v{Ms+1}, v{MLr}, v{MLr+1}")
    for vv in range(1, 8): a(f"v_fma_f32 v{Ms+1}, v{MLr+2*vv}, v{MLr+2*vv+1}, v{Ms+1}")
    a(f"s_mov_b64 exec, s[{sMl0}:{sMl0+1}]")
    a(f"buffer_store_dwordx2 {vr(Ms,2)}, v{vGM}, {sr(R_WS,4)}, 0 offen sc1")
    a("s_mov_b64 exec, -1")
    stamp(5)
    a("s_nop 7")
    a.label(f"{N}_nomerge")

    c("=== hand-off 1: wave v fetches split v of the four batches (B) and, for v < 2, half v (A); any all-ones word = not yet")
    OB4, MLB2, OA4, MLA2 = 180, 184, 188, 192
    PB = RING
    a(f"s_lshl_b32 s{sT2}, s{sV}, 10")
    a(f"v_add_u32 v{T0}, s{sT2}, v{vVoff}")
    a(f"s_mov_b32 s{sSpin}, 0")
    a("s_waitcnt vmcnt(0)")
    for k in range(4): a(f"v_mov_b32 v{PB+8+k}, 0")
    a(f"v_mov_b32 v{PB+12}, 0")
    a(f"v_mov_b32 v{PB+13}, 0")
    if cfg.natwait:
        c("polling starts once this workgroup's own partials are acknowledged")
        a("s_barrier")
    elif cfg.pre1: a(f"s_sleep {cfg.pre1}")
    a.label(f"{N}_p1")
    a(f"buffer_load_dwordx4 {vr(PB,4)}, v{vBo}, {sr(R_WS,4)}, 0 offen sc1")
    a(f"buffer_load_dwordx2 {vr(PB+4,2)}, v{vBm}, {sr(R_WS,4)}, 0 offen sc1")
    a(f"s_cmp_lt_u32 s{sV}, 2")
    a(f"s_cbranch_scc0 {N}_p1n")
    a(f"buffer_load_dwordx4 {vr(PB+8,4)}, v{vAo}, {sr(R_WS,4)}, 0 offen sc1")
    a(f"buffer_load_dwordx2 {vr(PB+12,2)}, v{vAm}, {sr(R_WS,4)}, 0 offen sc1")
    a.label(f"{N}_p1n")
    a("s_waitcnt vmcnt(0)")
    a(f"v_max3_u32 v{vT}, v{PB}, v{PB+1}, v{PB+2}")
    a(f"v_max3_u32 v{vT+1}, v{PB+3}, v{PB+4}, v{PB+5}")
    a(f"v_max3_u32 v{vT}, v{vT}, v{PB+8}, v{PB+9}")
    a(f"v_max3_u32 v{vT+1}, v{vT+1}, v{PB+10}, v{PB+11}")
    a(f"v_max3_u32 v{vT}, v{vT}, v{PB+12}, v{PB+13}")
    a(f"v_max_u32 v{vT}, v{vT}, v{vT+1}")
    a(f"v_cmp_eq_u32 vcc, -1, v{vT}")
    a("s_cmp_eq_u64 vcc, 0")
    a(f"s_cbranch_scc1 {N}_p1d")
    spin_tail(f"{N}_p1", f"{N}_p1d", cfg.sleep1)
    a.label(f"{N}_p1d")
    a(f"ds_write_b128 v{T0}, {vr(PB,4)} offset:{L_G1B}")
    a(f"ds_write_b64 v{vS2r}, {vr(PB+4,2)} offset:{L_G1MB}")
    a(f"s_cmp_lt_u32 s{sV}, 2")
    a(f"s_cbranch_scc0 {N}_g1n")
    a(f"ds_write_b128 v{T0}, {vr(PB+8,4)} offset:{L_G1A}")
    a(f"ds_write_b64 v{vS2r}, {vr(PB+12,2)} offset:{L_G1MA}")
    a.label(f"{N}_g1n")
    stamp(6)
    for k in range(4): a(f"v_mov_b32 v{OA4+k}, 0")
    a(f"v_mov_b32 v{MLA2}, 0xff7fffff")
    a(f"v_mov_b32 v{MLA2+1}, 0")
    a("s_waitcnt lgkmcnt(0)")
    a("s_barrier")
    c("each wave takes its 8 dims: lane (row = batch, split = (lane>>1)&7, m = lane&1); softmax-combine the splits")
    a(f"ds_read_b128 {vr(OB4,4)}, v{vR1} offset:{L_G1B}")
    a(f"ds_read_b64 {vr(MLB2,2)}, v{vR2} offset:{L_G1MB}")
    a(f"s_mov_b64 exec, s[{sS2}:{sS2+1}]")
    a(f"ds_read_b128 {vr(OA4,4)}, v{vR1} offset:{L_G1A}")
    a(f"ds_read_b64 {vr(MLA2,2)}, v{vR2} offset:{L_G1MA}")
    a("s_mov_b64 exec, -1")
    GG = 204
    a(f"v_lshlrev_b32 v{vT}, 3, v{vRow}")
    a(f"ds_read_b64 {vr(GG,2)}, v{vT} offset:{L_G}")
    a("s_waitcnt lgkmcnt(0)")
    pairs = ((OB4, MLB2, 196, 197), (OA4, MLA2, 198, 199))
    for (o4, ml, Mx, sc) in pairs: a(f"v_max_f32_dpp v{Mx}, v{ml}, v{ml} row_ror:8 {FULL}")
    for n in (4, 2):
        for (o4, ml, Mx, sc) in pairs: a(f"v_max_f32_dpp v{Mx}, v{Mx}, v{Mx} row_ror:{n} {FULL}")
    for (o4, ml, Mx, sc) in pairs: a(f"v_sub_f32 v{sc}, v{ml}, v{Mx}")
    for (o4, ml, Mx, sc) in pairs: a(f"v_mul_f32 v{sc}, s{sL2E}, v{sc}")
    for (o4, ml, Mx, sc) in pairs: a(f"v_exp_f32 v{sc}, v{sc}")
    for (o4, ml, Mx, sc) in pairs: a(f"v_mul_f32 v{ml+1}, v{ml+1}, v{sc}")
    for (o4, ml, Mx, sc) in pairs:
        for r in range(4): a(f"v_mul_f32 v{o4+r}, v{o4+r}, v{sc}")
    for n in (8, 4, 2):
        for (o4, ml, Mx, sc) in pairs:
            for r in [ml + 1] + [o4 + k for k in range(4)]:
                a(f"v_add_f32_dpp v{r}, v{r}, v{r} row_ror:{n} {FULL}")
    for (o4, ml, Mx, sc) in pairs: a(f"v_rcp_f32 v{sc}, v{ml+1}")
    for (o4, ml, Mx, sc) in reversed(pairs):
        for r in range(4): a(f"v_mul_f32 v{o4+r}, v{o4+r}, v{sc}")
    a(f"ds_write_b128 v{vO1}, {vr(OA4,4)} offset:{L_OT}")
    a(f"ds_write_b128 v{vO1}, {vr(OB4,4)} offset:{L_OT+128}")
    XO = 200
    a("s_waitcnt lgkmcnt(0)")
    a(f"ds_read_b32 v{XO}, v{vO2} offset:{L_OT}")
    a(f"ds_read_b32 v{XO+1}, v{vO2} offset:{L_OT+16}")
    a(f"ds_read_b32 v{XO+2}, v{vO2} offset:{L_OT+128}")
    a(f"ds_read_b32 v{XO+3}, v{vO2} offset:{L_OT+144}")
    a("s_waitcnt lgkmcnt(0)")
    for k in range(4): a(f"v_cvt_pk_bf16_f32 v{XO+k}, v{XO+k}, v{XO+k}")
    c("o (bf16) times the prefetched wo rows, gate mix, partial y to LDS")
    YA, YB = DD, DD + 8
    for k, (wo, acc) in enumerate(((WOA, YA), (WOB, YB), (WOA + 4, YA), (WOB + 4, YB))):
        win_from(XO + (0, 2, 1, 3)[k])
        pv(wo, acc, acc + 4, k < 2)
    for k in range(8): a(f"v_mul_f32 v{YA+k}, v{YA+k}, v{GG}")
    for k in range(8): a(f"v_fma_f32 v{YA+k}, v{YB+k}, v{GG+1}, v{YA+k}")
    a(f"ds_write_b128 v{vW1}, {vr(YA,4)} offset:{L_YP}")
    a(f"ds_write_b128 v{vW1}, {vr(YA+4,4)} offset:{L_YP+1024}")
    a("s_waitcnt lgkmcnt(0)")
    a("s_barrier")
    stamp(7)
    c("waves 0,1: sum the 8 partial y and publish; final reduction of 8 output columns by one wave; the others are done")
    a(f"s_cmp_lt_u32 s{sV}, 2")
    a(f"s_cbranch_scc0 {N}_noy")
    for vv in range(8):
        a(f"ds_read_b128 {vr(AC+4*vv,4)}, v{vLA_} offset:{L_YP + vv*2048}")
    for step in (4, 2, 1):
        if step == 4: a("s_waitcnt lgkmcnt(0)")
        for g in range(step):
            for r in range(4):
                a(f"v_add_f32 v{AC+4*g+r}, v{AC+4*g+r}, v{AC+4*(g+step)+r}")
    a(f"buffer_store_dwordx4 {vr(AC,4)}, v{vGy}, {sr(R_WS,4)}, 0 offen offset:{O_Y} sc1")
    stamp(8)
    if cfg.natwait:
        a(f"s_cmp_eq_u32 s{sV}, 0")
        a(f"s_cbranch_scc0 {N}_done")
        c("wave 0 goes on to the final reduction once its own part of y is acknowledged")
        a("s_waitcnt vmcnt(0)")
        a(f"s_branch {N}_fin")
        a.label(f"{N}_noy")
        a(f"s_branch {N}_done")
        a.label(f"{N}_fin")
    else:
        a(f"s_branch {N}_done")
        a.label(f"{N}_noy")
        a(f"s_cmp_eq_u32 s{sV}, 2")
        a(f"s_cbranch_scc0 {N}_done")
    c("=== hand-off 2: lane i fetches 8 columns of unit 64*cg + i")
    F = 180
    a(f"s_mov_b32 s{sSpin}, 0")
    if cfg.pre2 and not cfg.natwait: a(f"s_sleep {cfg.pre2}")
    a.label(f"{N}_p2")
    a(f"buffer_load_dwordx4 {vr(F,4)}, v{vF}, {sr(R_WS,4)}, 0 offen offset:{O_Y} sc1")
    a(f"buffer_load_dwordx4 {vr(F+4,4)}, v{vF}, {sr(R_WS,4)}, 0 offen offset:{O_Y+16} sc1")
    a("s_waitcnt vmcnt(0)")
    a(f"v_max3_u32 v{vT}, v{F}, v{F+1}, v{F+2}")
    a(f"v_max3_u32 v{vT+1}, v{F+3}, v{F+4}, v{F+5}")
    a(f"v_max3_u32 v{vT}, v{vT}, v{F+6}, v{F+7}")
    a(f"v_max_u32 v{vT}, v{vT}, v{vT+1}")
    a(f"v_cmp_eq_u32 vcc, -1, v{vT}")
    a("s_cmp_eq_u64 vcc, 0")
    a(f"s_cbranch_scc1 {N}_p2d")
    spin_tail(f"{N}_p2", f"{N}_p2d", cfg.sleep2)
    a.label(f"{N}_p2d")
    stamp(9)
    for k in range(4): a(f"v_permlane32_swap_b32 v{F+2*k}, v{F+2*k+1}")
    for k in range(4): a(f"v_add_f32 v{F+2*k}, v{F+2*k}, v{F+2*k+1}")
    a(f"v_permlane16_swap_b32 v{F}, v{F+2}")
    a(f"v_permlane16_swap_b32 v{F+4}, v{F+6}")
    a(f"v_add_f32 v{F}, v{F}, v{F+2}")
    a(f"v_add_f32 v{F+4}, v{F+4}, v{F+6}")
    for n in (8, 4, 2, 1):
        a(f"v_add_f32_dpp v{F}, v{F}, v{F} row_ror:{n} {FULL}")
        a(f"v_add_f32_dpp v{F+4}, v{F+4}, v{F+4} row_ror:{n} {FULL}")
    a(f"v_cvt_pk_bf16_f32 v{F}, v{F}, v{F+4}")
    a("s_mov_b32 exec_lo, 0x00010001")
    a("s_mov_b32 exec_hi, 0x00010001")
    a(f"buffer_store_short v{F}, v{vOut}, {sr(R_OUT,4)}, 0 offen {cfg.outfl}".rstrip())
    a(f"buffer_store_short_d16_hi v{F}, v{vOut}, {sr(R_OUT,4)}, 0 offen offset:8 {cfg.outfl}".rstrip())
    a("s_mov_b64 exec, -1")
    stamp(10)
    a(f"s_branch {N}_done")

    a.label(f"{N}_job0")
    c("publisher: its clears and q_B partial are older than its last 8 loads, so they are complete: count this workgroup in")
    is_role(R_PUB, f"{N}_jobret")
    a("s_waitcnt vmcnt(8)")
    a(f"s_mov_b32 s{sT0}, 1")
    a(f"s_atomic_add s{sT0}, s[{P_DBG}:{P_DBG+1}], 0x0")
    a("s_waitcnt lgkmcnt(0)")
    stamp(19)
    a(f"s_branch {N}_jobret")
    a.label(f"{N}_job2")
    c("gate wave: g = bf16(sigmoid(bf16(sum bf16(x*gate_w)))), 1-g in bf16 -> LDS")
    is_role(R_GATE, f"{N}_jobret")
    GX, GW = TMP, TMP + 16
    a(f"v_lshlrev_b32 v{vT+1}, 6, v{vC}")
    a(f"v_lshl_add_u32 v{vT}, v{vRow}, 10, v{vT+1}")
    for k in range(4):
        a(f"buffer_load_dwordx4 {vr(GX+4*k,4)}, v{vT}, {sr(R_X,4)}, 0 offen offset:{16*k}")
        a(f"buffer_load_dwordx4 {vr(GW+4*k,4)}, v{vT+1}, {sr(R_GW,4)}, 0 offen offset:{16*k}")
    a("s_waitcnt vmcnt(0)")
    z, t0, t1, t2, t3 = TMP + 32, TMP + 33, TMP + 34, TMP + 35, TMP + 36
    a(f"v_mov_b32 v{z}, 0")
    for k in range(16):
        a(f"v_lshlrev_b32 v{t0}, 16, v{GX+k}")
        a(f"v_lshlrev_b32 v{t1}, 16, v{GW+k}")
        a(f"v_and_b32 v{t2}, 0xffff0000, v{GX+k}")
        a(f"v_and_b32 v{t3}, 0xffff0000, v{GW+k}")
        a(f"v_mul_f32 v{t0}, v{t0}, v{t1}")
        a(f"v_mul_f32 v{t2}, v{t2}, v{t3}")
        a(f"v_cvt_pk_bf16_f32 v{t0}, v{t0}, v{t2}")
        a(f"v_lshlrev_b32 v{t1}, 16, v{t0}")
        a(f"v_and_b32 v{t0}, 0xffff0000, v{t0}")
        a(f"v_add_f32 v{z}, v{z}, v{t1}")
        a(f"v_add_f32 v{z}, v{z}, v{t0}")
    for n in (8, 4, 2, 1):
        a(f"v_add_f32_dpp v{z}, v{z}, v{z} row_ror:{n} {FULL}")
    a(f"v_cvt_pk_bf16_f32 v{z}, v{z}, v{z}")
    a(f"v_and_b32 v{z}, 0xffff0000, v{z}")
    a(f"v_mul_f32 v{z}, s{sNL2E}, v{z}")
    a(f"v_exp_f32 v{z}, v{z}")
    a(f"v_add_f32 v{z}, 1.0, v{z}")
    a(f"v_rcp_f32 v{z}, v{z}")
    g0 = TMP + 38
    a(f"v_cvt_pk_bf16_f32 v{g0}, v{z}, v{z}")
    a(f"v_and_b32 v{g0}, 0xffff0000, v{g0}")
    a(f"v_sub_f32 v{g0+1}, 1.0, v{g0}")
    a(f"v_cvt_pk_bf16_f32 v{g0+1}, v{g0+1}, v{g0+1}")
    a(f"v_and_b32 v{g0+1}, 0xffff0000, v{g0+1}")
    a(f"v_lshlrev_b32 v{vT}, 3, v{vRow}")
    a(f"ds_write_b64 v{vT}, {vr(g0,2)} offset:{L_G}")
    a("s_waitcnt lgkmcnt(0)")
    a("s_nop 7")
    a(f"s_branch {N}_jobret")
    a.label(f"{N}_jobp")
    c("gather wave: look at the arrival counter (result is used two tiles later)")
    is_role(R_GATH, f"{N}_jobret")
    a(f"v_mov_b32 v{vT}, 0")
    a(f"global_load_dword v{vPoll}, v{vT}, s[{P_DBG}:{P_DBG+1}] sc1")
    a(f"s_branch {N}_jobret")
    a.label(f"{N}_jobg")
    c("gather wave: once all 256 workgroups have arrived, sum the 8 partials of the group's four q_B heads into LDS")
    is_role(R_GATH, f"{N}_jobret")
    a(f"s_mov_b32 s{sSpin}, 0")
    a("s_waitcnt vmcnt(16)")
    a.label(f"{N}_c0")
    a(f"v_readfirstlane_b32 s{sT0}, v{vPoll}")
    a(f"s_cmp_ge_u32 s{sT0}, 256")
    a(f"s_cbranch_scc1 {N}_c0d")
    a(f"s_add_u32 s{sSpin}, s{sSpin}, 1")
    a(f"s_cmp_gt_u32 s{sSpin}, {cfg.SPIN}")
    a(f"s_cbranch_scc1 {N}_c0d")
    a("s_sleep 16")
    a(f"v_mov_b32 v{vT}, 0")
    a(f"global_load_dword v{vPoll}, v{vT}, s[{P_DBG}:{P_DBG+1}] sc1")
    a("s_waitcnt vmcnt(0)")
    a(f"s_branch {N}_c0")
    a.label(f"{N}_c0d")
    stamp(15)
    a(f"s_lshr_b32 s{sT0}, s{sW}, 3")
    a(f"s_and_b32 s{sT0}, s{sT0}, 7")
    a(f"s_lshl_b32 s{sT0}, s{sT0}, 16")
    a(f"s_lshl_b32 s{sT1}, s{sB}, 9")
    a(f"s_add_u32 s{sT0}, s{sT0}, s{sT1}")
    a(f"s_add_u32 s{sT0}, s{sT0}, {WS_QB}")
    a(f"v_lshlrev_b32 v{vT}, 14, v{vBank}")
    a(f"v_lshl_add_u32 v{vT}, v{vRow}, 7, v{vT}")
    a(f"v_lshl_add_u32 v{vT}, v{vQ}, 5, v{vT}")
    a(f"v_add_u32 v{vT}, s{sT0}, v{vT}")
    S2 = TMP
    for sl in range(8):
        a(f"s_mov_b32 s{sT1}, {(sl // 2) * 4096}")
        for m in range(2):
            a(f"buffer_load_dwordx4 {vr(S2 + 8*sl + 4*m, 4)}, v{vT}, {sr(R_WS,4)}, s{sT1} offen offset:{(sl % 2) * 2048 + 16*m} sc1")
    a("s_waitcnt vmcnt(0)")
    tree_sum8(S2)
    for k in range(4):
        a(f"v_cvt_pk_bf16_f32 v{S2+8+k}, v{S2+2*k}, v{S2+2*k+1}")
    a(f"ds_write_b128 v{vVoff}, {vr(S2+8,4)} offset:{L_QBOP}")
    a("s_waitcnt lgkmcnt(0)")
    a(f"v_mov_b32 v{vT}, {L_FLAG}")
    a(f"ds_write_b32 v{vT}, v{vOne}")
    a("s_waitcnt lgkmcnt(0)")
    stamp(18)
    a("s_nop 7")
    a(f"s_branch {N}_jobret")

    a.label(f"{N}_done")
    a("s_endpgm")
    body_text, npad = a.text()
    kd = f"""
.section .rodata,"a"
.p2align 6
.amdhsa_kernel {N}
  .amdhsa_next_free_vgpr {NVGPR}
  .amdhsa_next_free_sgpr 102
  .amdhsa_accum_offset {NVGPR}
  .amdhsa_group_segment_fixed_size 0
  .amdhsa_kernarg_size 112
  .amdhsa_user_sgpr_count 2
  .amdhsa_user_sgpr_kernarg_segment_ptr 1
  .amdhsa_system_sgpr_workgroup_id_x 1
  .amdhsa_float_denorm_mode_32 3
.end_amdhsa_kernel
"""
    return body_text, kd, npad

HEADER = open('gated_mix__mha_block_cached__gqa_block_cached__decode.s.ref').read().split('; Override launch geometry')[0]


DESC = """;
;
"""

def full_file(cfg):
    body, kd, npad = build(cfg)
    s = HEADER
    s += f"; @launch grid=(256,1,1) block=(512,1,1) lds={LDS_BYTES}\n"
    s += DESC
    s += '.amdgcn_target "amdgcn-amd-amdhsa--gfx950"\n.text\n'
    s += body + "\n" + kd
    return s, npad

if __name__ == '__main__':
    cfg = Cfg()
    out = sys.argv[1]
    for kv in sys.argv[2:]:
        k, v = kv.split('=', 1)
        cur = getattr(cfg, k)
        setattr(cfg, k, type(cur)(int(v, 0)) if isinstance(cur, (bool, int)) else v)
    s, npad = full_file(cfg)
    open(out, 'w').write(s)
    print('written', out, len(s), 'bytes; nop pads', npad)
```

```python
import sys, os
sys.path.insert(0, os.path.dirname(os.path.abspath(__file__)))
from asmlib import Asm

KNAME = 'gated_mix__mha_block_cached__gqa_block_cached__decode_kernel'

class Cfg:
    D = 3
    PD = 3
    D0 = 0
    N0 = 2
    I0 = 8
    SPIN = 200000
    J_POLL = 4
    stopc = 20
    pre1 = 16; sleep1 = 8; pre2 = 22; sleep2 = 4
    PX = 8
    natwait = True
    outfl = ''
    diag = False; tlog = False; xorid = 0
    name = KNAME

sRem, sStride = 0, 1
sW, sV = 2, 3
P_X, P_KA, P_VA, P_WQA, P_WOA, P_BX, P_KB, P_VB = 4, 6, 8, 10, 12, 14, 16, 18
P_WQB, P_WOB, P_GW, P_OUT = 20, 22, 24, 26
P_DBG, P_WS = 28, 30
R_IK, R_IV = 4, 8
sMrg, sMl0, sS2 = 12, 14, 16
sPhase, sBase, sKc, sBst = 18, 20, 21, 23
sK0, sK1, sK2 = 24, 25, 26
sLog = 27
R_KA, R_VA, R_KB, R_VB = 32, 36, 40, 44
R_WQA, R_WQB, R_WOA, R_WOB = 48, 52, 56, 60
R_X, R_GW, R_WS, R_OUT = 64, 68, 72, 76
sB, sOff, sJ, sClaim = 80, 81, 82, 83
sT0, sT1, sT2, sT3 = 85, 86, 87, 88
sBbase = 89
sScale, sL2E, sNL2E = 90, 91, 92
sSpin, sSlot, sIdx = 93, 94, 95
sSelLo, sSelHi = 96, 97
sStamp = 98
sCntB = 101

vLane = 0
vKoff, vVoff, vKcur, vVcur = 1, 2, 3, 4
vMask0, vMask1 = 5, 6
vPoll, vOne = 7, 8
vRow, vBank, vQ, vC = 10, 11, 12, 13
vT = 14
RING = 16
QOP, QB = 80, 84
ACC, ACCA = 88, 96
vM, vL, vMA, vLA = 104, 105, 106, 107
DD = 108
Y = 124
PP = 128
WIN = 132
vAl, vAT, vNM, vMn = 138, 139, 140, 141
T0 = 142
WOA, WOB = 148, 156
TMP = 164
vW1, vW2, vRA, vML, vG, vGM, vBo, vBm, vAo, vAm, vS2r, vR1, vR2, vO1, vO2, vLA_, vGy, vF, vOut = range(228, 247)
NVGPR = 256

L_QBOP = 0
L_MLB, L_MLA = 1024, 1280
L_OT = 1536
L_G = 3584
L_FLAG = 3648
L_QA, L_QBP = 4096, 20480
L_BM, L_AM = 36864, 53248
L_YP = L_QA
L_G1B, L_G1A, L_G1MB, L_G1MA = L_QBP, L_QBP + 8192, L_QBP + 10240, L_QBP + 10496
LDS_BYTES = 69632

O_Y, O_OB, O_OA, O_MLB, O_MLA = 0, 2048, 4096, 4608, 4640
WS_QB = 2 << 20
WS_CNT = 3 << 20
WS_STAMP = (3 << 20) + (512 << 10)
WS_TLOG = 4 << 20

def vr(a, n): return f"v[{a}:{a+n-1}]"
def sr(a, n): return f"s[{a}:{a+n-1}]"
def kslot(st, u): return RING + 32 * st + 4 * u
def vslot(st, u): return RING + 32 * st + 16 + 4 * u
MFMA = 'v_mfma_f32_16x16x32_bf16'
FULL = 'row_mask:0xf bank_mask:0xf'
NS = 32

def build(cfg):
    a = Asm()
    c = a.comment
    N = cfg.name
    D = cfg.D
    WS_BYTES = (8 << 20) if (cfg.diag or cfg.tlog) else (4 << 20)
    def stamp(i):
        if not cfg.diag: return
        a(f"s_memrealtime s[{sStamp}:{sStamp+1}]")
        a("s_waitcnt lgkmcnt(0)")
        a(f"v_mov_b32 v{vT}, s{sStamp}")
        a(f"s_lshl_b32 s{sT3}, s{sW}, 3")
        a(f"s_add_u32 s{sT3}, s{sT3}, s{sV}")
        a(f"s_lshl_b32 s{sT3}, s{sT3}, 7")
        a(f"s_add_u32 s{sT3}, s{sT3}, {WS_STAMP + 4*i}")
        a(f"v_mov_b32 v{vT+1}, s{sT3}")
        a(f"buffer_store_dword v{vT}, v{vT+1}, {sr(R_WS,4)}, 0 offen")
    def tlog():
        if not cfg.tlog: return
        a(f"s_memrealtime s[{sStamp}:{sStamp+1}]")
        a("s_waitcnt lgkmcnt(0)")
        a(f"v_mov_b32 v{vT}, s{sStamp}")
        a(f"v_mov_b32 v{vT+1}, s{sLog}")
        a("s_mov_b64 exec, 1")
        a(f"buffer_store_dword v{vT}, v{vT+1}, {sr(R_WS,4)}, 0 offen")
        a("s_mov_b64 exec, -1")
        a(f"s_add_u32 s{sLog}, s{sLog}, 4")
    def srd(r, p, size):
        a(f"s_mov_b32 s{r}, s{p}")
        a(f"s_and_b32 s{r+1}, s{p+1}, 0xffff")
        a(f"s_mov_b32 s{r+2}, {hex(size)}")
        a(f"s_mov_b32 s{r+3}, 0x20000")
    def pv(data, acc0, acc1, first):
        c0 = '0' if first else vr(acc0, 4)
        c1 = '0' if first else vr(acc1, 4)
        a(f"{MFMA} {vr(acc0,4)}, {vr(WIN+2,4)}, {vr(data,4)}, {c0}")
        a(f"{MFMA} {vr(acc1,4)}, {vr(WIN,4)}, {vr(data,4)}, {c1}")
    def win_from(pp):
        a(f"v_and_b32 v{WIN+2}, v{pp}, v{vMask0}")
        a(f"v_and_b32 v{WIN+3}, v{pp}, v{vMask1}")
    def xrow(op, r, t):
        a(f"v_mov_b32 v{t}, v{r}")
        a(f"v_permlane16_swap_b32 v{r}, v{t}")
        a(f"{op} v{r}, v{r}, v{t}")
        a(f"v_mov_b32 v{t}, v{r}")
        a(f"v_permlane32_swap_b32 v{r}, v{t}")
        a(f"{op} v{r}, v{r}, v{t}")
    def spin_tail(lab_loop, lab_done, slp=2):
        a(f"s_add_u32 s{sSpin}, s{sSpin}, 1")
        a(f"s_cmp_gt_u32 s{sSpin}, {cfg.SPIN}")
        a(f"s_cbranch_scc1 {lab_done}")
        if slp: a(f"s_sleep {slp}")
        a(f"s_branch {lab_loop}")
    def tree_sum8(base):
        for step in (4, 2, 1):
            for g in range(step):
                for k in range(8):
                    a(f"v_add_f32 v{base+8*g+k}, v{base+8*g+k}, v{base+8*(g+step)+k}")
    def kv_load(st, isV, u, rk=R_KA, rv=R_VA):
        slot = vslot(st, u) if isV else kslot(st, u)
        r = rv if isV else rk
        va = vVcur if isV else vKcur
        a(f"buffer_load_dwordx4 {vr(slot,4)}, v{va}, {sr(r,4)}, 0 offen offset:{u*1024} nt")
    def pair_of(sp, st):
        if cfg.PX == 1:
            a(f"s_lshr_b32 s{sp}, s{sW}, 1")
        else:
            a(f"s_lshr_b32 s{sp}, s{sW}, 4")
            a(f"s_lshl_b32 s{sp}, s{sp}, 3")
            a(f"s_and_b32 s{st}, s{sW}, 7")
            a(f"s_add_u32 s{sp}, s{sp}, s{st}")
    def is_role(cst, lab_else):
        a(f"s_add_u32 s{sT0}, s{sW}, {cst}")
        a(f"s_and_b32 s{sT0}, s{sT0}, 7")
        a(f"s_cmp_eq_u32 s{sV}, s{sT0}")
        a(f"s_cbranch_scc0 {lab_else}")
    R_PUB, R_GATE, R_GATH = 0, 3, 5

    a(f".globl {N}")
    a(".p2align 8")
    a(f".type {N},@function")
    a.label(N)
    c("workgroups beyond the 256 that carry work leave at once")
    a(f"s_cmp_ge_u32 s{sW}, 256")
    a(f"s_cbranch_scc1 {N}_done")
    if cfg.xorid: a(f"s_xor_b32 s{sW}, s{sW}, {cfg.xorid}")
    if cfg.diag: a("s_memrealtime s[100:101]")
    a(f"s_load_dwordx16 s[4:19], s[0:1], 0")
    a(f"s_load_dwordx8 s[20:27], s[0:1], 64")
    a(f"s_load_dwordx4 s[28:31], s[0:1], 96")
    c("lane = 16*row + 4*bank + q ; c = lane & 15 ; wave id in s3")
    a(f"v_lshrrev_b32 v1, 6, v0")
    a(f"v_and_b32 v{vLane}, 63, v0")
    a(f"v_readfirstlane_b32 s{sV}, v1")
    a(f"v_lshrrev_b32 v{vRow}, 4, v{vLane}")
    a(f"v_lshrrev_b32 v{vBank}, 2, v{vLane}")
    a(f"v_and_b32 v{vBank}, 3, v{vBank}")
    a(f"v_and_b32 v{vQ}, 3, v{vLane}")
    a(f"v_and_b32 v{vC}, 15, v{vLane}")
    a(f"v_lshlrev_b32 v{vVoff}, 4, v{vLane}")
    WQA, WQB, XA, XB = 164, 228, 236, 244
    vWa, vWb, vWo = T0, T0 + 1, T0 + 3
    c("x offsets.  XA: bank*1024 + wave*128 + row*32 ; XB: bank*1024 + slice*128 + wave*16 + row*4")
    a(f"v_lshlrev_b32 v{vT+1}, 10, v{vBank}")
    a(f"s_lshl_b32 s{sT0}, s{sV}, 7")
    a(f"v_lshl_add_u32 v{vT}, v{vRow}, 5, v{vT+1}")
    a(f"v_add_u32 v{vT}, s{sT0}, v{vT}")
    a(f"s_and_b32 s{sT1}, s{sW}, 7")
    a(f"s_lshl_b32 s{sT2}, s{sT1}, 7")
    a(f"s_lshl_b32 s{sT3}, s{sV}, 4")
    a(f"s_add_u32 s{sT2}, s{sT2}, s{sT3}")
    a(f"v_lshl_add_u32 v{vT+1}, v{vRow}, 2, v{vT+1}")
    a(f"v_add_u32 v{vT+1}, s{sT2}, v{vT+1}")
    c("wq lane offsets.  A: 16 rows per DPP row ; B: 2 rows per DPP row ; + c*16")
    a(f"v_lshlrev_b32 v{vWa}, 4, v{vC}")
    a(f"v_lshl_add_u32 v{vWb}, v{vRow}, 14, v{vWa}")
    a(f"v_lshl_add_u32 v{vWo}, v{vRow}, 10, v{vWa}")
    a(f"v_lshl_add_u32 v{vWa}, v{vRow}, 17, v{vWa}")
    c("wq_A scalar offset (s85): wave*64 rows*8192 + head*256, head = (w>>1)&31")
    pair_of(sT0, sT2)
    a(f"s_and_b32 s{sT0}, s{sT0}, 31")
    a(f"s_lshl_b32 s{sT0}, s{sT0}, 8")
    a(f"s_lshl_b32 s{sT2}, s{sV}, 19")
    a(f"s_add_u32 s{sT0}, s{sT0}, s{sT2}")
    c("wq_B scalar offset (s86): (8*slice + wave)*8 rows*8192 + (w>>3)*256, slice = w&7")
    a(f"s_lshl_b32 s{sT1}, s{sT1}, 3")
    a(f"s_add_u32 s{sT1}, s{sT1}, s{sV}")
    a(f"s_lshl_b32 s{sT1}, s{sT1}, 16")
    a(f"s_lshr_b32 s{sT2}, s{sW}, 3")
    a(f"s_lshl_b32 s{sT2}, s{sT2}, 8")
    a(f"s_add_u32 s{sT1}, s{sT1}, s{sT2}")
    a(f"s_lshr_b32 s{sB}, s{sW}, 6")
    a(f"s_lshl_b32 s{sSlot}, s{sW}, 13")
    a("s_waitcnt lgkmcnt(0)")
    srd(R_X, P_X, 4096)
    srd(R_WQA, P_WQA, 4 << 20)
    c("x: group kk of a wave's 16 rows per DPP row is row group (kk + b) & 3, so the four workgroups of an XCD that share")
    c("a head first-touch different weight lines")
    for kk in range(4):
        a(f"s_add_u32 s{sT2}, s{sB}, {kk}")
        a(f"s_and_b32 s{sT2}, s{sT2}, 3")
        a(f"s_lshl_b32 s{sT2}, s{sT2}, 3")
        a(f"buffer_load_dwordx2 {vr(XA+2*kk,2)}, v{vT}, {sr(R_X,4)}, s{sT2} offen")
    a(f"buffer_load_dword v{XB}, v{vT+1}, {sr(R_X,4)}, 0 offen")
    for kk in range(4):
        a(f"s_add_u32 s{sT2}, s{sB}, {kk}")
        a(f"s_and_b32 s{sT2}, s{sT2}, 3")
        a(f"s_lshl_b32 s{sT2}, s{sT2}, 15")
        a(f"s_add_u32 s{sT2}, s{sT2}, s{sT0}")
        for q in range(4):
            i = 4 * kk + q
            a(f"buffer_load_dwordx4 {vr(WQA+4*i,4)}, v{vWa}, {sr(R_WQA,4)}, s{sT2} offen nt")
            if q < 3: a(f"s_add_u32 s{sT2}, s{sT2}, 8192")
    srd(R_WQB, P_WQB, 4 << 20)
    a(f"buffer_load_dwordx4 {vr(WQB,4)}, v{vWb}, {sr(R_WQB,4)}, s{sT1} offen nt")
    a(f"s_add_u32 s{sT1}, s{sT1}, 8192")
    a(f"buffer_load_dwordx4 {vr(WQB+4,4)}, v{vWb}, {sr(R_WQB,4)}, s{sT1} offen nt")
    c("wo rows of this workgroup's output unit: head hU = 4*(w&7) + ((w>>3)&3), column group w>>6, row half (w>>5)&1")
    srd(R_WOA, P_WOA, 4 << 20)
    srd(R_WOB, P_WOB, 4 << 20)
    a(f"s_and_b32 s{sT0}, s{sW}, 7")
    a(f"s_lshl_b32 s{sT0}, s{sT0}, 2")
    a(f"s_lshr_b32 s{sT1}, s{sW}, 3")
    a(f"s_and_b32 s{sT1}, s{sT1}, 3")
    a(f"s_add_u32 s{sT0}, s{sT0}, s{sT1}")
    a(f"s_lshl_b32 s{sT0}, s{sT0}, 4")
    a(f"s_lshr_b32 s{sT1}, s{sW}, 5")
    a(f"s_and_b32 s{sT1}, s{sT1}, 1")
    a(f"s_lshl_b32 s{sT1}, s{sT1}, 3")
    a(f"s_add_u32 s{sT0}, s{sT0}, s{sT1}")
    a(f"s_add_u32 s{sT0}, s{sT0}, s{sV}")
    a(f"s_lshl_b32 s{sT0}, s{sT0}, 13")
    a(f"s_lshr_b32 s{sT1}, s{sW}, 6")
    a(f"s_lshl_b32 s{sT1}, s{sT1}, 8")
    a(f"s_add_u32 s{sT0}, s{sT0}, s{sT1}")
    a(f"s_add_u32 s{sT1}, s{sT0}, 4096")
    a(f"buffer_load_dwordx4 {vr(WOA,4)}, v{vWo}, {sr(R_WOA,4)}, s{sT0} offen nt")
    a(f"buffer_load_dwordx4 {vr(WOA+4,4)}, v{vWo}, {sr(R_WOA,4)}, s{sT1} offen nt")
    a(f"buffer_load_dwordx4 {vr(WOB,4)}, v{vWo}, {sr(R_WOB,4)}, s{sT0} offen nt")
    a(f"buffer_load_dwordx4 {vr(WOB+4,4)}, v{vWo}, {sr(R_WOB,4)}, s{sT1} offen nt")
    srd(R_WS, P_WS, WS_BYTES)
    srd(R_GW, P_GW, 1024)
    extra = [0]
    c("lane constants and descriptors")
    a(f"v_lshlrev_b32 v{vKoff}, 8, v{vBank}")
    a(f"v_lshl_add_u32 v{vKoff}, v{vRow}, 6, v{vKoff}")
    a(f"v_lshl_add_u32 v{vKoff}, v{vQ}, 4, v{vKoff}")
    a(f"v_and_b32 v{vT}, 1, v{vQ}")
    a(f"v_cmp_eq_u32 vcc, 0, v{vT}")
    a(f"v_mov_b32 v{vT}, 0xffff0000")
    a(f"v_mov_b32 v{vT+1}, 0x0000ffff")
    a(f"v_cndmask_b32 v{vT}, v{vT}, v{vT+1}, vcc")
    a(f"v_cmp_gt_u32 vcc, 2, v{vQ}")
    a(f"v_cndmask_b32 v{vMask0}, 0, v{vT}, vcc")
    a(f"v_cndmask_b32 v{vMask1}, v{vT}, 0, vcc")
    for k in (0, 1, 4, 5): a(f"v_mov_b32 v{WIN+k}, 0")
    a(f"v_mov_b32 v{vOne}, 1")
    a(f"s_mov_b32 s{sScale}, 0x3db504f3")
    a(f"s_mov_b32 s{sL2E}, 0x3fb8aa3b")
    a(f"s_mov_b32 s{sNL2E}, 0xbfb8aa3b")
    a(f"s_mov_b32 s{sSelLo}, 0x01000100")
    a(f"s_mov_b32 s{sSelHi}, 0x03020302")
    srd(R_KA, P_KA, 256 << 20)
    srd(R_VA, P_VA, 256 << 20)
    srd(R_KB, P_KB, 64 << 20)
    srd(R_VB, P_VB, 64 << 20)
    srd(R_OUT, P_OUT, 4096)
    if cfg.tlog:
        a(f"s_lshl_b32 s{sLog}, s{sW}, 3")
        a(f"s_add_u32 s{sLog}, s{sLog}, s{sV}")
        a(f"s_lshl_b32 s{sLog}, s{sLog}, 8")
        a(f"s_add_u32 s{sLog}, s{sLog}, {WS_TLOG}")
    for k in range(3):
        a(f"s_mov_b32 s{R_IK+k}, s{R_KA+k}")
        a(f"s_mov_b32 s{R_IV+k}, s{R_VA+k}")
    a(f"s_mov_b32 s{R_IK+3}, 0x20000")
    a(f"s_mov_b32 s{R_IV+3}, 0x20000")
    c("A: this wave streams piece (stripe j, column wave) of the workgroup's 1 MiB: offset w*1M + j*32K + wave*4K")
    if cfg.PX == 1:
        a(f"s_lshl_b32 s{sOff}, s{sW}, 20")
    else:
        pair_of(sOff, sT1)
        a(f"s_lshl_b32 s{sOff}, s{sOff}, 21")
        a(f"s_lshr_b32 s{sT1}, s{sW}, 3")
        a(f"s_and_b32 s{sT1}, s{sT1}, 1")
        a(f"s_lshl_b32 s{sT1}, s{sT1}, 20")
        a(f"s_add_u32 s{sOff}, s{sOff}, s{sT1}")
    a(f"s_lshl_b32 s{sT1}, s{sV}, 12")
    a(f"s_add_u32 s{sOff}, s{sOff}, s{sT1}")
    c("B: column `wave` of group w>>3 (2 MiB, 64 stripes)")
    a(f"s_lshr_b32 s{sBbase}, s{sW}, 3")
    a(f"s_lshl_b32 s{sBbase}, s{sBbase}, 21")
    a(f"s_add_u32 s{sBbase}, s{sBbase}, s{sT1}")
    a(f"v_add_u32 v{vKcur}, s{sOff}, v{vKoff}")
    a(f"v_add_u32 v{vVcur}, s{sOff}, v{vVoff}")
    a(f"v_mov_b32 v{vT}, {L_FLAG}")
    a(f"v_mov_b32 v{vT+1}, 0")
    a(f"ds_write_b32 v{vT}, v{vT+1}")
    if cfg.diag:
        stamp(12)
        a(f"s_sub_u32 s{sT3}, s{sT3}, 4")
        a(f"v_mov_b32 v{vT+1}, s{sT3}")
        a(f"v_mov_b32 v{vT}, s100")
        a(f"buffer_store_dword v{vT}, v{vT+1}, {sr(R_WS,4)}, 0 offen")
    c("q_A partial over this wave's 64 rows.  Younger than wq_A item i: the later items, wq_B (2), wo (4), K/V loads")
    QA0, QA1 = DD, DD + 4
    QB0, QB1 = DD + 8, DD + 12
    nkv = 0
    kvseq = [(0, 0, u) for u in range(4)] + [(0, 1, u) for u in range(4)]
    for i in range(16):
        a(f"s_waitcnt vmcnt({(15 - i) + 6 + nkv})")
        if i == 0: stamp(13)
        sel = sSelLo if i % 2 == 0 else sSelHi
        x = XA + i // 2
        a(f"v_perm_b32 v{PP}, v{x}, v{x}, s{sel}")
        win_from(PP)
        pv(WQA + 4 * i, QA0, QA1, i == 0)
        if i >= cfg.I0 and nkv < 8:
            kv_load(*kvseq[nkv]); nkv += 1
    c("q_B partial over this wave's 8 rows of the slice")
    for i in range(2):
        a(f"s_waitcnt vmcnt({(1 - i) + 4 + nkv})")
        sel = sSelLo if i == 0 else sSelHi
        a(f"v_perm_b32 v{PP}, v{XB}, v{XB}, s{sel}")
        win_from(PP)
        pv(WQB + 4 * i, QB0, QB1, i == 0)
    a(f"s_lshl_b32 s{sT0}, s{sV}, 11")
    a(f"v_add_u32 v{vW1}, s{sT0}, v{vVoff}")
    a(f"ds_write_b128 v{vW1}, {vr(QA0,4)} offset:{L_QA}")
    a(f"ds_write_b128 v{vW1}, {vr(QA1,4)} offset:{L_QA+1024}")
    a(f"ds_write_b128 v{vW1}, {vr(QB0,4)} offset:{L_QBP}")
    a(f"ds_write_b128 v{vW1}, {vr(QB1,4)} offset:{L_QBP+1024}")
    while nkv < 8:
        kv_load(*kvseq[nkv]); nkv += 1
    a("s_waitcnt lgkmcnt(0)")
    stamp(14)
    a("s_barrier")
    c("q_A operand: lane (row, bank, q) sums QA[wave'][m][16*b + 4*row + q] over the 8 waves, rounds to bf16")
    a(f"s_lshl_b32 s{sT0}, s{sB}, 8")
    a(f"v_lshlrev_b32 v{vT}, 6, v{vRow}")
    a(f"v_lshl_add_u32 v{vT}, v{vQ}, 4, v{vT}")
    a(f"v_add_u32 v{vT}, s{sT0}, v{vT}")
    S = TMP
    for vv in range(8):
        for m in range(2):
            a(f"ds_read_b128 {vr(S + 8*vv + 4*m, 4)}, v{vT} offset:{L_QA + vv*2048 + m*1024}")
    a(f"s_add_u32 s{sOff}, s{sOff}, 32768")
    a(f"v_add_u32 v{vKcur}, s{sOff}, v{vKoff}")
    a(f"v_add_u32 v{vVcur}, s{sOff}, v{vVoff}")
    a(f"s_add_u32 s{sOff}, s{sOff}, 32768")
    a("s_waitcnt lgkmcnt(0)")
    tree_sum8(S)
    for k in range(4):
        a(f"v_cvt_pk_bf16_f32 v{QOP+k}, v{S+2*k}, v{S+2*k+1}")
    c("publisher wave: reduce and publish the q_B partial, clear, then stream on with the stores discounted")
    is_role(R_PUB, f"{N}_nopub")
    for vv in range(8):
        for m in range(2):
            a(f"ds_read_b128 {vr(S + 8*vv + 4*m, 4)}, v{vVoff} offset:{L_QBP + vv*2048 + m*1024}")
    a(f"s_lshl_b32 s{sT0}, s{sW}, 11")
    a(f"s_add_u32 s{sT0}, s{sT0}, {WS_QB}")
    a(f"v_lshlrev_b32 v{vT}, 5, v{vC}")
    a(f"v_lshl_add_u32 v{vT}, v{vRow}, 9, v{vT}")
    a(f"v_add_u32 v{vT}, s{sT0}, v{vT}")
    a("s_waitcnt lgkmcnt(0)")
    tree_sum8(S)
    a(f"buffer_store_dwordx4 {vr(S,4)}, v{vT}, {sr(R_WS,4)}, 0 offen sc1")
    a(f"buffer_store_dwordx4 {vr(S+4,4)}, v{vT}, {sr(R_WS,4)}, 0 offen offset:16 sc1")
    c("mark this workgroup's hand-off slots empty (all ones); workgroup 8k zeroes the claim counters of group k")
    for k in range(4): a(f"v_mov_b32 v{PP+k}, -1")
    a(f"v_add_u32 v{vT}, s{sSlot}, v{vVoff}")
    for k in range(4):
        a(f"buffer_store_dwordx4 {vr(PP,4)}, v{vT}, {sr(R_WS,4)}, 0 offen offset:{k*1024} sc1")
    a(f"v_add_u32 v{vT}, 4096, v{vT}")
    a(f"buffer_store_dwordx4 {vr(PP,4)}, v{vT}, {sr(R_WS,4)}, 0 offen sc1")
    a(f"s_and_b32 s{sT0}, s{sW}, 7")
    a(f"s_cmp_eq_u32 s{sT0}, 0")
    a(f"s_cbranch_scc0 {N}_noclr")
    a(f"s_lshl_b32 s{sT0}, s{sW}, 8")
    a(f"s_add_u32 s{sT0}, s{sT0}, {WS_CNT}")
    a(f"v_lshlrev_b32 v{vT}, 8, v{vLane}")
    a(f"v_add_u32 v{vT}, s{sT0}, v{vT}")
    a(f"v_mov_b32 v{vT+1}, 0")
    a("s_mov_b64 exec, 0xff")
    a(f"buffer_store_dword v{vT+1}, v{vT}, {sr(R_WS,4)}, 0 offen sc1")
    a("s_mov_b64 exec, -1")
    a.label(f"{N}_noclr")
    for isV in (0, 1):
        for u in range(4):
            a(f"s_waitcnt vmcnt({cfg.PD - 1 + 7})"); kv_load(1, isV, u)
    a(f"s_branch {N}_t1d")
    a.label(f"{N}_nopub")
    for isV in (0, 1):
        for u in range(4):
            a(f"s_waitcnt vmcnt({cfg.PD-1})"); kv_load(1, isV, u)
    a.label(f"{N}_t1d")
    for k in range(8): a(f"v_mov_b32 v{ACC+k}, 0")
    a(f"v_mov_b32 v{vM}, 0xff7fffff")
    a(f"v_mov_b32 v{vL}, 0")
    stamp(1)

    uid = [0]
    Dcur = [D]
    def issue(st, isV, u, rk, rv):
        D = Dcur[0]
        if rk == R_IK:
            uid[0] += 1
            a(f"s_cbranch_vccnz {N}_f{uid[0]}")
            a(f"s_waitcnt vmcnt({D-1})")
            a.label(f"{N}_f{uid[0]}")
        else:
            a(f"s_waitcnt vmcnt({D-1})")
        kv_load(st, isV, u, rk, rv)
    def diag(u0, u1):
        for cc in range(4):
            for u in (u0, u1):
                d = DD + 4 * u + cc
                qp = f"quad_perm:[{cc},{cc},{cc},{cc}]"
                if cc == 0: a(f"v_mov_b32_dpp v{Y+u}, v{d} {qp} {FULL}")
                else:       a(f"v_add_f32_dpp v{Y+u}, v{d}, v{Y+u} {qp} {FULL}")
    def round4():
        a(f"v_cvt_pk_bf16_f32 v{T0}, v{Y}, v{Y+1}")
        a(f"v_cvt_pk_bf16_f32 v{T0+1}, v{Y+2}, v{Y+3}")
        a(f"v_lshlrev_b32 v{Y}, 16, v{T0}")
        a(f"v_and_b32 v{Y+1}, 0xffff0000, v{T0}")
        a(f"v_lshlrev_b32 v{Y+2}, 16, v{T0+1}")
        a(f"v_and_b32 v{Y+3}, 0xffff0000, v{T0+1}")
    def body(st, rk, rv):
        c(f"--- mini-tile in ring set {st}: 16 keys.  QK^T, online softmax, PV; issues the tile two ahead")
        a("s_waitcnt vmcnt(12)")
        for u in range(4):
            a(f"{MFMA} {vr(DD+4*u,4)}, {vr(kslot(st,u),4)}, {vr(QOP,4)}, 0")
        issue(st, 0, 0, rk, rv)
        diag(0, 1)
        issue(st, 0, 1, rk, rv)
        diag(2, 3)
        round4()
        issue(st, 0, 2, rk, rv)
        for u in range(4): a(f"v_mul_f32 v{Y+u}, s{sScale}, v{Y+u}")
        round4()
        a(f"v_max3_f32 v{T0+2}, v{Y}, v{Y+1}, v{Y+2}")
        a(f"v_max_f32 v{T0+2}, v{T0+2}, v{Y+3}")
        xrow('v_max_f32', T0 + 2, T0 + 3)
        a(f"v_max_f32 v{vMn}, v{vM}, v{T0+2}")
        issue(st, 0, 3, rk, rv)
        a(f"v_sub_f32 v{vAl}, v{vM}, v{vMn}")
        a(f"v_mul_f32 v{vNM}, s{sNL2E}, v{vMn}")
        a(f"v_mul_f32 v{vAl}, s{sL2E}, v{vAl}")
        for u in range(4): a(f"v_fma_f32 v{Y+u}, v{Y+u}, s{sL2E}, v{vNM}")
        a(f"v_exp_f32 v{vAl}, v{vAl}")
        for u in range(4): a(f"v_exp_f32 v{Y+u}, v{Y+u}")
        a(f"v_mov_b32 v{vM}, v{vMn}")
        for h in range(4):
            a(f"v_mov_b32_dpp v{vAT}, v{vAl} row_newbcast:{4*h} row_mask:{hex(1<<h)} bank_mask:0xf")
        a(f"v_fma_f32 v{vL}, v{vL}, v{vAl}, v{Y}")
        for u in range(4): a(f"v_cvt_pk_bf16_f32 v{PP+u}, v{Y+u}, v{Y+u}")
        a(f"v_add_f32 v{T0}, v{Y+1}, v{Y+2}")
        a(f"v_add_f32 v{vL}, v{vL}, v{Y+3}")
        a(f"v_add_f32 v{vL}, v{vL}, v{T0}")
        for k in range(8): a(f"v_mul_f32 v{ACC+k}, v{ACC+k}, v{vAT}")
        a("s_waitcnt vmcnt(12)")
        for u in range(4):
            win_from(PP + u)
            pv(vslot(st, u), ACC, ACC + 4, False)
            issue(st, 1, u, rk, rv)
        tlog()
    def top_static():
        a(f"v_add_u32 v{vKcur}, s{sOff}, v{vKoff}")
        a(f"v_add_u32 v{vVcur}, s{sOff}, v{vVoff}")
        a(f"s_add_u32 s{sOff}, s{sOff}, 32768")
    def sclaim():
        a(f"s_mov_b32 s{sClaim}, 1")
        a(f"s_atomic_add s{sClaim}, s[{P_WS}:{P_WS+1}], s{sCntB} glc")
    def state_switch():
        a("s_nop 7")
        for k in range(8): a(f"v_mov_b32 v{ACCA+k}, v{ACC+k}")
        a(f"v_mov_b32 v{vMA}, v{vM}")
        a(f"v_mov_b32 v{vLA}, v{vL}")
        for k in range(8): a(f"v_mov_b32 v{ACC+k}, 0")
        a(f"v_mov_b32 v{vM}, 0xff7fffff")
        a(f"v_mov_b32 v{vL}, 0")
        for k in range(4): a(f"v_mov_b32 v{QOP+k}, v{QB+k}")
        a(f"s_mov_b32 s{sBst}, 1")
        stamp(2)
    def top_dyn(st):
        lab = f"{N}_d{st}"
        c("next B piece: the rest of the current chunk, else the chunk claimed one tile ago")
        a(f"s_cmp_eq_u32 s{sRem}, 0")
        a(f"s_cbranch_scc1 {lab}_new")
        a(f"s_add_u32 s{sIdx}, s{sIdx}, 1")
        a(f"s_sub_u32 s{sRem}, s{sRem}, 1")
        a.label(f"{lab}_have")
        a(f"s_lshl_b32 s{sT0}, s{sIdx}, 15")
        a(f"s_add_u32 s{sT0}, s{sT0}, s{sBbase}")
        a(f"s_mov_b32 s{sK2}, s{sKc}")
        a(f"s_mov_b32 s{sKc}, 3")
        a(f"s_cmp_eq_u32 s{sRem}, 0")
        a(f"s_cbranch_scc0 {lab}_go2")
        a(f"s_cmp_ge_u32 s{sClaim}, {cfg.stopc}")
        a(f"s_cbranch_scc1 {lab}_skip")
        sclaim()
        a.label(f"{lab}_go2")
        a(f"v_add_u32 v{vKcur}, s{sT0}, v{vKoff}")
        a(f"v_add_u32 v{vVcur}, s{sT0}, v{vVoff}")
        a(f"s_cmp_eq_u32 s{sK0}, 2")
        a(f"s_cbranch_scc1 {lab}_sw")
        a.label(f"{lab}_body")
    def top_dyn_cold(st):
        lab = f"{N}_d{st}"
        a.label(f"{lab}_new")
        c("chunks of a column (64 stripes, 8 waves): claims 0..7 -> 5 stripes, 8..15 -> 2, 16..23 -> 1")
        a("s_waitcnt lgkmcnt(0)")
        a(f"s_mul_i32 s{sIdx}, s{sClaim}, 5")
        a(f"s_mov_b32 s{sRem}, 4")
        a(f"s_cmp_lt_u32 s{sClaim}, 8")
        a(f"s_cbranch_scc1 {lab}_have")
        a(f"s_lshl_b32 s{sIdx}, s{sClaim}, 1")
        a(f"s_add_u32 s{sIdx}, s{sIdx}, 24")
        a(f"s_mov_b32 s{sRem}, 1")
        a(f"s_cmp_lt_u32 s{sClaim}, 16")
        a(f"s_cbranch_scc1 {lab}_have")
        a(f"s_add_u32 s{sIdx}, s{sClaim}, 40")
        a(f"s_mov_b32 s{sRem}, 0")
        a(f"s_cmp_lt_u32 s{sClaim}, 24")
        a(f"s_cbranch_scc1 {lab}_have")
        c("column exhausted: out-of-range (zero-fill) dummy tile, no throttle, no further claims")
        a(f"s_mov_b32 s{sT0}, 0x7f000000")
        a(f"s_mov_b32 s{sK2}, 0")
        a("s_mov_b64 vcc, -1")
        a(f"s_branch {lab}_go2")
        a.label(f"{lab}_skip")
        c("a wave that got one of the last four pieces does not claim again; every wave makes exactly one claim >= 20,")
        c("so the eight such claims hand out pieces 20..23")
        a(f"s_mov_b32 s{sClaim}, 0x7fffffff")
        a(f"s_branch {lab}_go2")
        a.label(f"{lab}_sw")
        state_switch()
        a("s_nop 1")
        a(f"s_branch {lab}_body")

    a(f"s_mov_b32 s{sJ}, 0")
    if cfg.D0:
        c("first tiles with a wider window: the workgroup catches up the time its q projection took")
        is_role(R_PUB, f"{N}_j0r")
        a("s_waitcnt vmcnt(8)")
        a(f"s_mov_b32 s{sT0}, 1")
        a(f"s_atomic_add s{sT0}, s[{P_DBG}:{P_DBG+1}], 0x0")
        a("s_waitcnt lgkmcnt(0)")
        stamp(19)
        a.label(f"{N}_j0r")
        Dcur[0] = cfg.D0
        for jj in range(0, cfg.N0, 2):
            top_static(); body(0, R_KA, R_VA)
            top_static(); body(1, R_KA, R_VA)
        Dcur[0] = D
        a(f"s_mov_b32 s{sJ}, {cfg.N0}")
        assert cfg.N0 == 2
    a.label(f"{N}_sloop")
    a(f"s_cmp_eq_u32 s{sJ}, 0")
    a(f"s_cbranch_scc1 {N}_job0")
    a(f"s_cmp_eq_u32 s{sJ}, 2")
    a(f"s_cbranch_scc1 {N}_job2")
    a(f"s_cmp_eq_u32 s{sJ}, {cfg.J_POLL}")
    a(f"s_cbranch_scc1 {N}_jobp")
    a(f"s_cmp_eq_u32 s{sJ}, {cfg.J_POLL + 2}")
    a(f"s_cbranch_scc1 {N}_jobg")
    a.label(f"{N}_jobret")
    top_static(); body(0, R_KA, R_VA)
    top_static(); body(1, R_KA, R_VA)
    a(f"s_add_u32 s{sJ}, s{sJ}, 2")
    a(f"s_cmp_lt_u32 s{sJ}, {NS-4}")
    a(f"s_cbranch_scc1 {N}_sloop")
    c("address registers of the tail, computed while streaming")
    a(f"s_lshl_b32 s{sT0}, s{sV}, 5")
    a(f"v_lshlrev_b32 v{vW2}, 3, v{vBank}")
    a(f"v_add_u32 v{vW2}, s{sT0}, v{vW2}")
    vTid, vI32, vHH = T0, T0 + 1, T0 + 2
    a(f"s_lshl_b32 s{sT0}, s{sV}, 6")
    a(f"v_add_u32 v{vTid}, s{sT0}, v{vLane}")
    a(f"v_and_b32 v{vI32}, 31, v{vTid}")
    a(f"v_lshrrev_b32 v{vHH}, 5, v{vTid}")
    a(f"v_and_b32 v{vHH}, 3, v{vHH}")
    a(f"v_and_b32 v{vT}, 1, v{vI32}")
    a(f"v_lshlrev_b32 v{vT}, 10, v{vT}")
    a(f"v_lshrrev_b32 v{vT+1}, 1, v{vI32}")
    a(f"v_lshl_add_u32 v{vT+1}, v{vHH}, 4, v{vT+1}")
    a(f"v_lshl_add_u32 v{vLA_}, v{vT+1}, 4, v{vT}")
    a(f"s_cmp_eq_u32 s{sV}, 2")
    for (sr_, va, vb) in ((sT0, L_AM, L_BM), (sT1, L_MLA, L_MLB), (sT2, O_OA, O_OB), (sT3, O_MLA, O_MLB)):
        a(f"s_mov_b32 s{sr_}, {vb}")
        a(f"s_cmov_b32 s{sr_}, {va}")
    a(f"s_cselect_b32 s{sMrg+1}, 0, -1")
    a(f"s_mov_b32 s{sMrg}, -1")
    a(f"v_add_u32 v{vRA}, s{sT0}, v{vLA_}")
    a(f"v_lshlrev_b32 v{vML}, 3, v{vHH}")
    a(f"v_add_u32 v{vGM}, s{sT3}, v{vML}")
    a(f"v_add_u32 v{vGM}, s{sSlot}, v{vGM}")
    a(f"v_add_u32 v{vML}, s{sT1}, v{vML}")
    a(f"v_lshlrev_b32 v{vGy}, 9, v{vHH}")
    a(f"v_lshl_add_u32 v{vGy}, v{vI32}, 4, v{vGy}")
    a(f"v_add_u32 v{vGy}, s{sSlot}, v{vGy}")
    a(f"v_add_u32 v{vG}, s{sT2}, v{vGy}")
    a(f"v_cmp_eq_u32 s[{sMl0}:{sMl0+1}], 0, v{vI32}")
    a(f"s_and_b64 s[{sMl0}:{sMl0+1}], s[{sMl0}:{sMl0+1}], s[{sMrg}:{sMrg+1}]")
    a(f"s_and_b32 s{sT0}, s{sW}, 7")
    a(f"s_lshr_b32 s{sT1}, s{sW}, 3")
    a(f"s_and_b32 s{sT1}, s{sT1}, 3")
    a(f"s_lshr_b32 s{sT3}, s{sW}, 5")
    a(f"s_and_b32 s{sT3}, s{sT3}, 1")
    a(f"s_lshl_b32 s{sT3}, s{sT3}, 8")
    a(f"s_lshl_b32 s{sT2}, s{sT0}, 3")
    a(f"s_add_u32 s{sT2}, s{sT2}, s{sV}")
    a(f"v_lshlrev_b32 v{vT}, 6, v{vRow}")
    a(f"v_add_u32 v{vBm}, s{sT2}, v{vT}")
    a(f"v_lshlrev_b32 v{vBm}, 13, v{vBm}")
    a(f"s_lshl_b32 s{sT2}, s{sT1}, 9")
    a(f"s_add_u32 s{sT2}, s{sT2}, s{sT3}")
    a(f"s_add_u32 s{sT2}, s{sT2}, {O_OB}")
    a(f"v_lshl_add_u32 v{vBo}, v{vC}, 4, v{vBm}")
    a(f"v_add_u32 v{vBo}, s{sT2}, v{vBo}")
    a(f"s_lshl_b32 s{sT2}, s{sT1}, 3")
    a(f"s_add_u32 s{sT2}, s{sT2}, {O_MLB}")
    a(f"v_add_u32 v{vBm}, s{sT2}, v{vBm}")
    a(f"s_lshl_b32 s{sT2}, s{sT0}, 2")
    a(f"s_add_u32 s{sT2}, s{sT2}, s{sT1}")
    if cfg.PX == 1:
        a(f"s_lshl_b32 s{sT2}, s{sT2}, 1")
        a(f"s_add_u32 s{sT2}, s{sT2}, s{sV}")
    else:
        a(f"s_and_b32 s{sIdx}, s{sT2}, 7")
        a(f"s_lshr_b32 s{sT2}, s{sT2}, 3")
        a(f"s_lshl_b32 s{sT2}, s{sT2}, 4")
        a(f"s_add_u32 s{sT2}, s{sT2}, s{sIdx}")
        a(f"s_lshl_b32 s{sIdx}, s{sV}, 3")
        a(f"s_add_u32 s{sT2}, s{sT2}, s{sIdx}")
    a(f"v_add_u32 v{vAm}, s{sT2}, v{vT}")
    a(f"v_lshlrev_b32 v{vAm}, 13, v{vAm}")
    a(f"s_add_u32 s{sT3}, s{sT3}, {O_OA}")
    a(f"v_lshl_add_u32 v{vAo}, v{vC}, 4, v{vAm}")
    a(f"v_add_u32 v{vAo}, s{sT3}, v{vAo}")
    a(f"v_add_u32 v{vAm}, {O_MLA}, v{vAm}")
    a(f"s_lshl_b32 s{sT2}, s{sV}, 5")
    a(f"v_lshlrev_b32 v{vS2r}, 3, v{vRow}")
    a(f"v_add_u32 v{vS2r}, s{sT2}, v{vS2r}")
    vS, vMm = T0, T0 + 1
    a(f"v_lshrrev_b32 v{vS}, 1, v{vLane}")
    a(f"v_and_b32 v{vS}, 7, v{vS}")
    a(f"v_and_b32 v{vMm}, 1, v{vLane}")
    a(f"v_lshlrev_b32 v{vR1}, 10, v{vS}")
    a(f"v_lshl_add_u32 v{vR1}, v{vRow}, 8, v{vR1}")
    a(f"v_lshl_add_u32 v{vR1}, v{vMm}, 4, v{vR1}")
    a(f"v_add_u32 v{vR1}, s{sT2}, v{vR1}")
    a(f"v_lshlrev_b32 v{vR2}, 5, v{vS}")
    a(f"v_lshl_add_u32 v{vR2}, v{vRow}, 3, v{vR2}")
    a(f"v_cmp_gt_u32 s[{sS2}:{sS2+1}], 2, v{vS}")
    a(f"s_lshl_b32 s{sT0}, s{sV}, 8")
    a(f"v_lshlrev_b32 v{vO1}, 5, v{vRow}")
    a(f"v_lshl_add_u32 v{vO1}, v{vMm}, 4, v{vO1}")
    a(f"v_add_u32 v{vO1}, s{sT0}, v{vO1}")
    a(f"v_lshlrev_b32 v{vO2}, 5, v{vBank}")
    a(f"v_lshl_add_u32 v{vO2}, v{vRow}, 2, v{vO2}")
    a(f"v_add_u32 v{vO2}, s{sT0}, v{vO2}")
    a(f"s_and_b32 s{sT0}, s{sW}, 7")
    a(f"s_lshr_b32 s{sT1}, s{sW}, 3")
    a(f"s_and_b32 s{sT1}, s{sT1}, 7")
    a(f"s_lshr_b32 s{sT2}, s{sT0}, 1")
    a(f"s_lshl_b32 s{sT2}, s{sT2}, 19")
    a(f"s_lshl_b32 s{sT3}, s{sB}, 9")
    a(f"s_add_u32 s{sT2}, s{sT2}, s{sT3}")
    a(f"s_and_b32 s{sT3}, s{sT0}, 1")
    a(f"s_lshl_b32 s{sT3}, s{sT3}, 8")
    a(f"s_add_u32 s{sT2}, s{sT2}, s{sT3}")
    a(f"s_lshl_b32 s{sT3}, s{sT1}, 5")
    a(f"s_add_u32 s{sT2}, s{sT2}, s{sT3}")
    a(f"v_lshlrev_b32 v{vF}, 13, v{vLane}")
    a(f"v_add_u32 v{vF}, s{sT2}, v{vF}")
    a(f"v_and_b32 v{vT}, 1, v{vRow}")
    a(f"v_lshlrev_b32 v{vT}, 1, v{vT}")
    a(f"v_lshrrev_b32 v{vT+1}, 1, v{vRow}")
    a(f"v_add_u32 v{vT}, v{vT}, v{vT+1}")
    a(f"v_lshlrev_b32 v{vT}, 1, v{vT}")
    a(f"s_lshl_b32 s{sT2}, s{sB}, 10")
    a(f"s_lshl_b32 s{sT0}, s{sT0}, 7")
    a(f"s_lshl_b32 s{sT1}, s{sT1}, 4")
    a(f"s_add_u32 s{sT2}, s{sT2}, s{sT0}")
    a(f"s_add_u32 s{sT2}, s{sT2}, s{sT1}")
    a(f"v_add_u32 v{vOut}, s{sT2}, v{vT}")
    a(f"s_and_b32 s{sT0}, s{sW}, 0xf8")
    a(f"s_add_u32 s{sT0}, s{sT0}, s{sV}")
    a(f"s_lshl_b32 s{sT0}, s{sT0}, 8")
    a(f"s_add_u32 s{sCntB}, s{sT0}, {WS_CNT}")
    c("the q_B operand must be in LDS (its flag also says that every workgroup has cleared its slots and counters)")
    a(f"s_mov_b32 s{sSpin}, 0")
    a(f"v_mov_b32 v{vT}, {L_FLAG}")
    a.label(f"{N}_fl")
    a(f"ds_read_b32 v{vT+1}, v{vT}")
    a("s_waitcnt lgkmcnt(0)")
    a(f"v_readfirstlane_b32 s{sT0}, v{vT+1}")
    a(f"s_cmp_eq_u32 s{sT0}, 1")
    a(f"s_cbranch_scc1 {N}_fld")
    spin_tail(f"{N}_fl", f"{N}_fld")
    a.label(f"{N}_fld")
    a(f"ds_read_b128 {vr(QB,4)}, v{vVoff} offset:{L_QBOP}")
    a("s_waitcnt lgkmcnt(0)")
    top_static(); body(0, R_KA, R_VA)
    top_static(); sclaim(); body(1, R_KA, R_VA)
    c("from here on the issue side runs on branch B; kinds: 1 = A tile, 2 = first B tile, 3 = B tile, 0 = none")
    for k in range(3):
        a(f"s_mov_b32 s{R_IK+k}, s{R_KB+k}")
        a(f"s_mov_b32 s{R_IV+k}, s{R_VB+k}")
    a(f"s_mov_b32 s{sKc}, 2")
    a(f"s_mov_b32 s{sRem}, 0")
    a(f"s_mov_b32 s{sK0}, 1")
    a(f"s_mov_b32 s{sK1}, 1")
    a(f"s_mov_b32 s{sBst}, 0")
    a("s_mov_b64 vcc, 0")
    a.label(f"{N}_dloop")
    for st in range(2):
        top_dyn(st); body(st, R_IK, R_IV)
        a(f"s_mov_b32 s{sK0}, s{sK1}")
        a(f"s_mov_b32 s{sK1}, s{sK2}")
        a(f"s_cmp_eq_u32 s{sK0}, 0")
        a(f"s_cbranch_scc1 {N}_dend")
    a(f"s_branch {N}_dloop")
    for st in range(2): top_dyn_cold(st)
    a.label(f"{N}_dend")
    a(f"s_cmp_eq_u32 s{sBst}, 0")
    a(f"s_cbranch_scc0 {N}_dend2")
    state_switch()
    a.label(f"{N}_dend2")
    a("s_nop 7")
    stamp(3)

    c("=== tail: per-wave softmax states to LDS")
    a(f"ds_write_b128 v{vW1}, {vr(ACC,4)} offset:{L_BM}")
    a(f"ds_write_b128 v{vW1}, {vr(ACC+4,4)} offset:{L_BM+1024}")
    a(f"ds_write_b128 v{vW1}, {vr(ACCA,4)} offset:{L_AM}")
    a(f"ds_write_b128 v{vW1}, {vr(ACCA+4,4)} offset:{L_AM+1024}")
    for perm in ('v_permlane16_swap_b32', 'v_permlane32_swap_b32'):
        a(f"v_mov_b32 v{T0}, v{vL}")
        a(f"v_mov_b32 v{T0+1}, v{vLA}")
        a(f"{perm} v{vL}, v{T0}")
        a(f"{perm} v{vLA}, v{T0+1}")
        a(f"v_add_f32 v{vL}, v{vL}, v{T0}")
        a(f"v_add_f32 v{vLA}, v{vLA}, v{T0+1}")
    a(f"ds_write_b64 v{vW2}, {vr(vM,2)} offset:{L_MLB}")
    a(f"ds_write_b64 v{vW2}, {vr(vMA,2)} offset:{L_MLA}")
    a("s_waitcnt lgkmcnt(0)")
    a("s_barrier")
    stamp(4)
    c("waves 0,1 merge the four B heads, wave 2 (32 lanes) merges A; results are published (slots were all-ones)")
    a(f"s_cmp_lt_u32 s{sV}, 3")
    a(f"s_cbranch_scc0 {N}_nomerge")
    a(f"s_mov_b64 exec, s[{sMrg}:{sMrg+1}]")
    MLr, AC = 172, 188
    for vv in range(8):
        a(f"ds_read_b64 {vr(MLr+2*vv,2)}, v{vML} offset:{vv*32}")
    for vv in range(8):
        a(f"ds_read_b128 {vr(AC+4*vv,4)}, v{vRA} offset:{vv*2048}")
    a("s_waitcnt lgkmcnt(8)")
    Ms = 220
    a(f"v_max3_f32 v{Ms}, v{MLr}, v{MLr+2}, v{MLr+4}")
    a(f"v_max3_f32 v{Ms+1}, v{MLr+6}, v{MLr+8}, v{MLr+10}")
    a(f"v_max3_f32 v{Ms}, v{Ms}, v{MLr+12}, v{MLr+14}")
    a(f"v_max_f32 v{Ms}, v{Ms}, v{Ms+1}")
    for vv in range(8): a(f"v_sub_f32 v{MLr+2*vv}, v{MLr+2*vv}, v{Ms}")
    for vv in range(8): a(f"v_mul_f32 v{MLr+2*vv}, s{sL2E}, v{MLr+2*vv}")
    for vv in range(8): a(f"v_exp_f32 v{MLr+2*vv}, v{MLr+2*vv}")
    a("s_waitcnt lgkmcnt(0)")
    O4 = 224
    for r in range(4): a(f"v_mul_f32 v{O4+r}, v{MLr}, v{AC+r}")
    for vv in range(1, 8):
        for r in range(4): a(f"v_fma_f32 v{O4+r}, v{MLr+2*vv}, v{AC+4*vv+r}, v{O4+r}")
    a(f"buffer_store_dwordx4 {vr(O4,4)}, v{vG}, {sr(R_WS,4)}, 0 offen sc1")
    a(f"v_mul_f32 v{Ms+1}, v{MLr}, v{MLr+1}")
    for vv in range(1, 8): a(f"v_fma_f32 v{Ms+1}, v{MLr+2*vv}, v{MLr+2*vv+1}, v{Ms+1}")
    a(f"s_mov_b64 exec, s[{sMl0}:{sMl0+1}]")
    a(f"buffer_store_dwordx2 {vr(Ms,2)}, v{vGM}, {sr(R_WS,4)}, 0 offen sc1")
    a("s_mov_b64 exec, -1")
    stamp(5)
    a("s_nop 7")
    a.label(f"{N}_nomerge")

    c("=== hand-off 1: wave v fetches split v of the four batches (B) and, for v < 2, half v (A); any all-ones word = not yet")
    OB4, MLB2, OA4, MLA2 = 180, 184, 188, 192
    PB = RING
    a(f"s_lshl_b32 s{sT2}, s{sV}, 10")
    a(f"v_add_u32 v{T0}, s{sT2}, v{vVoff}")
    a(f"s_mov_b32 s{sSpin}, 0")
    a("s_waitcnt vmcnt(0)")
    for k in range(4): a(f"v_mov_b32 v{PB+8+k}, 0")
    a(f"v_mov_b32 v{PB+12}, 0")
    a(f"v_mov_b32 v{PB+13}, 0")
    if cfg.natwait:
        c("polling starts once this workgroup's own partials are acknowledged")
        a("s_barrier")
    elif cfg.pre1: a(f"s_sleep {cfg.pre1}")
    a.label(f"{N}_p1")
    a(f"buffer_load_dwordx4 {vr(PB,4)}, v{vBo}, {sr(R_WS,4)}, 0 offen sc1")
    a(f"buffer_load_dwordx2 {vr(PB+4,2)}, v{vBm}, {sr(R_WS,4)}, 0 offen sc1")
    a(f"s_cmp_lt_u32 s{sV}, 2")
    a(f"s_cbranch_scc0 {N}_p1n")
    a(f"buffer_load_dwordx4 {vr(PB+8,4)}, v{vAo}, {sr(R_WS,4)}, 0 offen sc1")
    a(f"buffer_load_dwordx2 {vr(PB+12,2)}, v{vAm}, {sr(R_WS,4)}, 0 offen sc1")
    a.label(f"{N}_p1n")
    a("s_waitcnt vmcnt(0)")
    a(f"v_max3_u32 v{vT}, v{PB}, v{PB+1}, v{PB+2}")
    a(f"v_max3_u32 v{vT+1}, v{PB+3}, v{PB+4}, v{PB+5}")
    a(f"v_max3_u32 v{vT}, v{vT}, v{PB+8}, v{PB+9}")
    a(f"v_max3_u32 v{vT+1}, v{vT+1}, v{PB+10}, v{PB+11}")
    a(f"v_max3_u32 v{vT}, v{vT}, v{PB+12}, v{PB+13}")
    a(f"v_max_u32 v{vT}, v{vT}, v{vT+1}")
    a(f"v_cmp_eq_u32 vcc, -1, v{vT}")
    a("s_cmp_eq_u64 vcc, 0")
    a(f"s_cbranch_scc1 {N}_p1d")
    spin_tail(f"{N}_p1", f"{N}_p1d", cfg.sleep1)
    a.label(f"{N}_p1d")
    a(f"ds_write_b128 v{T0}, {vr(PB,4)} offset:{L_G1B}")
    a(f"ds_write_b64 v{vS2r}, {vr(PB+4,2)} offset:{L_G1MB}")
    a(f"s_cmp_lt_u32 s{sV}, 2")
    a(f"s_cbranch_scc0 {N}_g1n")
    a(f"ds_write_b128 v{T0}, {vr(PB+8,4)} offset:{L_G1A}")
    a(f"ds_write_b64 v{vS2r}, {vr(PB+12,2)} offset:{L_G1MA}")
    a.label(f"{N}_g1n")
    stamp(6)
    for k in range(4): a(f"v_mov_b32 v{OA4+k}, 0")
    a(f"v_mov_b32 v{MLA2}, 0xff7fffff")
    a(f"v_mov_b32 v{MLA2+1}, 0")
    a("s_waitcnt lgkmcnt(0)")
    a("s_barrier")
    c("each wave takes its 8 dims: lane (row = batch, split = (lane>>1)&7, m = lane&1); softmax-combine the splits")
    a(f"ds_read_b128 {vr(OB4,4)}, v{vR1} offset:{L_G1B}")
    a(f"ds_read_b64 {vr(MLB2,2)}, v{vR2} offset:{L_G1MB}")
    a(f"s_mov_b64 exec, s[{sS2}:{sS2+1}]")
    a(f"ds_read_b128 {vr(OA4,4)}, v{vR1} offset:{L_G1A}")
    a(f"ds_read_b64 {vr(MLA2,2)}, v{vR2} offset:{L_G1MA}")
    a("s_mov_b64 exec, -1")
    GG = 204
    a(f"v_lshlrev_b32 v{vT}, 3, v{vRow}")
    a(f"ds_read_b64 {vr(GG,2)}, v{vT} offset:{L_G}")
    a("s_waitcnt lgkmcnt(0)")
    pairs = ((OB4, MLB2, 196, 197), (OA4, MLA2, 198, 199))
    for (o4, ml, Mx, sc) in pairs: a(f"v_max_f32_dpp v{Mx}, v{ml}, v{ml} row_ror:8 {FULL}")
    for n in (4, 2):
        for (o4, ml, Mx, sc) in pairs: a(f"v_max_f32_dpp v{Mx}, v{Mx}, v{Mx} row_ror:{n} {FULL}")
    for (o4, ml, Mx, sc) in pairs: a(f"v_sub_f32 v{sc}, v{ml}, v{Mx}")
    for (o4, ml, Mx, sc) in pairs: a(f"v_mul_f32 v{sc}, s{sL2E}, v{sc}")
    for (o4, ml, Mx, sc) in pairs: a(f"v_exp_f32 v{sc}, v{sc}")
    for (o4, ml, Mx, sc) in pairs: a(f"v_mul_f32 v{ml+1}, v{ml+1}, v{sc}")
    for (o4, ml, Mx, sc) in pairs:
        for r in range(4): a(f"v_mul_f32 v{o4+r}, v{o4+r}, v{sc}")
    for n in (8, 4, 2):
        for (o4, ml, Mx, sc) in pairs:
            for r in [ml + 1] + [o4 + k for k in range(4)]:
                a(f"v_add_f32_dpp v{r}, v{r}, v{r} row_ror:{n} {FULL}")
    for (o4, ml, Mx, sc) in pairs: a(f"v_rcp_f32 v{sc}, v{ml+1}")
    for (o4, ml, Mx, sc) in reversed(pairs):
        for r in range(4): a(f"v_mul_f32 v{o4+r}, v{o4+r}, v{sc}")
    a(f"ds_write_b128 v{vO1}, {vr(OA4,4)} offset:{L_OT}")
    a(f"ds_write_b128 v{vO1}, {vr(OB4,4)} offset:{L_OT+128}")
    XO = 200
    a("s_waitcnt lgkmcnt(0)")
    a(f"ds_read_b32 v{XO}, v{vO2} offset:{L_OT}")
    a(f"ds_read_b32 v{XO+1}, v{vO2} offset:{L_OT+16}")
    a(f"ds_read_b32 v{XO+2}, v{vO2} offset:{L_OT+128}")
    a(f"ds_read_b32 v{XO+3}, v{vO2} offset:{L_OT+144}")
    a("s_waitcnt lgkmcnt(0)")
    for k in range(4): a(f"v_cvt_pk_bf16_f32 v{XO+k}, v{XO+k}, v{XO+k}")
    c("o (bf16) times the prefetched wo rows, gate mix, partial y to LDS")
    YA, YB = DD, DD + 8
    for k, (wo, acc) in enumerate(((WOA, YA), (WOB, YB), (WOA + 4, YA), (WOB + 4, YB))):
        win_from(XO + (0, 2, 1, 3)[k])
        pv(wo, acc, acc + 4, k < 2)
    for k in range(8): a(f"v_mul_f32 v{YA+k}, v{YA+k}, v{GG}")
    for k in range(8): a(f"v_fma_f32 v{YA+k}, v{YB+k}, v{GG+1}, v{YA+k}")
    a(f"ds_write_b128 v{vW1}, {vr(YA,4)} offset:{L_YP}")
    a(f"ds_write_b128 v{vW1}, {vr(YA+4,4)} offset:{L_YP+1024}")
    a("s_waitcnt lgkmcnt(0)")
    a("s_barrier")
    stamp(7)
    c("waves 0,1: sum the 8 partial y and publish; final reduction of 8 output columns by one wave; the others are done")
    a(f"s_cmp_lt_u32 s{sV}, 2")
    a(f"s_cbranch_scc0 {N}_noy")
    for vv in range(8):
        a(f"ds_read_b128 {vr(AC+4*vv,4)}, v{vLA_} offset:{L_YP + vv*2048}")
    for step in (4, 2, 1):
        if step == 4: a("s_waitcnt lgkmcnt(0)")
        for g in range(step):
            for r in range(4):
                a(f"v_add_f32 v{AC+4*g+r}, v{AC+4*g+r}, v{AC+4*(g+step)+r}")
    a(f"buffer_store_dwordx4 {vr(AC,4)}, v{vGy}, {sr(R_WS,4)}, 0 offen offset:{O_Y} sc1")
    stamp(8)
    if cfg.natwait:
        a(f"s_cmp_eq_u32 s{sV}, 0")
        a(f"s_cbranch_scc0 {N}_done")
        c("wave 0 goes on to the final reduction once its own part of y is acknowledged")
        a("s_waitcnt vmcnt(0)")
        a(f"s_branch {N}_fin")
        a.label(f"{N}_noy")
        a(f"s_branch {N}_done")
        a.label(f"{N}_fin")
    else:
        a(f"s_branch {N}_done")
        a.label(f"{N}_noy")
        a(f"s_cmp_eq_u32 s{sV}, 2")
        a(f"s_cbranch_scc0 {N}_done")
    c("=== hand-off 2: lane i fetches 8 columns of unit 64*cg + i")
    F = 180
    a(f"s_mov_b32 s{sSpin}, 0")
    if cfg.pre2 and not cfg.natwait: a(f"s_sleep {cfg.pre2}")
    a.label(f"{N}_p2")
    a(f"buffer_load_dwordx4 {vr(F,4)}, v{vF}, {sr(R_WS,4)}, 0 offen offset:{O_Y} sc1")
    a(f"buffer_load_dwordx4 {vr(F+4,4)}, v{vF}, {sr(R_WS,4)}, 0 offen offset:{O_Y+16} sc1")
    a("s_waitcnt vmcnt(0)")
    a(f"v_max3_u32 v{vT}, v{F}, v{F+1}, v{F+2}")
    a(f"v_max3_u32 v{vT+1}, v{F+3}, v{F+4}, v{F+5}")
    a(f"v_max3_u32 v{vT}, v{vT}, v{F+6}, v{F+7}")
    a(f"v_max_u32 v{vT}, v{vT}, v{vT+1}")
    a(f"v_cmp_eq_u32 vcc, -1, v{vT}")
    a("s_cmp_eq_u64 vcc, 0")
    a(f"s_cbranch_scc1 {N}_p2d")
    spin_tail(f"{N}_p2", f"{N}_p2d", cfg.sleep2)
    a.label(f"{N}_p2d")
    stamp(9)
    for k in range(4): a(f"v_permlane32_swap_b32 v{F+2*k}, v{F+2*k+1}")
    for k in range(4): a(f"v_add_f32 v{F+2*k}, v{F+2*k}, v{F+2*k+1}")
    a(f"v_permlane16_swap_b32 v{F}, v{F+2}")
    a(f"v_permlane16_swap_b32 v{F+4}, v{F+6}")
    a(f"v_add_f32 v{F}, v{F}, v{F+2}")
    a(f"v_add_f32 v{F+4}, v{F+4}, v{F+6}")
    for n in (8, 4, 2, 1):
        a(f"v_add_f32_dpp v{F}, v{F}, v{F} row_ror:{n} {FULL}")
        a(f"v_add_f32_dpp v{F+4}, v{F+4}, v{F+4} row_ror:{n} {FULL}")
    a(f"v_cvt_pk_bf16_f32 v{F}, v{F}, v{F+4}")
    a("s_mov_b32 exec_lo, 0x00010001")
    a("s_mov_b32 exec_hi, 0x00010001")
    a(f"buffer_store_short v{F}, v{vOut}, {sr(R_OUT,4)}, 0 offen {cfg.outfl}".rstrip())
    a(f"buffer_store_short_d16_hi v{F}, v{vOut}, {sr(R_OUT,4)}, 0 offen offset:8 {cfg.outfl}".rstrip())
    a("s_mov_b64 exec, -1")
    stamp(10)
    a(f"s_branch {N}_done")

    a.label(f"{N}_job0")
    c("publisher: its clears and q_B partial are older than its last 8 loads, so they are complete: count this workgroup in")
    is_role(R_PUB, f"{N}_jobret")
    a("s_waitcnt vmcnt(8)")
    a(f"s_mov_b32 s{sT0}, 1")
    a(f"s_atomic_add s{sT0}, s[{P_DBG}:{P_DBG+1}], 0x0")
    a("s_waitcnt lgkmcnt(0)")
    stamp(19)
    a(f"s_branch {N}_jobret")
    a.label(f"{N}_job2")
    c("gate wave: g = bf16(sigmoid(bf16(sum bf16(x*gate_w)))), 1-g in bf16 -> LDS")
    is_role(R_GATE, f"{N}_jobret")
    GX, GW = TMP, TMP + 16
    a(f"v_lshlrev_b32 v{vT+1}, 6, v{vC}")
    a(f"v_lshl_add_u32 v{vT}, v{vRow}, 10, v{vT+1}")
    for k in range(4):
        a(f"buffer_load_dwordx4 {vr(GX+4*k,4)}, v{vT}, {sr(R_X,4)}, 0 offen offset:{16*k}")
        a(f"buffer_load_dwordx4 {vr(GW+4*k,4)}, v{vT+1}, {sr(R_GW,4)}, 0 offen offset:{16*k}")
    a("s_waitcnt vmcnt(0)")
    z, t0, t1, t2, t3 = TMP + 32, TMP + 33, TMP + 34, TMP + 35, TMP + 36
    a(f"v_mov_b32 v{z}, 0")
    for k in range(16):
        a(f"v_lshlrev_b32 v{t0}, 16, v{GX+k}")
        a(f"v_lshlrev_b32 v{t1}, 16, v{GW+k}")
        a(f"v_and_b32 v{t2}, 0xffff0000, v{GX+k}")
        a(f"v_and_b32 v{t3}, 0xffff0000, v{GW+k}")
        a(f"v_mul_f32 v{t0}, v{t0}, v{t1}")
        a(f"v_mul_f32 v{t2}, v{t2}, v{t3}")
        a(f"v_cvt_pk_bf16_f32 v{t0}, v{t0}, v{t2}")
        a(f"v_lshlrev_b32 v{t1}, 16, v{t0}")
        a(f"v_and_b32 v{t0}, 0xffff0000, v{t0}")
        a(f"v_add_f32 v{z}, v{z}, v{t1}")
        a(f"v_add_f32 v{z}, v{z}, v{t0}")
    for n in (8, 4, 2, 1):
        a(f"v_add_f32_dpp v{z}, v{z}, v{z} row_ror:{n} {FULL}")
    a(f"v_cvt_pk_bf16_f32 v{z}, v{z}, v{z}")
    a(f"v_and_b32 v{z}, 0xffff0000, v{z}")
    a(f"v_mul_f32 v{z}, s{sNL2E}, v{z}")
    a(f"v_exp_f32 v{z}, v{z}")
    a(f"v_add_f32 v{z}, 1.0, v{z}")
    a(f"v_rcp_f32 v{z}, v{z}")
    g0 = TMP + 38
    a(f"v_cvt_pk_bf16_f32 v{g0}, v{z}, v{z}")
    a(f"v_and_b32 v{g0}, 0xffff0000, v{g0}")
    a(f"v_sub_f32 v{g0+1}, 1.0, v{g0}")
    a(f"v_cvt_pk_bf16_f32 v{g0+1}, v{g0+1}, v{g0+1}")
    a(f"v_and_b32 v{g0+1}, 0xffff0000, v{g0+1}")
    a(f"v_lshlrev_b32 v{vT}, 3, v{vRow}")
    a(f"ds_write_b64 v{vT}, {vr(g0,2)} offset:{L_G}")
    a("s_waitcnt lgkmcnt(0)")
    a("s_nop 7")
    a(f"s_branch {N}_jobret")
    a.label(f"{N}_jobp")
    c("gather wave: look at the arrival counter (result is used two tiles later)")
    is_role(R_GATH, f"{N}_jobret")
    a(f"v_mov_b32 v{vT}, 0")
    a(f"global_load_dword v{vPoll}, v{vT}, s[{P_DBG}:{P_DBG+1}] sc1")
    a(f"s_branch {N}_jobret")
    a.label(f"{N}_jobg")
    c("gather wave: once all 256 workgroups have arrived, sum the 8 partials of the group's four q_B heads into LDS")
    is_role(R_GATH, f"{N}_jobret")
    a(f"s_mov_b32 s{sSpin}, 0")
    a("s_waitcnt vmcnt(16)")
    a.label(f"{N}_c0")
    a(f"v_readfirstlane_b32 s{sT0}, v{vPoll}")
    a(f"s_cmp_ge_u32 s{sT0}, 256")
    a(f"s_cbranch_scc1 {N}_c0d")
    a(f"s_add_u32 s{sSpin}, s{sSpin}, 1")
    a(f"s_cmp_gt_u32 s{sSpin}, {cfg.SPIN}")
    a(f"s_cbranch_scc1 {N}_c0d")
    a("s_sleep 16")
    a(f"v_mov_b32 v{vT}, 0")
    a(f"global_load_dword v{vPoll}, v{vT}, s[{P_DBG}:{P_DBG+1}] sc1")
    a("s_waitcnt vmcnt(0)")
    a(f"s_branch {N}_c0")
    a.label(f"{N}_c0d")
    stamp(15)
    a(f"s_lshr_b32 s{sT0}, s{sW}, 3")
    a(f"s_and_b32 s{sT0}, s{sT0}, 7")
    a(f"s_lshl_b32 s{sT0}, s{sT0}, 16")
    a(f"s_lshl_b32 s{sT1}, s{sB}, 9")
    a(f"s_add_u32 s{sT0}, s{sT0}, s{sT1}")
    a(f"s_add_u32 s{sT0}, s{sT0}, {WS_QB}")
    a(f"v_lshlrev_b32 v{vT}, 14, v{vBank}")
    a(f"v_lshl_add_u32 v{vT}, v{vRow}, 7, v{vT}")
    a(f"v_lshl_add_u32 v{vT}, v{vQ}, 5, v{vT}")
    a(f"v_add_u32 v{vT}, s{sT0}, v{vT}")
    S2 = TMP
    for sl in range(8):
        a(f"s_mov_b32 s{sT1}, {(sl // 2) * 4096}")
        for m in range(2):
            a(f"buffer_load_dwordx4 {vr(S2 + 8*sl + 4*m, 4)}, v{vT}, {sr(R_WS,4)}, s{sT1} offen offset:{(sl % 2) * 2048 + 16*m} sc1")
    a("s_waitcnt vmcnt(0)")
    tree_sum8(S2)
    for k in range(4):
        a(f"v_cvt_pk_bf16_f32 v{S2+8+k}, v{S2+2*k}, v{S2+2*k+1}")
    a(f"ds_write_b128 v{vVoff}, {vr(S2+8,4)} offset:{L_QBOP}")
    a("s_waitcnt lgkmcnt(0)")
    a(f"v_mov_b32 v{vT}, {L_FLAG}")
    a(f"ds_write_b32 v{vT}, v{vOne}")
    a("s_waitcnt lgkmcnt(0)")
    stamp(18)
    a("s_nop 7")
    a(f"s_branch {N}_jobret")

    a.label(f"{N}_done")
    a("s_endpgm")
    body_text, npad = a.text()
    kd = f"""
.section .rodata,"a"
.p2align 6
.amdhsa_kernel {N}
  .amdhsa_next_free_vgpr {NVGPR}
  .amdhsa_next_free_sgpr 102
  .amdhsa_accum_offset {NVGPR}
  .amdhsa_group_segment_fixed_size 0
  .amdhsa_kernarg_size 112
  .amdhsa_user_sgpr_count 2
  .amdhsa_user_sgpr_kernarg_segment_ptr 1
  .amdhsa_system_sgpr_workgroup_id_x 1
  .amdhsa_float_denorm_mode_32 3
.end_amdhsa_kernel
"""
    return body_text, kd, npad

HEADER = open('gated_mix__mha_block_cached__gqa_block_cached__decode.s.ref').read().split('; Override launch geometry')[0]


DESC = """;
;
"""

def full_file(cfg):
    body, kd, npad = build(cfg)
    s = HEADER
    s += f"; @launch grid=(256,1,1) block=(512,1,1) lds={LDS_BYTES}\n"
    s += DESC
    s += '.amdgcn_target "amdgcn-amd-amdhsa--gfx950"\n.text\n'
    s += body + "\n" + kd
    return s, npad

if __name__ == '__main__':
    cfg = Cfg()
    out = sys.argv[1]
    for kv in sys.argv[2:]:
        k, v = kv.split('=', 1)
        cur = getattr(cfg, k)
        setattr(cfg, k, type(cur)(int(v, 0)) if isinstance(cur, (bool, int)) else v)
    s, npad = full_file(cfg)
    open(out, 'w').write(s)
    print('written', out, len(s), 'bytes; nop pads', npad)
```

```python
import sys, os
sys.path.insert(0, os.path.dirname(os.path.abspath(__file__)))
from asmlib import Asm

KNAME = 'gated_mix__mha_block_cached__gqa_block_cached__decode_kernel'

class Cfg:
    D = 3
    PD = 3
    D0 = 0
    N0 = 2
    I0 = 8
    SPIN = 200000
    J_POLL = 4
    stopc = 20
    pre1 = 16; sleep1 = 8; pre2 = 22; sleep2 = 4
    PX = 8
    rotA = 0
    natwait = True
    outfl = ''
    diag = False; tlog = False; xorid = 0
    name = KNAME

sRem, sStride = 0, 1
sW, sV = 2, 3
P_X, P_KA, P_VA, P_WQA, P_WOA, P_BX, P_KB, P_VB = 4, 6, 8, 10, 12, 14, 16, 18
P_WQB, P_WOB, P_GW, P_OUT = 20, 22, 24, 26
P_DBG, P_WS = 28, 30
R_IK, R_IV = 4, 8
sMrg, sMl0, sS2 = 12, 14, 16
sPhase, sBase, sKc, sBst = 18, 20, 21, 23
sK0, sK1, sK2 = 24, 25, 26
sLog = 27
R_KA, R_VA, R_KB, R_VB = 32, 36, 40, 44
R_WQA, R_WQB, R_WOA, R_WOB = 48, 52, 56, 60
R_X, R_GW, R_WS, R_OUT = 64, 68, 72, 76
sB, sOff, sJ, sClaim = 80, 81, 82, 83
sT0, sT1, sT2, sT3 = 85, 86, 87, 88
sBbase = 89
sScale, sL2E, sNL2E = 90, 91, 92
sSpin, sSlot, sIdx = 93, 94, 95
sSelLo, sSelHi = 96, 97
sStamp = 98
sCntB = 101
sAbase, sStr = 19, 22

vLane = 0
vKoff, vVoff, vKcur, vVcur = 1, 2, 3, 4
vMask0, vMask1 = 5, 6
vPoll, vOne = 7, 8
vRow, vBank, vQ, vC = 10, 11, 12, 13
vT = 14
RING = 16
QOP, QB = 80, 84
ACC, ACCA = 88, 96
vM, vL, vMA, vLA = 104, 105, 106, 107
DD = 108
Y = 124
PP = 128
WIN = 132
vAl, vAT, vNM, vMn = 138, 139, 140, 141
T0 = 142
WOA, WOB = 148, 156
TMP = 164
vW1, vW2, vRA, vML, vG, vGM, vBo, vBm, vAo, vAm, vS2r, vR1, vR2, vO1, vO2, vLA_, vGy, vF, vOut = range(228, 247)
NVGPR = 256

L_QBOP = 0
L_MLB, L_MLA = 1024, 1280
L_OT = 1536
L_G = 3584
L_FLAG = 3648
L_QA, L_QBP = 4096, 20480
L_BM, L_AM = 36864, 53248
L_YP = L_QA
L_G1B, L_G1A, L_G1MB, L_G1MA = L_QBP, L_QBP + 8192, L_QBP + 10240, L_QBP + 10496
LDS_BYTES = 69632

O_Y, O_OB, O_OA, O_MLB, O_MLA = 0, 2048, 4096, 4608, 4640
WS_QB = 2 << 20
WS_CNT = 3 << 20
WS_STAMP = (3 << 20) + (512 << 10)
WS_TLOG = 4 << 20

def vr(a, n): return f"v[{a}:{a+n-1}]"
def sr(a, n): return f"s[{a}:{a+n-1}]"
def kslot(st, u): return RING + 32 * st + 4 * u
def vslot(st, u): return RING + 32 * st + 16 + 4 * u
MFMA = 'v_mfma_f32_16x16x32_bf16'
FULL = 'row_mask:0xf bank_mask:0xf'
NS = 32

def build(cfg):
    a = Asm()
    c = a.comment
    N = cfg.name
    D = cfg.D
    WS_BYTES = (8 << 20) if (cfg.diag or cfg.tlog) else (4 << 20)
    def stamp(i):
        if not cfg.diag: return
        a(f"s_memrealtime s[{sStamp}:{sStamp+1}]")
        a("s_waitcnt lgkmcnt(0)")
        a(f"v_mov_b32 v{vT}, s{sStamp}")
        a(f"s_lshl_b32 s{sT3}, s{sW}, 3")
        a(f"s_add_u32 s{sT3}, s{sT3}, s{sV}")
        a(f"s_lshl_b32 s{sT3}, s{sT3}, 7")
        a(f"s_add_u32 s{sT3}, s{sT3}, {WS_STAMP + 4*i}")
        a(f"v_mov_b32 v{vT+1}, s{sT3}")
        a(f"buffer_store_dword v{vT}, v{vT+1}, {sr(R_WS,4)}, 0 offen")
    def tlog():
        if not cfg.tlog: return
        a(f"s_memrealtime s[{sStamp}:{sStamp+1}]")
        a("s_waitcnt lgkmcnt(0)")
        a(f"v_mov_b32 v{vT}, s{sStamp}")
        a(f"v_mov_b32 v{vT+1}, s{sLog}")
        a("s_mov_b64 exec, 1")
        a(f"buffer_store_dword v{vT}, v{vT+1}, {sr(R_WS,4)}, 0 offen")
        a("s_mov_b64 exec, -1")
        a(f"s_add_u32 s{sLog}, s{sLog}, 4")
    def srd(r, p, size):
        a(f"s_mov_b32 s{r}, s{p}")
        a(f"s_and_b32 s{r+1}, s{p+1}, 0xffff")
        a(f"s_mov_b32 s{r+2}, {hex(size)}")
        a(f"s_mov_b32 s{r+3}, 0x20000")
    def pv(data, acc0, acc1, first):
        c0 = '0' if first else vr(acc0, 4)
        c1 = '0' if first else vr(acc1, 4)
        a(f"{MFMA} {vr(acc0,4)}, {vr(WIN+2,4)}, {vr(data,4)}, {c0}")
        a(f"{MFMA} {vr(acc1,4)}, {vr(WIN,4)}, {vr(data,4)}, {c1}")
    def win_from(pp):
        a(f"v_and_b32 v{WIN+2}, v{pp}, v{vMask0}")
        a(f"v_and_b32 v{WIN+3}, v{pp}, v{vMask1}")
    def xrow(op, r, t):
        a(f"v_mov_b32 v{t}, v{r}")
        a(f"v_permlane16_swap_b32 v{r}, v{t}")
        a(f"{op} v{r}, v{r}, v{t}")
        a(f"v_mov_b32 v{t}, v{r}")
        a(f"v_permlane32_swap_b32 v{r}, v{t}")
        a(f"{op} v{r}, v{r}, v{t}")
    def spin_tail(lab_loop, lab_done, slp=2):
        a(f"s_add_u32 s{sSpin}, s{sSpin}, 1")
        a(f"s_cmp_gt_u32 s{sSpin}, {cfg.SPIN}")
        a(f"s_cbranch_scc1 {lab_done}")
        if slp: a(f"s_sleep {slp}")
        a(f"s_branch {lab_loop}")
    def tree_sum8(base):
        for step in (4, 2, 1):
            for g in range(step):
                for k in range(8):
                    a(f"v_add_f32 v{base+8*g+k}, v{base+8*g+k}, v{base+8*(g+step)+k}")
    def kv_load(st, isV, u, rk=R_KA, rv=R_VA):
        slot = vslot(st, u) if isV else kslot(st, u)
        r = rv if isV else rk
        va = vVcur if isV else vKcur
        a(f"buffer_load_dwordx4 {vr(slot,4)}, v{va}, {sr(r,4)}, 0 offen offset:{u*1024} nt")
    def adv_off():
        if not cfg.rotA:
            a(f"s_add_u32 s{sOff}, s{sOff}, 32768")
        else:
            a(f"s_add_u32 s{sStr}, s{sStr}, 1")
            a(f"s_and_b32 s{sStr}, s{sStr}, 31")
            a(f"s_lshl_b32 s{sOff}, s{sStr}, 15")
            a(f"s_add_u32 s{sOff}, s{sOff}, s{sAbase}")
    def pair_of(sp, st):
        if cfg.PX == 1:
            a(f"s_lshr_b32 s{sp}, s{sW}, 1")
            return
        n = {8: 0, 16: 1, 32: 2}[cfg.PX]
        a(f"s_lshr_b32 s{sp}, s{sW}, {4 + n}")
        a(f"s_lshl_b32 s{sp}, s{sp}, {3 + n}")
        a(f"s_and_b32 s{st}, s{sW}, 7")
        if n: a(f"s_lshl_b32 s{st}, s{st}, {n}")
        a(f"s_add_u32 s{sp}, s{sp}, s{st}")
        if n:
            a(f"s_lshr_b32 s{st}, s{sW}, 4")
            a(f"s_and_b32 s{st}, s{st}, {(1 << n) - 1}")
            a(f"s_add_u32 s{sp}, s{sp}, s{st}")
    def is_role(cst, lab_else):
        a(f"s_add_u32 s{sT0}, s{sW}, {cst}")
        a(f"s_and_b32 s{sT0}, s{sT0}, 7")
        a(f"s_cmp_eq_u32 s{sV}, s{sT0}")
        a(f"s_cbranch_scc0 {lab_else}")
    R_PUB, R_GATE, R_GATH = 0, 3, 5

    a(f".globl {N}")
    a(".p2align 8")
    a(f".type {N},@function")
    a.label(N)
    c("workgroups beyond the 256 that carry work leave at once")
    a(f"s_cmp_ge_u32 s{sW}, 256")
    a(f"s_cbranch_scc1 {N}_done")
    if cfg.xorid: a(f"s_xor_b32 s{sW}, s{sW}, {cfg.xorid}")
    if cfg.diag: a("s_memrealtime s[100:101]")
    a(f"s_load_dwordx16 s[4:19], s[0:1], 0")
    a(f"s_load_dwordx8 s[20:27], s[0:1], 64")
    a(f"s_load_dwordx4 s[28:31], s[0:1], 96")
    c("lane = 16*row + 4*bank + q ; c = lane & 15 ; wave id in s3")
    a(f"v_lshrrev_b32 v1, 6, v0")
    a(f"v_and_b32 v{vLane}, 63, v0")
    a(f"v_readfirstlane_b32 s{sV}, v1")
    a(f"v_lshrrev_b32 v{vRow}, 4, v{vLane}")
    a(f"v_lshrrev_b32 v{vBank}, 2, v{vLane}")
    a(f"v_and_b32 v{vBank}, 3, v{vBank}")
    a(f"v_and_b32 v{vQ}, 3, v{vLane}")
    a(f"v_and_b32 v{vC}, 15, v{vLane}")
    a(f"v_lshlrev_b32 v{vVoff}, 4, v{vLane}")
    WQA, WQB, XA, XB = 164, 228, 236, 244
    vWa, vWb, vWo = T0, T0 + 1, T0 + 3
    c("x offsets.  XA: bank*1024 + wave*128 + row*32 ; XB: bank*1024 + slice*128 + wave*16 + row*4")
    a(f"v_lshlrev_b32 v{vT+1}, 10, v{vBank}")
    a(f"s_lshl_b32 s{sT0}, s{sV}, 7")
    a(f"v_lshl_add_u32 v{vT}, v{vRow}, 5, v{vT+1}")
    a(f"v_add_u32 v{vT}, s{sT0}, v{vT}")
    a(f"s_and_b32 s{sT1}, s{sW}, 7")
    a(f"s_lshl_b32 s{sT2}, s{sT1}, 7")
    a(f"s_lshl_b32 s{sT3}, s{sV}, 4")
    a(f"s_add_u32 s{sT2}, s{sT2}, s{sT3}")
    a(f"v_lshl_add_u32 v{vT+1}, v{vRow}, 2, v{vT+1}")
    a(f"v_add_u32 v{vT+1}, s{sT2}, v{vT+1}")
    c("wq lane offsets.  A: 16 rows per DPP row ; B: 2 rows per DPP row ; + c*16")
    a(f"v_lshlrev_b32 v{vWa}, 4, v{vC}")
    a(f"v_lshl_add_u32 v{vWb}, v{vRow}, 14, v{vWa}")
    a(f"v_lshl_add_u32 v{vWo}, v{vRow}, 10, v{vWa}")
    a(f"v_lshl_add_u32 v{vWa}, v{vRow}, 17, v{vWa}")
    c("wq_A scalar offset (s85): wave*64 rows*8192 + head*256, head = (w>>1)&31")
    pair_of(sT0, sT2)
    a(f"s_and_b32 s{sT0}, s{sT0}, 31")
    a(f"s_lshl_b32 s{sT0}, s{sT0}, 8")
    a(f"s_lshl_b32 s{sT2}, s{sV}, 19")
    a(f"s_add_u32 s{sT0}, s{sT0}, s{sT2}")
    c("wq_B scalar offset (s86): (8*slice + wave)*8 rows*8192 + (w>>3)*256, slice = w&7")
    a(f"s_lshl_b32 s{sT1}, s{sT1}, 3")
    a(f"s_add_u32 s{sT1}, s{sT1}, s{sV}")
    a(f"s_lshl_b32 s{sT1}, s{sT1}, 16")
    a(f"s_lshr_b32 s{sT2}, s{sW}, 3")
    a(f"s_lshl_b32 s{sT2}, s{sT2}, 8")
    a(f"s_add_u32 s{sT1}, s{sT1}, s{sT2}")
    a(f"s_lshr_b32 s{sB}, s{sW}, 6")
    a(f"s_lshl_b32 s{sSlot}, s{sW}, 13")
    a("s_waitcnt lgkmcnt(0)")
    srd(R_X, P_X, 4096)
    srd(R_WQA, P_WQA, 4 << 20)
    c("x: group kk of a wave's 16 rows per DPP row is row group (kk + b) & 3, so the four workgroups of an XCD that share")
    c("a head first-touch different weight lines")
    for kk in range(4):
        a(f"s_add_u32 s{sT2}, s{sB}, {kk}")
        a(f"s_and_b32 s{sT2}, s{sT2}, 3")
        a(f"s_lshl_b32 s{sT2}, s{sT2}, 3")
        a(f"buffer_load_dwordx2 {vr(XA+2*kk,2)}, v{vT}, {sr(R_X,4)}, s{sT2} offen")
    a(f"buffer_load_dword v{XB}, v{vT+1}, {sr(R_X,4)}, 0 offen")
    for kk in range(4):
        a(f"s_add_u32 s{sT2}, s{sB}, {kk}")
        a(f"s_and_b32 s{sT2}, s{sT2}, 3")
        a(f"s_lshl_b32 s{sT2}, s{sT2}, 15")
        a(f"s_add_u32 s{sT2}, s{sT2}, s{sT0}")
        for q in range(4):
            i = 4 * kk + q
            a(f"buffer_load_dwordx4 {vr(WQA+4*i,4)}, v{vWa}, {sr(R_WQA,4)}, s{sT2} offen nt")
            if q < 3: a(f"s_add_u32 s{sT2}, s{sT2}, 8192")
    srd(R_WQB, P_WQB, 4 << 20)
    a(f"buffer_load_dwordx4 {vr(WQB,4)}, v{vWb}, {sr(R_WQB,4)}, s{sT1} offen nt")
    a(f"s_add_u32 s{sT1}, s{sT1}, 8192")
    a(f"buffer_load_dwordx4 {vr(WQB+4,4)}, v{vWb}, {sr(R_WQB,4)}, s{sT1} offen nt")
    c("wo rows of this workgroup's output unit: head hU = 4*(w&7) + ((w>>3)&3), column group w>>6, row half (w>>5)&1")
    srd(R_WOA, P_WOA, 4 << 20)
    srd(R_WOB, P_WOB, 4 << 20)
    a(f"s_and_b32 s{sT0}, s{sW}, 7")
    a(f"s_lshl_b32 s{sT0}, s{sT0}, 2")
    a(f"s_lshr_b32 s{sT1}, s{sW}, 3")
    a(f"s_and_b32 s{sT1}, s{sT1}, 3")
    a(f"s_add_u32 s{sT0}, s{sT0}, s{sT1}")
    a(f"s_lshl_b32 s{sT0}, s{sT0}, 4")
    a(f"s_lshr_b32 s{sT1}, s{sW}, 5")
    a(f"s_and_b32 s{sT1}, s{sT1}, 1")
    a(f"s_lshl_b32 s{sT1}, s{sT1}, 3")
    a(f"s_add_u32 s{sT0}, s{sT0}, s{sT1}")
    a(f"s_add_u32 s{sT0}, s{sT0}, s{sV}")
    a(f"s_lshl_b32 s{sT0}, s{sT0}, 13")
    a(f"s_lshr_b32 s{sT1}, s{sW}, 6")
    a(f"s_lshl_b32 s{sT1}, s{sT1}, 8")
    a(f"s_add_u32 s{sT0}, s{sT0}, s{sT1}")
    a(f"s_add_u32 s{sT1}, s{sT0}, 4096")
    a(f"buffer_load_dwordx4 {vr(WOA,4)}, v{vWo}, {sr(R_WOA,4)}, s{sT0} offen nt")
    a(f"buffer_load_dwordx4 {vr(WOA+4,4)}, v{vWo}, {sr(R_WOA,4)}, s{sT1} offen nt")
    a(f"buffer_load_dwordx4 {vr(WOB,4)}, v{vWo}, {sr(R_WOB,4)}, s{sT0} offen nt")
    a(f"buffer_load_dwordx4 {vr(WOB+4,4)}, v{vWo}, {sr(R_WOB,4)}, s{sT1} offen nt")
    srd(R_WS, P_WS, WS_BYTES)
    srd(R_GW, P_GW, 1024)
    extra = [0]
    c("lane constants and descriptors")
    a(f"v_lshlrev_b32 v{vKoff}, 8, v{vBank}")
    a(f"v_lshl_add_u32 v{vKoff}, v{vRow}, 6, v{vKoff}")
    a(f"v_lshl_add_u32 v{vKoff}, v{vQ}, 4, v{vKoff}")
    a(f"v_and_b32 v{vT}, 1, v{vQ}")
    a(f"v_cmp_eq_u32 vcc, 0, v{vT}")
    a(f"v_mov_b32 v{vT}, 0xffff0000")
    a(f"v_mov_b32 v{vT+1}, 0x0000ffff")
    a(f"v_cndmask_b32 v{vT}, v{vT}, v{vT+1}, vcc")
    a(f"v_cmp_gt_u32 vcc, 2, v{vQ}")
    a(f"v_cndmask_b32 v{vMask0}, 0, v{vT}, vcc")
    a(f"v_cndmask_b32 v{vMask1}, v{vT}, 0, vcc")
    for k in (0, 1, 4, 5): a(f"v_mov_b32 v{WIN+k}, 0")
    a(f"v_mov_b32 v{vOne}, 1")
    a(f"s_mov_b32 s{sScale}, 0x3db504f3")
    a(f"s_mov_b32 s{sL2E}, 0x3fb8aa3b")
    a(f"s_mov_b32 s{sNL2E}, 0xbfb8aa3b")
    a(f"s_mov_b32 s{sSelLo}, 0x01000100")
    a(f"s_mov_b32 s{sSelHi}, 0x03020302")
    srd(R_KA, P_KA, 256 << 20)
    srd(R_VA, P_VA, 256 << 20)
    srd(R_KB, P_KB, 64 << 20)
    srd(R_VB, P_VB, 64 << 20)
    srd(R_OUT, P_OUT, 4096)
    if cfg.tlog:
        a(f"s_lshl_b32 s{sLog}, s{sW}, 3")
        a(f"s_add_u32 s{sLog}, s{sLog}, s{sV}")
        a(f"s_lshl_b32 s{sLog}, s{sLog}, 8")
        a(f"s_add_u32 s{sLog}, s{sLog}, {WS_TLOG}")
    for k in range(3):
        a(f"s_mov_b32 s{R_IK+k}, s{R_KA+k}")
        a(f"s_mov_b32 s{R_IV+k}, s{R_VA+k}")
    a(f"s_mov_b32 s{R_IK+3}, 0x20000")
    a(f"s_mov_b32 s{R_IV+3}, 0x20000")
    c("A: this wave streams piece (stripe j, column wave) of the workgroup's 1 MiB: offset w*1M + j*32K + wave*4K")
    if cfg.PX == 1:
        a(f"s_lshl_b32 s{sOff}, s{sW}, 20")
    else:
        pair_of(sOff, sT1)
        a(f"s_lshl_b32 s{sOff}, s{sOff}, 21")
        a(f"s_lshr_b32 s{sT1}, s{sW}, 3")
        a(f"s_and_b32 s{sT1}, s{sT1}, 1")
        a(f"s_lshl_b32 s{sT1}, s{sT1}, 20")
        a(f"s_add_u32 s{sOff}, s{sOff}, s{sT1}")
    a(f"s_lshl_b32 s{sT1}, s{sV}, 12")
    a(f"s_add_u32 s{sOff}, s{sOff}, s{sT1}")
    if cfg.rotA:
        a(f"s_mov_b32 s{sAbase}, s{sOff}")
        if cfg.rotA == 1: a(f"s_and_b32 s{sStr}, s{sW}, 31")
        elif cfg.rotA == 2:
            a(f"s_lshr_b32 s{sStr}, s{sW}, 3"); a(f"s_and_b32 s{sStr}, s{sStr}, 31")
        elif cfg.rotA == 3:
            a(f"s_mul_i32 s{sStr}, s{sW}, 5"); a(f"s_and_b32 s{sStr}, s{sStr}, 31")
        elif cfg.rotA == 4:
            a(f"s_and_b32 s{sStr}, s{sW}, 7"); a(f"s_lshl_b32 s{sStr}, s{sStr}, 2")
        elif cfg.rotA == 5:
            a(f"s_lshr_b32 s{sStr}, s{sW}, 3"); a(f"s_and_b32 s{sStr}, s{sStr}, 7"); a(f"s_lshl_b32 s{sStr}, s{sStr}, 2")
        a(f"s_lshl_b32 s{sOff}, s{sStr}, 15")
        a(f"s_add_u32 s{sOff}, s{sOff}, s{sAbase}")
    c("B: column `wave` of group w>>3 (2 MiB, 64 stripes)")
    a(f"s_lshr_b32 s{sBbase}, s{sW}, 3")
    a(f"s_lshl_b32 s{sBbase}, s{sBbase}, 21")
    a(f"s_add_u32 s{sBbase}, s{sBbase}, s{sT1}")
    a(f"v_add_u32 v{vKcur}, s{sOff}, v{vKoff}")
    a(f"v_add_u32 v{vVcur}, s{sOff}, v{vVoff}")
    a(f"v_mov_b32 v{vT}, {L_FLAG}")
    a(f"v_mov_b32 v{vT+1}, 0")
    a(f"ds_write_b32 v{vT}, v{vT+1}")
    if cfg.diag:
        stamp(12)
        a(f"s_sub_u32 s{sT3}, s{sT3}, 4")
        a(f"v_mov_b32 v{vT+1}, s{sT3}")
        a(f"v_mov_b32 v{vT}, s100")
        a(f"buffer_store_dword v{vT}, v{vT+1}, {sr(R_WS,4)}, 0 offen")
    c("q_A partial over this wave's 64 rows.  Younger than wq_A item i: the later items, wq_B (2), wo (4), K/V loads")
    QA0, QA1 = DD, DD + 4
    QB0, QB1 = DD + 8, DD + 12
    nkv = 0
    kvseq = [(0, 0, u) for u in range(4)] + [(0, 1, u) for u in range(4)]
    for i in range(16):
        a(f"s_waitcnt vmcnt({(15 - i) + 6 + nkv})")
        if i == 0: stamp(13)
        sel = sSelLo if i % 2 == 0 else sSelHi
        x = XA + i // 2
        a(f"v_perm_b32 v{PP}, v{x}, v{x}, s{sel}")
        win_from(PP)
        pv(WQA + 4 * i, QA0, QA1, i == 0)
        if i >= cfg.I0 and nkv < 8:
            kv_load(*kvseq[nkv]); nkv += 1
    c("q_B partial over this wave's 8 rows of the slice")
    for i in range(2):
        a(f"s_waitcnt vmcnt({(1 - i) + 4 + nkv})")
        sel = sSelLo if i == 0 else sSelHi
        a(f"v_perm_b32 v{PP}, v{XB}, v{XB}, s{sel}")
        win_from(PP)
        pv(WQB + 4 * i, QB0, QB1, i == 0)
    a(f"s_lshl_b32 s{sT0}, s{sV}, 11")
    a(f"v_add_u32 v{vW1}, s{sT0}, v{vVoff}")
    a(f"ds_write_b128 v{vW1}, {vr(QA0,4)} offset:{L_QA}")
    a(f"ds_write_b128 v{vW1}, {vr(QA1,4)} offset:{L_QA+1024}")
    a(f"ds_write_b128 v{vW1}, {vr(QB0,4)} offset:{L_QBP}")
    a(f"ds_write_b128 v{vW1}, {vr(QB1,4)} offset:{L_QBP+1024}")
    while nkv < 8:
        kv_load(*kvseq[nkv]); nkv += 1
    a("s_waitcnt lgkmcnt(0)")
    stamp(14)
    a("s_barrier")
    c("q_A operand: lane (row, bank, q) sums QA[wave'][m][16*b + 4*row + q] over the 8 waves, rounds to bf16")
    a(f"s_lshl_b32 s{sT0}, s{sB}, 8")
    a(f"v_lshlrev_b32 v{vT}, 6, v{vRow}")
    a(f"v_lshl_add_u32 v{vT}, v{vQ}, 4, v{vT}")
    a(f"v_add_u32 v{vT}, s{sT0}, v{vT}")
    S = TMP
    for vv in range(8):
        for m in range(2):
            a(f"ds_read_b128 {vr(S + 8*vv + 4*m, 4)}, v{vT} offset:{L_QA + vv*2048 + m*1024}")
    adv_off()
    a(f"v_add_u32 v{vKcur}, s{sOff}, v{vKoff}")
    a(f"v_add_u32 v{vVcur}, s{sOff}, v{vVoff}")
    adv_off()
    a("s_waitcnt lgkmcnt(0)")
    tree_sum8(S)
    for k in range(4):
        a(f"v_cvt_pk_bf16_f32 v{QOP+k}, v{S+2*k}, v{S+2*k+1}")
    c("publisher wave: reduce and publish the q_B partial, clear, then stream on with the stores discounted")
    is_role(R_PUB, f"{N}_nopub")
    for vv in range(8):
        for m in range(2):
            a(f"ds_read_b128 {vr(S + 8*vv + 4*m, 4)}, v{vVoff} offset:{L_QBP + vv*2048 + m*1024}")
    a(f"s_lshl_b32 s{sT0}, s{sW}, 11")
    a(f"s_add_u32 s{sT0}, s{sT0}, {WS_QB}")
    a(f"v_lshlrev_b32 v{vT}, 5, v{vC}")
    a(f"v_lshl_add_u32 v{vT}, v{vRow}, 9, v{vT}")
    a(f"v_add_u32 v{vT}, s{sT0}, v{vT}")
    a("s_waitcnt lgkmcnt(0)")
    tree_sum8(S)
    a(f"buffer_store_dwordx4 {vr(S,4)}, v{vT}, {sr(R_WS,4)}, 0 offen sc1")
    a(f"buffer_store_dwordx4 {vr(S+4,4)}, v{vT}, {sr(R_WS,4)}, 0 offen offset:16 sc1")
    c("mark this workgroup's hand-off slots empty (all ones); workgroup 8k zeroes the claim counters of group k")
    for k in range(4): a(f"v_mov_b32 v{PP+k}, -1")
    a(f"v_add_u32 v{vT}, s{sSlot}, v{vVoff}")
    for k in range(4):
        a(f"buffer_store_dwordx4 {vr(PP,4)}, v{vT}, {sr(R_WS,4)}, 0 offen offset:{k*1024} sc1")
    a(f"v_add_u32 v{vT}, 4096, v{vT}")
    a(f"buffer_store_dwordx4 {vr(PP,4)}, v{vT}, {sr(R_WS,4)}, 0 offen sc1")
    a(f"s_and_b32 s{sT0}, s{sW}, 7")
    a(f"s_cmp_eq_u32 s{sT0}, 0")
    a(f"s_cbranch_scc0 {N}_noclr")
    a(f"s_lshl_b32 s{sT0}, s{sW}, 8")
    a(f"s_add_u32 s{sT0}, s{sT0}, {WS_CNT}")
    a(f"v_lshlrev_b32 v{vT}, 8, v{vLane}")
    a(f"v_add_u32 v{vT}, s{sT0}, v{vT}")
    a(f"v_mov_b32 v{vT+1}, 0")
    a("s_mov_b64 exec, 0xff")
    a(f"buffer_store_dword v{vT+1}, v{vT}, {sr(R_WS,4)}, 0 offen sc1")
    a("s_mov_b64 exec, -1")
    a.label(f"{N}_noclr")
    for isV in (0, 1):
        for u in range(4):
            a(f"s_waitcnt vmcnt({cfg.PD - 1 + 7})"); kv_load(1, isV, u)
    a(f"s_branch {N}_t1d")
    a.label(f"{N}_nopub")
    for isV in (0, 1):
        for u in range(4):
            a(f"s_waitcnt vmcnt({cfg.PD-1})"); kv_load(1, isV, u)
    a.label(f"{N}_t1d")
    for k in range(8): a(f"v_mov_b32 v{ACC+k}, 0")
    a(f"v_mov_b32 v{vM}, 0xff7fffff")
    a(f"v_mov_b32 v{vL}, 0")
    stamp(1)

    uid = [0]
    Dcur = [D]
    def issue(st, isV, u, rk, rv):
        D = Dcur[0]
        if rk == R_IK:
            uid[0] += 1
            a(f"s_cbranch_vccnz {N}_f{uid[0]}")
            a(f"s_waitcnt vmcnt({D-1})")
            a.label(f"{N}_f{uid[0]}")
        else:
            a(f"s_waitcnt vmcnt({D-1})")
        kv_load(st, isV, u, rk, rv)
    def diag(u0, u1):
        for cc in range(4):
            for u in (u0, u1):
                d = DD + 4 * u + cc
                qp = f"quad_perm:[{cc},{cc},{cc},{cc}]"
                if cc == 0: a(f"v_mov_b32_dpp v{Y+u}, v{d} {qp} {FULL}")
                else:       a(f"v_add_f32_dpp v{Y+u}, v{d}, v{Y+u} {qp} {FULL}")
    def round4():
        a(f"v_cvt_pk_bf16_f32 v{T0}, v{Y}, v{Y+1}")
        a(f"v_cvt_pk_bf16_f32 v{T0+1}, v{Y+2}, v{Y+3}")
        a(f"v_lshlrev_b32 v{Y}, 16, v{T0}")
        a(f"v_and_b32 v{Y+1}, 0xffff0000, v{T0}")
        a(f"v_lshlrev_b32 v{Y+2}, 16, v{T0+1}")
        a(f"v_and_b32 v{Y+3}, 0xffff0000, v{T0+1}")
    def body(st, rk, rv):
        c(f"--- mini-tile in ring set {st}: 16 keys.  QK^T, online softmax, PV; issues the tile two ahead")
        a("s_waitcnt vmcnt(12)")
        for u in range(4):
            a(f"{MFMA} {vr(DD+4*u,4)}, {vr(kslot(st,u),4)}, {vr(QOP,4)}, 0")
        issue(st, 0, 0, rk, rv)
        diag(0, 1)
        issue(st, 0, 1, rk, rv)
        diag(2, 3)
        round4()
        issue(st, 0, 2, rk, rv)
        for u in range(4): a(f"v_mul_f32 v{Y+u}, s{sScale}, v{Y+u}")
        round4()
        a(f"v_max3_f32 v{T0+2}, v{Y}, v{Y+1}, v{Y+2}")
        a(f"v_max_f32 v{T0+2}, v{T0+2}, v{Y+3}")
        xrow('v_max_f32', T0 + 2, T0 + 3)
        a(f"v_max_f32 v{vMn}, v{vM}, v{T0+2}")
        issue(st, 0, 3, rk, rv)
        a(f"v_sub_f32 v{vAl}, v{vM}, v{vMn}")
        a(f"v_mul_f32 v{vNM}, s{sNL2E}, v{vMn}")
        a(f"v_mul_f32 v{vAl}, s{sL2E}, v{vAl}")
        for u in range(4): a(f"v_fma_f32 v{Y+u}, v{Y+u}, s{sL2E}, v{vNM}")
        a(f"v_exp_f32 v{vAl}, v{vAl}")
        for u in range(4): a(f"v_exp_f32 v{Y+u}, v{Y+u}")
        a(f"v_mov_b32 v{vM}, v{vMn}")
        for h in range(4):
            a(f"v_mov_b32_dpp v{vAT}, v{vAl} row_newbcast:{4*h} row_mask:{hex(1<<h)} bank_mask:0xf")
        a(f"v_fma_f32 v{vL}, v{vL}, v{vAl}, v{Y}")
        for u in range(4): a(f"v_cvt_pk_bf16_f32 v{PP+u}, v{Y+u}, v{Y+u}")
        a(f"v_add_f32 v{T0}, v{Y+1}, v{Y+2}")
        a(f"v_add_f32 v{vL}, v{vL}, v{Y+3}")
        a(f"v_add_f32 v{vL}, v{vL}, v{T0}")
        for k in range(8): a(f"v_mul_f32 v{ACC+k}, v{ACC+k}, v{vAT}")
        a("s_waitcnt vmcnt(12)")
        for u in range(4):
            win_from(PP + u)
            pv(vslot(st, u), ACC, ACC + 4, False)
            issue(st, 1, u, rk, rv)
        tlog()
    def top_static():
        a(f"v_add_u32 v{vKcur}, s{sOff}, v{vKoff}")
        a(f"v_add_u32 v{vVcur}, s{sOff}, v{vVoff}")
        adv_off()
    def sclaim():
        a(f"s_mov_b32 s{sClaim}, 1")
        a(f"s_atomic_add s{sClaim}, s[{P_WS}:{P_WS+1}], s{sCntB} glc")
    def state_switch():
        a("s_nop 7")
        for k in range(8): a(f"v_mov_b32 v{ACCA+k}, v{ACC+k}")
        a(f"v_mov_b32 v{vMA}, v{vM}")
        a(f"v_mov_b32 v{vLA}, v{vL}")
        for k in range(8): a(f"v_mov_b32 v{ACC+k}, 0")
        a(f"v_mov_b32 v{vM}, 0xff7fffff")
        a(f"v_mov_b32 v{vL}, 0")
        for k in range(4): a(f"v_mov_b32 v{QOP+k}, v{QB+k}")
        a(f"s_mov_b32 s{sBst}, 1")
        stamp(2)
    def top_dyn(st):
        lab = f"{N}_d{st}"
        c("next B piece: the rest of the current chunk, else the chunk claimed one tile ago")
        a(f"s_cmp_eq_u32 s{sRem}, 0")
        a(f"s_cbranch_scc1 {lab}_new")
        a(f"s_add_u32 s{sIdx}, s{sIdx}, 1")
        a(f"s_sub_u32 s{sRem}, s{sRem}, 1")
        a.label(f"{lab}_have")
        a(f"s_lshl_b32 s{sT0}, s{sIdx}, 15")
        a(f"s_add_u32 s{sT0}, s{sT0}, s{sBbase}")
        a(f"s_mov_b32 s{sK2}, s{sKc}")
        a(f"s_mov_b32 s{sKc}, 3")
        a(f"s_cmp_eq_u32 s{sRem}, 0")
        a(f"s_cbranch_scc0 {lab}_go2")
        a(f"s_cmp_ge_u32 s{sClaim}, {cfg.stopc}")
        a(f"s_cbranch_scc1 {lab}_skip")
        sclaim()
        a.label(f"{lab}_go2")
        a(f"v_add_u32 v{vKcur}, s{sT0}, v{vKoff}")
        a(f"v_add_u32 v{vVcur}, s{sT0}, v{vVoff}")
        a(f"s_cmp_eq_u32 s{sK0}, 2")
        a(f"s_cbranch_scc1 {lab}_sw")
        a.label(f"{lab}_body")
    def top_dyn_cold(st):
        lab = f"{N}_d{st}"
        a.label(f"{lab}_new")
        c("chunks of a column (64 stripes, 8 waves): claims 0..7 -> 5 stripes, 8..15 -> 2, 16..23 -> 1")
        a("s_waitcnt lgkmcnt(0)")
        a(f"s_mul_i32 s{sIdx}, s{sClaim}, 5")
        a(f"s_mov_b32 s{sRem}, 4")
        a(f"s_cmp_lt_u32 s{sClaim}, 8")
        a(f"s_cbranch_scc1 {lab}_have")
        a(f"s_lshl_b32 s{sIdx}, s{sClaim}, 1")
        a(f"s_add_u32 s{sIdx}, s{sIdx}, 24")
        a(f"s_mov_b32 s{sRem}, 1")
        a(f"s_cmp_lt_u32 s{sClaim}, 16")
        a(f"s_cbranch_scc1 {lab}_have")
        a(f"s_add_u32 s{sIdx}, s{sClaim}, 40")
        a(f"s_mov_b32 s{sRem}, 0")
        a(f"s_cmp_lt_u32 s{sClaim}, 24")
        a(f"s_cbranch_scc1 {lab}_have")
        c("column exhausted: out-of-range (zero-fill) dummy tile, no throttle, no further claims")
        a(f"s_mov_b32 s{sT0}, 0x7f000000")
        a(f"s_mov_b32 s{sK2}, 0")
        a("s_mov_b64 vcc, -1")
        a(f"s_branch {lab}_go2")
        a.label(f"{lab}_skip")
        c("a wave that got one of the last four pieces does not claim again; every wave makes exactly one claim >= 20,")
        c("so the eight such claims hand out pieces 20..23")
        a(f"s_mov_b32 s{sClaim}, 0x7fffffff")
        a(f"s_branch {lab}_go2")
        a.label(f"{lab}_sw")
        state_switch()
        a("s_nop 1")
        a(f"s_branch {lab}_body")

    a(f"s_mov_b32 s{sJ}, 0")
    if cfg.D0:
        c("first tiles with a wider window: the workgroup catches up the time its q projection took")
        is_role(R_PUB, f"{N}_j0r")
        a("s_waitcnt vmcnt(8)")
        a(f"s_mov_b32 s{sT0}, 1")
        a(f"s_atomic_add s{sT0}, s[{P_DBG}:{P_DBG+1}], 0x0")
        a("s_waitcnt lgkmcnt(0)")
        stamp(19)
        a.label(f"{N}_j0r")
        Dcur[0] = cfg.D0
        for jj in range(0, cfg.N0, 2):
            top_static(); body(0, R_KA, R_VA)
            top_static(); body(1, R_KA, R_VA)
        Dcur[0] = D
        a(f"s_mov_b32 s{sJ}, {cfg.N0}")
        assert cfg.N0 == 2
    a.label(f"{N}_sloop")
    a(f"s_cmp_eq_u32 s{sJ}, 0")
    a(f"s_cbranch_scc1 {N}_job0")
    a(f"s_cmp_eq_u32 s{sJ}, 2")
    a(f"s_cbranch_scc1 {N}_job2")
    a(f"s_cmp_eq_u32 s{sJ}, {cfg.J_POLL}")
    a(f"s_cbranch_scc1 {N}_jobp")
    a(f"s_cmp_eq_u32 s{sJ}, {cfg.J_POLL + 2}")
    a(f"s_cbranch_scc1 {N}_jobg")
    a.label(f"{N}_jobret")
    top_static(); body(0, R_KA, R_VA)
    top_static(); body(1, R_KA, R_VA)
    a(f"s_add_u32 s{sJ}, s{sJ}, 2")
    a(f"s_cmp_lt_u32 s{sJ}, {NS-4}")
    a(f"s_cbranch_scc1 {N}_sloop")
    c("address registers of the tail, computed while streaming")
    a(f"s_lshl_b32 s{sT0}, s{sV}, 5")
    a(f"v_lshlrev_b32 v{vW2}, 3, v{vBank}")
    a(f"v_add_u32 v{vW2}, s{sT0}, v{vW2}")
    vTid, vI32, vHH = T0, T0 + 1, T0 + 2
    a(f"s_lshl_b32 s{sT0}, s{sV}, 6")
    a(f"v_add_u32 v{vTid}, s{sT0}, v{vLane}")
    a(f"v_and_b32 v{vI32}, 31, v{vTid}")
    a(f"v_lshrrev_b32 v{vHH}, 5, v{vTid}")
    a(f"v_and_b32 v{vHH}, 3, v{vHH}")
    a(f"v_and_b32 v{vT}, 1, v{vI32}")
    a(f"v_lshlrev_b32 v{vT}, 10, v{vT}")
    a(f"v_lshrrev_b32 v{vT+1}, 1, v{vI32}")
    a(f"v_lshl_add_u32 v{vT+1}, v{vHH}, 4, v{vT+1}")
    a(f"v_lshl_add_u32 v{vLA_}, v{vT+1}, 4, v{vT}")
    a(f"s_cmp_eq_u32 s{sV}, 2")
    for (sr_, va, vb) in ((sT0, L_AM, L_BM), (sT1, L_MLA, L_MLB), (sT2, O_OA, O_OB), (sT3, O_MLA, O_MLB)):
        a(f"s_mov_b32 s{sr_}, {vb}")
        a(f"s_cmov_b32 s{sr_}, {va}")
    a(f"s_cselect_b32 s{sMrg+1}, 0, -1")
    a(f"s_mov_b32 s{sMrg}, -1")
    a(f"v_add_u32 v{vRA}, s{sT0}, v{vLA_}")
    a(f"v_lshlrev_b32 v{vML}, 3, v{vHH}")
    a(f"v_add_u32 v{vGM}, s{sT3}, v{vML}")
    a(f"v_add_u32 v{vGM}, s{sSlot}, v{vGM}")
    a(f"v_add_u32 v{vML}, s{sT1}, v{vML}")
    a(f"v_lshlrev_b32 v{vGy}, 9, v{vHH}")
    a(f"v_lshl_add_u32 v{vGy}, v{vI32}, 4, v{vGy}")
    a(f"v_add_u32 v{vGy}, s{sSlot}, v{vGy}")
    a(f"v_add_u32 v{vG}, s{sT2}, v{vGy}")
    a(f"v_cmp_eq_u32 s[{sMl0}:{sMl0+1}], 0, v{vI32}")
    a(f"s_and_b64 s[{sMl0}:{sMl0+1}], s[{sMl0}:{sMl0+1}], s[{sMrg}:{sMrg+1}]")
    a(f"s_and_b32 s{sT0}, s{sW}, 7")
    a(f"s_lshr_b32 s{sT1}, s{sW}, 3")
    a(f"s_and_b32 s{sT1}, s{sT1}, 3")
    a(f"s_lshr_b32 s{sT3}, s{sW}, 5")
    a(f"s_and_b32 s{sT3}, s{sT3}, 1")
    a(f"s_lshl_b32 s{sT3}, s{sT3}, 8")
    a(f"s_lshl_b32 s{sT2}, s{sT0}, 3")
    a(f"s_add_u32 s{sT2}, s{sT2}, s{sV}")
    a(f"v_lshlrev_b32 v{vT}, 6, v{vRow}")
    a(f"v_add_u32 v{vBm}, s{sT2}, v{vT}")
    a(f"v_lshlrev_b32 v{vBm}, 13, v{vBm}")
    a(f"s_lshl_b32 s{sT2}, s{sT1}, 9")
    a(f"s_add_u32 s{sT2}, s{sT2}, s{sT3}")
    a(f"s_add_u32 s{sT2}, s{sT2}, {O_OB}")
    a(f"v_lshl_add_u32 v{vBo}, v{vC}, 4, v{vBm}")
    a(f"v_add_u32 v{vBo}, s{sT2}, v{vBo}")
    a(f"s_lshl_b32 s{sT2}, s{sT1}, 3")
    a(f"s_add_u32 s{sT2}, s{sT2}, {O_MLB}")
    a(f"v_add_u32 v{vBm}, s{sT2}, v{vBm}")
    a(f"s_lshl_b32 s{sT2}, s{sT0}, 2")
    a(f"s_add_u32 s{sT2}, s{sT2}, s{sT1}")
    if cfg.PX == 1:
        a(f"s_lshl_b32 s{sT2}, s{sT2}, 1")
        a(f"s_add_u32 s{sT2}, s{sT2}, s{sV}")
    else:
        n = {8: 0, 16: 1, 32: 2}[cfg.PX]
        a(f"s_lshr_b32 s{sIdx}, s{sT2}, {n}")
        a(f"s_and_b32 s{sIdx}, s{sIdx}, 7")
        a(f"s_and_b32 s{sJ}, s{sT2}, {(1 << n) - 1}")
        a(f"s_lshl_b32 s{sJ}, s{sJ}, 4")
        a(f"s_add_u32 s{sIdx}, s{sIdx}, s{sJ}")
        a(f"s_lshr_b32 s{sT2}, s{sT2}, {3 + n}")
        a(f"s_lshl_b32 s{sT2}, s{sT2}, {4 + n}")
        a(f"s_add_u32 s{sT2}, s{sT2}, s{sIdx}")
        a(f"s_lshl_b32 s{sIdx}, s{sV}, 3")
        a(f"s_add_u32 s{sT2}, s{sT2}, s{sIdx}")
    a(f"v_add_u32 v{vAm}, s{sT2}, v{vT}")
    a(f"v_lshlrev_b32 v{vAm}, 13, v{vAm}")
    a(f"s_add_u32 s{sT3}, s{sT3}, {O_OA}")
    a(f"v_lshl_add_u32 v{vAo}, v{vC}, 4, v{vAm}")
    a(f"v_add_u32 v{vAo}, s{sT3}, v{vAo}")
    a(f"v_add_u32 v{vAm}, {O_MLA}, v{vAm}")
    a(f"s_lshl_b32 s{sT2}, s{sV}, 5")
    a(f"v_lshlrev_b32 v{vS2r}, 3, v{vRow}")
    a(f"v_add_u32 v{vS2r}, s{sT2}, v{vS2r}")
    vS, vMm = T0, T0 + 1
    a(f"v_lshrrev_b32 v{vS}, 1, v{vLane}")
    a(f"v_and_b32 v{vS}, 7, v{vS}")
    a(f"v_and_b32 v{vMm}, 1, v{vLane}")
    a(f"v_lshlrev_b32 v{vR1}, 10, v{vS}")
    a(f"v_lshl_add_u32 v{vR1}, v{vRow}, 8, v{vR1}")
    a(f"v_lshl_add_u32 v{vR1}, v{vMm}, 4, v{vR1}")
    a(f"v_add_u32 v{vR1}, s{sT2}, v{vR1}")
    a(f"v_lshlrev_b32 v{vR2}, 5, v{vS}")
    a(f"v_lshl_add_u32 v{vR2}, v{vRow}, 3, v{vR2}")
    a(f"v_cmp_gt_u32 s[{sS2}:{sS2+1}], 2, v{vS}")
    a(f"s_lshl_b32 s{sT0}, s{sV}, 8")
    a(f"v_lshlrev_b32 v{vO1}, 5, v{vRow}")
    a(f"v_lshl_add_u32 v{vO1}, v{vMm}, 4, v{vO1}")
    a(f"v_add_u32 v{vO1}, s{sT0}, v{vO1}")
    a(f"v_lshlrev_b32 v{vO2}, 5, v{vBank}")
    a(f"v_lshl_add_u32 v{vO2}, v{vRow}, 2, v{vO2}")
    a(f"v_add_u32 v{vO2}, s{sT0}, v{vO2}")
    a(f"s_and_b32 s{sT0}, s{sW}, 7")
    a(f"s_lshr_b32 s{sT1}, s{sW}, 3")
    a(f"s_and_b32 s{sT1}, s{sT1}, 7")
    a(f"s_lshr_b32 s{sT2}, s{sT0}, 1")
    a(f"s_lshl_b32 s{sT2}, s{sT2}, 19")
    a(f"s_lshl_b32 s{sT3}, s{sB}, 9")
    a(f"s_add_u32 s{sT2}, s{sT2}, s{sT3}")
    a(f"s_and_b32 s{sT3}, s{sT0}, 1")
    a(f"s_lshl_b32 s{sT3}, s{sT3}, 8")
    a(f"s_add_u32 s{sT2}, s{sT2}, s{sT3}")
    a(f"s_lshl_b32 s{sT3}, s{sT1}, 5")
    a(f"s_add_u32 s{sT2}, s{sT2}, s{sT3}")
    a(f"v_lshlrev_b32 v{vF}, 13, v{vLane}")
    a(f"v_add_u32 v{vF}, s{sT2}, v{vF}")
    a(f"v_and_b32 v{vT}, 1, v{vRow}")
    a(f"v_lshlrev_b32 v{vT}, 1, v{vT}")
    a(f"v_lshrrev_b32 v{vT+1}, 1, v{vRow}")
    a(f"v_add_u32 v{vT}, v{vT}, v{vT+1}")
    a(f"v_lshlrev_b32 v{vT}, 1, v{vT}")
    a(f"s_lshl_b32 s{sT2}, s{sB}, 10")
    a(f"s_lshl_b32 s{sT0}, s{sT0}, 7")
    a(f"s_lshl_b32 s{sT1}, s{sT1}, 4")
    a(f"s_add_u32 s{sT2}, s{sT2}, s{sT0}")
    a(f"s_add_u32 s{sT2}, s{sT2}, s{sT1}")
    a(f"v_add_u32 v{vOut}, s{sT2}, v{vT}")
    a(f"s_and_b32 s{sT0}, s{sW}, 0xf8")
    a(f"s_add_u32 s{sT0}, s{sT0}, s{sV}")
    a(f"s_lshl_b32 s{sT0}, s{sT0}, 8")
    a(f"s_add_u32 s{sCntB}, s{sT0}, {WS_CNT}")
    c("the q_B operand must be in LDS (its flag also says that every workgroup has cleared its slots and counters)")
    a(f"s_mov_b32 s{sSpin}, 0")
    a(f"v_mov_b32 v{vT}, {L_FLAG}")
    a.label(f"{N}_fl")
    a(f"ds_read_b32 v{vT+1}, v{vT}")
    a("s_waitcnt lgkmcnt(0)")
    a(f"v_readfirstlane_b32 s{sT0}, v{vT+1}")
    a(f"s_cmp_eq_u32 s{sT0}, 1")
    a(f"s_cbranch_scc1 {N}_fld")
    spin_tail(f"{N}_fl", f"{N}_fld")
    a.label(f"{N}_fld")
    a(f"ds_read_b128 {vr(QB,4)}, v{vVoff} offset:{L_QBOP}")
    a("s_waitcnt lgkmcnt(0)")
    top_static(); body(0, R_KA, R_VA)
    top_static(); sclaim(); body(1, R_KA, R_VA)
    c("from here on the issue side runs on branch B; kinds: 1 = A tile, 2 = first B tile, 3 = B tile, 0 = none")
    for k in range(3):
        a(f"s_mov_b32 s{R_IK+k}, s{R_KB+k}")
        a(f"s_mov_b32 s{R_IV+k}, s{R_VB+k}")
    a(f"s_mov_b32 s{sKc}, 2")
    a(f"s_mov_b32 s{sRem}, 0")
    a(f"s_mov_b32 s{sK0}, 1")
    a(f"s_mov_b32 s{sK1}, 1")
    a(f"s_mov_b32 s{sBst}, 0")
    a("s_mov_b64 vcc, 0")
    a.label(f"{N}_dloop")
    for st in range(2):
        top_dyn(st); body(st, R_IK, R_IV)
        a(f"s_mov_b32 s{sK0}, s{sK1}")
        a(f"s_mov_b32 s{sK1}, s{sK2}")
        a(f"s_cmp_eq_u32 s{sK0}, 0")
        a(f"s_cbranch_scc1 {N}_dend")
    a(f"s_branch {N}_dloop")
    for st in range(2): top_dyn_cold(st)
    a.label(f"{N}_dend")
    a(f"s_cmp_eq_u32 s{sBst}, 0")
    a(f"s_cbranch_scc0 {N}_dend2")
    state_switch()
    a.label(f"{N}_dend2")
    a("s_nop 7")
    stamp(3)

    c("=== tail: per-wave softmax states to LDS")
    a(f"ds_write_b128 v{vW1}, {vr(ACC,4)} offset:{L_BM}")
    a(f"ds_write_b128 v{vW1}, {vr(ACC+4,4)} offset:{L_BM+1024}")
    a(f"ds_write_b128 v{vW1}, {vr(ACCA,4)} offset:{L_AM}")
    a(f"ds_write_b128 v{vW1}, {vr(ACCA+4,4)} offset:{L_AM+1024}")
    for perm in ('v_permlane16_swap_b32', 'v_permlane32_swap_b32'):
        a(f"v_mov_b32 v{T0}, v{vL}")
        a(f"v_mov_b32 v{T0+1}, v{vLA}")
        a(f"{perm} v{vL}, v{T0}")
        a(f"{perm} v{vLA}, v{T0+1}")
        a(f"v_add_f32 v{vL}, v{vL}, v{T0}")
        a(f"v_add_f32 v{vLA}, v{vLA}, v{T0+1}")
    a(f"ds_write_b64 v{vW2}, {vr(vM,2)} offset:{L_MLB}")
    a(f"ds_write_b64 v{vW2}, {vr(vMA,2)} offset:{L_MLA}")
    a("s_waitcnt lgkmcnt(0)")
    a("s_barrier")
    stamp(4)
    c("waves 0,1 merge the four B heads, wave 2 (32 lanes) merges A; results are published (slots were all-ones)")
    a(f"s_cmp_lt_u32 s{sV}, 3")
    a(f"s_cbranch_scc0 {N}_nomerge")
    a(f"s_mov_b64 exec, s[{sMrg}:{sMrg+1}]")
    MLr, AC = 172, 188
    for vv in range(8):
        a(f"ds_read_b64 {vr(MLr+2*vv,2)}, v{vML} offset:{vv*32}")
    for vv in range(8):
        a(f"ds_read_b128 {vr(AC+4*vv,4)}, v{vRA} offset:{vv*2048}")
    a("s_waitcnt lgkmcnt(8)")
    Ms = 220
    a(f"v_max3_f32 v{Ms}, v{MLr}, v{MLr+2}, v{MLr+4}")
    a(f"v_max3_f32 v{Ms+1}, v{MLr+6}, v{MLr+8}, v{MLr+10}")
    a(f"v_max3_f32 v{Ms}, v{Ms}, v{MLr+12}, v{MLr+14}")
    a(f"v_max_f32 v{Ms}, v{Ms}, v{Ms+1}")
    for vv in range(8): a(f"v_sub_f32 v{MLr+2*vv}, v{MLr+2*vv}, v{Ms}")
    for vv in range(8): a(f"v_mul_f32 v{MLr+2*vv}, s{sL2E}, v{MLr+2*vv}")
    for vv in range(8): a(f"v_exp_f32 v{MLr+2*vv}, v{MLr+2*vv}")
    a("s_waitcnt lgkmcnt(0)")
    O4 = 224
    for r in range(4): a(f"v_mul_f32 v{O4+r}, v{MLr}, v{AC+r}")
    for vv in range(1, 8):
        for r in range(4): a(f"v_fma_f32 v{O4+r}, v{MLr+2*vv}, v{AC+4*vv+r}, v{O4+r}")
    a(f"buffer_store_dwordx4 {vr(O4,4)}, v{vG}, {sr(R_WS,4)}, 0 offen sc1")
    a(f"v_mul_f32 v{Ms+1}, v{MLr}, v{MLr+1}")
    for vv in range(1, 8): a(f"v_fma_f32 v{Ms+1}, v{MLr+2*vv}, v{MLr+2*vv+1}, v{Ms+1}")
    a(f"s_mov_b64 exec, s[{sMl0}:{sMl0+1}]")
    a(f"buffer_store_dwordx2 {vr(Ms,2)}, v{vGM}, {sr(R_WS,4)}, 0 offen sc1")
    a("s_mov_b64 exec, -1")
    stamp(5)
    a("s_nop 7")
    a.label(f"{N}_nomerge")

    c("=== hand-off 1: wave v fetches split v of the four batches (B) and, for v < 2, half v (A); any all-ones word = not yet")
    OB4, MLB2, OA4, MLA2 = 180, 184, 188, 192
    PB = RING
    a(f"s_lshl_b32 s{sT2}, s{sV}, 10")
    a(f"v_add_u32 v{T0}, s{sT2}, v{vVoff}")
    a(f"s_mov_b32 s{sSpin}, 0")
    a("s_waitcnt vmcnt(0)")
    for k in range(4): a(f"v_mov_b32 v{PB+8+k}, 0")
    a(f"v_mov_b32 v{PB+12}, 0")
    a(f"v_mov_b32 v{PB+13}, 0")
    if cfg.natwait:
        c("polling starts once this workgroup's own partials are acknowledged")
        a("s_barrier")
    elif cfg.pre1: a(f"s_sleep {cfg.pre1}")
    a.label(f"{N}_p1")
    a(f"buffer_load_dwordx4 {vr(PB,4)}, v{vBo}, {sr(R_WS,4)}, 0 offen sc1")
    a(f"buffer_load_dwordx2 {vr(PB+4,2)}, v{vBm}, {sr(R_WS,4)}, 0 offen sc1")
    a(f"s_cmp_lt_u32 s{sV}, 2")
    a(f"s_cbranch_scc0 {N}_p1n")
    a(f"buffer_load_dwordx4 {vr(PB+8,4)}, v{vAo}, {sr(R_WS,4)}, 0 offen sc1")
    a(f"buffer_load_dwordx2 {vr(PB+12,2)}, v{vAm}, {sr(R_WS,4)}, 0 offen sc1")
    a.label(f"{N}_p1n")
    a("s_waitcnt vmcnt(0)")
    a(f"v_max3_u32 v{vT}, v{PB}, v{PB+1}, v{PB+2}")
    a(f"v_max3_u32 v{vT+1}, v{PB+3}, v{PB+4}, v{PB+5}")
    a(f"v_max3_u32 v{vT}, v{vT}, v{PB+8}, v{PB+9}")
    a(f"v_max3_u32 v{vT+1}, v{vT+1}, v{PB+10}, v{PB+11}")
    a(f"v_max3_u32 v{vT}, v{vT}, v{PB+12}, v{PB+13}")
    a(f"v_max_u32 v{vT}, v{vT}, v{vT+1}")
    a(f"v_cmp_eq_u32 vcc, -1, v{vT}")
    a("s_cmp_eq_u64 vcc, 0")
    a(f"s_cbranch_scc1 {N}_p1d")
    spin_tail(f"{N}_p1", f"{N}_p1d", cfg.sleep1)
    a.label(f"{N}_p1d")
    a(f"ds_write_b128 v{T0}, {vr(PB,4)} offset:{L_G1B}")
    a(f"ds_write_b64 v{vS2r}, {vr(PB+4,2)} offset:{L_G1MB}")
    a(f"s_cmp_lt_u32 s{sV}, 2")
    a(f"s_cbranch_scc0 {N}_g1n")
    a(f"ds_write_b128 v{T0}, {vr(PB+8,4)} offset:{L_G1A}")
    a(f"ds_write_b64 v{vS2r}, {vr(PB+12,2)} offset:{L_G1MA}")
    a.label(f"{N}_g1n")
    stamp(6)
    for k in range(4): a(f"v_mov_b32 v{OA4+k}, 0")
    a(f"v_mov_b32 v{MLA2}, 0xff7fffff")
    a(f"v_mov_b32 v{MLA2+1}, 0")
    a("s_waitcnt lgkmcnt(0)")
    a("s_barrier")
    c("each wave takes its 8 dims: lane (row = batch, split = (lane>>1)&7, m = lane&1); softmax-combine the splits")
    a(f"ds_read_b128 {vr(OB4,4)}, v{vR1} offset:{L_G1B}")
    a(f"ds_read_b64 {vr(MLB2,2)}, v{vR2} offset:{L_G1MB}")
    a(f"s_mov_b64 exec, s[{sS2}:{sS2+1}]")
    a(f"ds_read_b128 {vr(OA4,4)}, v{vR1} offset:{L_G1A}")
    a(f"ds_read_b64 {vr(MLA2,2)}, v{vR2} offset:{L_G1MA}")
    a("s_mov_b64 exec, -1")
    GG = 204
    a(f"v_lshlrev_b32 v{vT}, 3, v{vRow}")
    a(f"ds_read_b64 {vr(GG,2)}, v{vT} offset:{L_G}")
    a("s_waitcnt lgkmcnt(0)")
    pairs = ((OB4, MLB2, 196, 197), (OA4, MLA2, 198, 199))
    for (o4, ml, Mx, sc) in pairs: a(f"v_max_f32_dpp v{Mx}, v{ml}, v{ml} row_ror:8 {FULL}")
    for n in (4, 2):
        for (o4, ml, Mx, sc) in pairs: a(f"v_max_f32_dpp v{Mx}, v{Mx}, v{Mx} row_ror:{n} {FULL}")
    for (o4, ml, Mx, sc) in pairs: a(f"v_sub_f32 v{sc}, v{ml}, v{Mx}")
    for (o4, ml, Mx, sc) in pairs: a(f"v_mul_f32 v{sc}, s{sL2E}, v{sc}")
    for (o4, ml, Mx, sc) in pairs: a(f"v_exp_f32 v{sc}, v{sc}")
    for (o4, ml, Mx, sc) in pairs: a(f"v_mul_f32 v{ml+1}, v{ml+1}, v{sc}")
    for (o4, ml, Mx, sc) in pairs:
        for r in range(4): a(f"v_mul_f32 v{o4+r}, v{o4+r}, v{sc}")
    for n in (8, 4, 2):
        for (o4, ml, Mx, sc) in pairs:
            for r in [ml + 1] + [o4 + k for k in range(4)]:
                a(f"v_add_f32_dpp v{r}, v{r}, v{r} row_ror:{n} {FULL}")
    for (o4, ml, Mx, sc) in pairs: a(f"v_rcp_f32 v{sc}, v{ml+1}")
    for (o4, ml, Mx, sc) in reversed(pairs):
        for r in range(4): a(f"v_mul_f32 v{o4+r}, v{o4+r}, v{sc}")
    a(f"ds_write_b128 v{vO1}, {vr(OA4,4)} offset:{L_OT}")
    a(f"ds_write_b128 v{vO1}, {vr(OB4,4)} offset:{L_OT+128}")
    XO = 200
    a("s_waitcnt lgkmcnt(0)")
    a(f"ds_read_b32 v{XO}, v{vO2} offset:{L_OT}")
    a(f"ds_read_b32 v{XO+1}, v{vO2} offset:{L_OT+16}")
    a(f"ds_read_b32 v{XO+2}, v{vO2} offset:{L_OT+128}")
    a(f"ds_read_b32 v{XO+3}, v{vO2} offset:{L_OT+144}")
    a("s_waitcnt lgkmcnt(0)")
    for k in range(4): a(f"v_cvt_pk_bf16_f32 v{XO+k}, v{XO+k}, v{XO+k}")
    c("o (bf16) times the prefetched wo rows, gate mix, partial y to LDS")
    YA, YB = DD, DD + 8
    for k, (wo, acc) in enumerate(((WOA, YA), (WOB, YB), (WOA + 4, YA), (WOB + 4, YB))):
        win_from(XO + (0, 2, 1, 3)[k])
        pv(wo, acc, acc + 4, k < 2)
    for k in range(8): a(f"v_mul_f32 v{YA+k}, v{YA+k}, v{GG}")
    for k in range(8): a(f"v_fma_f32 v{YA+k}, v{YB+k}, v{GG+1}, v{YA+k}")
    a(f"ds_write_b128 v{vW1}, {vr(YA,4)} offset:{L_YP}")
    a(f"ds_write_b128 v{vW1}, {vr(YA+4,4)} offset:{L_YP+1024}")
    a("s_waitcnt lgkmcnt(0)")
    a("s_barrier")
    stamp(7)
    c("waves 0,1: sum the 8 partial y and publish; final reduction of 8 output columns by one wave; the others are done")
    a(f"s_cmp_lt_u32 s{sV}, 2")
    a(f"s_cbranch_scc0 {N}_noy")
    for vv in range(8):
        a(f"ds_read_b128 {vr(AC+4*vv,4)}, v{vLA_} offset:{L_YP + vv*2048}")
    for step in (4, 2, 1):
        if step == 4: a("s_waitcnt lgkmcnt(0)")
        for g in range(step):
            for r in range(4):
                a(f"v_add_f32 v{AC+4*g+r}, v{AC+4*g+r}, v{AC+4*(g+step)+r}")
    a(f"buffer_store_dwordx4 {vr(AC,4)}, v{vGy}, {sr(R_WS,4)}, 0 offen offset:{O_Y} sc1")
    stamp(8)
    if cfg.natwait:
        a(f"s_cmp_eq_u32 s{sV}, 0")
        a(f"s_cbranch_scc0 {N}_done")
        c("wave 0 goes on to the final reduction once its own part of y is acknowledged")
        a("s_waitcnt vmcnt(0)")
        a(f"s_branch {N}_fin")
        a.label(f"{N}_noy")
        a(f"s_branch {N}_done")
        a.label(f"{N}_fin")
    else:
        a(f"s_branch {N}_done")
        a.label(f"{N}_noy")
        a(f"s_cmp_eq_u32 s{sV}, 2")
        a(f"s_cbranch_scc0 {N}_done")
    c("=== hand-off 2: lane i fetches 8 columns of unit 64*cg + i")
    F = 180
    a(f"s_mov_b32 s{sSpin}, 0")
    if cfg.pre2 and not cfg.natwait: a(f"s_sleep {cfg.pre2}")
    a.label(f"{N}_p2")
    a(f"buffer_load_dwordx4 {vr(F,4)}, v{vF}, {sr(R_WS,4)}, 0 offen offset:{O_Y} sc1")
    a(f"buffer_load_dwordx4 {vr(F+4,4)}, v{vF}, {sr(R_WS,4)}, 0 offen offset:{O_Y+16} sc1")
    a("s_waitcnt vmcnt(0)")
    a(f"v_max3_u32 v{vT}, v{F}, v{F+1}, v{F+2}")
    a(f"v_max3_u32 v{vT+1}, v{F+3}, v{F+4}, v{F+5}")
    a(f"v_max3_u32 v{vT}, v{vT}, v{F+6}, v{F+7}")
    a(f"v_max_u32 v{vT}, v{vT}, v{vT+1}")
    a(f"v_cmp_eq_u32 vcc, -1, v{vT}")
    a("s_cmp_eq_u64 vcc, 0")
    a(f"s_cbranch_scc1 {N}_p2d")
    spin_tail(f"{N}_p2", f"{N}_p2d", cfg.sleep2)
    a.label(f"{N}_p2d")
    stamp(9)
    for k in range(4): a(f"v_permlane32_swap_b32 v{F+2*k}, v{F+2*k+1}")
    for k in range(4): a(f"v_add_f32 v{F+2*k}, v{F+2*k}, v{F+2*k+1}")
    a(f"v_permlane16_swap_b32 v{F}, v{F+2}")
    a(f"v_permlane16_swap_b32 v{F+4}, v{F+6}")
    a(f"v_add_f32 v{F}, v{F}, v{F+2}")
    a(f"v_add_f32 v{F+4}, v{F+4}, v{F+6}")
    for n in (8, 4, 2, 1):
        a(f"v_add_f32_dpp v{F}, v{F}, v{F} row_ror:{n} {FULL}")
        a(f"v_add_f32_dpp v{F+4}, v{F+4}, v{F+4} row_ror:{n} {FULL}")
    a(f"v_cvt_pk_bf16_f32 v{F}, v{F}, v{F+4}")
    a("s_mov_b32 exec_lo, 0x00010001")
    a("s_mov_b32 exec_hi, 0x00010001")
    a(f"buffer_store_short v{F}, v{vOut}, {sr(R_OUT,4)}, 0 offen {cfg.outfl}".rstrip())
    a(f"buffer_store_short_d16_hi v{F}, v{vOut}, {sr(R_OUT,4)}, 0 offen offset:8 {cfg.outfl}".rstrip())
    a("s_mov_b64 exec, -1")
    stamp(10)
    a(f"s_branch {N}_done")

    a.label(f"{N}_job0")
    c("publisher: its clears and q_B partial are older than its last 8 loads, so they are complete: count this workgroup in")
    is_role(R_PUB, f"{N}_jobret")
    a("s_waitcnt vmcnt(8)")
    a(f"s_mov_b32 s{sT0}, 1")
    a(f"s_atomic_add s{sT0}, s[{P_DBG}:{P_DBG+1}], 0x0")
    a("s_waitcnt lgkmcnt(0)")
    stamp(19)
    a(f"s_branch {N}_jobret")
    a.label(f"{N}_job2")
    c("gate wave: g = bf16(sigmoid(bf16(sum bf16(x*gate_w)))), 1-g in bf16 -> LDS")
    is_role(R_GATE, f"{N}_jobret")
    GX, GW = TMP, TMP + 16
    a(f"v_lshlrev_b32 v{vT+1}, 6, v{vC}")
    a(f"v_lshl_add_u32 v{vT}, v{vRow}, 10, v{vT+1}")
    for k in range(4):
        a(f"buffer_load_dwordx4 {vr(GX+4*k,4)}, v{vT}, {sr(R_X,4)}, 0 offen offset:{16*k}")
        a(f"buffer_load_dwordx4 {vr(GW+4*k,4)}, v{vT+1}, {sr(R_GW,4)}, 0 offen offset:{16*k}")
    a("s_waitcnt vmcnt(0)")
    z, t0, t1, t2, t3 = TMP + 32, TMP + 33, TMP + 34, TMP + 35, TMP + 36
    a(f"v_mov_b32 v{z}, 0")
    for k in range(16):
        a(f"v_lshlrev_b32 v{t0}, 16, v{GX+k}")
        a(f"v_lshlrev_b32 v{t1}, 16, v{GW+k}")
        a(f"v_and_b32 v{t2}, 0xffff0000, v{GX+k}")
        a(f"v_and_b32 v{t3}, 0xffff0000, v{GW+k}")
        a(f"v_mul_f32 v{t0}, v{t0}, v{t1}")
        a(f"v_mul_f32 v{t2}, v{t2}, v{t3}")
        a(f"v_cvt_pk_bf16_f32 v{t0}, v{t0}, v{t2}")
        a(f"v_lshlrev_b32 v{t1}, 16, v{t0}")
        a(f"v_and_b32 v{t0}, 0xffff0000, v{t0}")
        a(f"v_add_f32 v{z}, v{z}, v{t1}")
        a(f"v_add_f32 v{z}, v{z}, v{t0}")
    for n in (8, 4, 2, 1):
        a(f"v_add_f32_dpp v{z}, v{z}, v{z} row_ror:{n} {FULL}")
    a(f"v_cvt_pk_bf16_f32 v{z}, v{z}, v{z}")
    a(f"v_and_b32 v{z}, 0xffff0000, v{z}")
    a(f"v_mul_f32 v{z}, s{sNL2E}, v{z}")
    a(f"v_exp_f32 v{z}, v{z}")
    a(f"v_add_f32 v{z}, 1.0, v{z}")
    a(f"v_rcp_f32 v{z}, v{z}")
    g0 = TMP + 38
    a(f"v_cvt_pk_bf16_f32 v{g0}, v{z}, v{z}")
    a(f"v_and_b32 v{g0}, 0xffff0000, v{g0}")
    a(f"v_sub_f32 v{g0+1}, 1.0, v{g0}")
    a(f"v_cvt_pk_bf16_f32 v{g0+1}, v{g0+1}, v{g0+1}")
    a(f"v_and_b32 v{g0+1}, 0xffff0000, v{g0+1}")
    a(f"v_lshlrev_b32 v{vT}, 3, v{vRow}")
    a(f"ds_write_b64 v{vT}, {vr(g0,2)} offset:{L_G}")
    a("s_waitcnt lgkmcnt(0)")
    a("s_nop 7")
    a(f"s_branch {N}_jobret")
    a.label(f"{N}_jobp")
    c("gather wave: look at the arrival counter (result is used two tiles later)")
    is_role(R_GATH, f"{N}_jobret")
    a(f"v_mov_b32 v{vT}, 0")
    a(f"global_load_dword v{vPoll}, v{vT}, s[{P_DBG}:{P_DBG+1}] sc1")
    a(f"s_branch {N}_jobret")
    a.label(f"{N}_jobg")
    c("gather wave: once all 256 workgroups have arrived, sum the 8 partials of the group's four q_B heads into LDS")
    is_role(R_GATH, f"{N}_jobret")
    a(f"s_mov_b32 s{sSpin}, 0")
    a("s_waitcnt vmcnt(16)")
    a.label(f"{N}_c0")
    a(f"v_readfirstlane_b32 s{sT0}, v{vPoll}")
    a(f"s_cmp_ge_u32 s{sT0}, 256")
    a(f"s_cbranch_scc1 {N}_c0d")
    a(f"s_add_u32 s{sSpin}, s{sSpin}, 1")
    a(f"s_cmp_gt_u32 s{sSpin}, {cfg.SPIN}")
    a(f"s_cbranch_scc1 {N}_c0d")
    a("s_sleep 16")
    a(f"v_mov_b32 v{vT}, 0")
    a(f"global_load_dword v{vPoll}, v{vT}, s[{P_DBG}:{P_DBG+1}] sc1")
    a("s_waitcnt vmcnt(0)")
    a(f"s_branch {N}_c0")
    a.label(f"{N}_c0d")
    stamp(15)
    a(f"s_lshr_b32 s{sT0}, s{sW}, 3")
    a(f"s_and_b32 s{sT0}, s{sT0}, 7")
    a(f"s_lshl_b32 s{sT0}, s{sT0}, 16")
    a(f"s_lshl_b32 s{sT1}, s{sB}, 9")
    a(f"s_add_u32 s{sT0}, s{sT0}, s{sT1}")
    a(f"s_add_u32 s{sT0}, s{sT0}, {WS_QB}")
    a(f"v_lshlrev_b32 v{vT}, 14, v{vBank}")
    a(f"v_lshl_add_u32 v{vT}, v{vRow}, 7, v{vT}")
    a(f"v_lshl_add_u32 v{vT}, v{vQ}, 5, v{vT}")
    a(f"v_add_u32 v{vT}, s{sT0}, v{vT}")
    S2 = TMP
    for sl in range(8):
        a(f"s_mov_b32 s{sT1}, {(sl // 2) * 4096}")
        for m in range(2):
            a(f"buffer_load_dwordx4 {vr(S2 + 8*sl + 4*m, 4)}, v{vT}, {sr(R_WS,4)}, s{sT1} offen offset:{(sl % 2) * 2048 + 16*m} sc1")
    a("s_waitcnt vmcnt(0)")
    tree_sum8(S2)
    for k in range(4):
        a(f"v_cvt_pk_bf16_f32 v{S2+8+k}, v{S2+2*k}, v{S2+2*k+1}")
    a(f"ds_write_b128 v{vVoff}, {vr(S2+8,4)} offset:{L_QBOP}")
    a("s_waitcnt lgkmcnt(0)")
    a(f"v_mov_b32 v{vT}, {L_FLAG}")
    a(f"ds_write_b32 v{vT}, v{vOne}")
    a("s_waitcnt lgkmcnt(0)")
    stamp(18)
    a("s_nop 7")
    a(f"s_branch {N}_jobret")

    a.label(f"{N}_done")
    a("s_endpgm")
    body_text, npad = a.text()
    kd = f"""
.section .rodata,"a"
.p2align 6
.amdhsa_kernel {N}
  .amdhsa_next_free_vgpr {NVGPR}
  .amdhsa_next_free_sgpr 102
  .amdhsa_accum_offset {NVGPR}
  .amdhsa_group_segment_fixed_size 0
  .amdhsa_kernarg_size 112
  .amdhsa_user_sgpr_count 2
  .amdhsa_user_sgpr_kernarg_segment_ptr 1
  .amdhsa_system_sgpr_workgroup_id_x 1
  .amdhsa_float_denorm_mode_32 3
.end_amdhsa_kernel
"""
    return body_text, kd, npad

HEADER = open('gated_mix__mha_block_cached__gqa_block_cached__decode.s.ref').read().split('; Override launch geometry')[0]


DESC = """;
;
"""

def full_file(cfg):
    body, kd, npad = build(cfg)
    s = HEADER
    s += f"; @launch grid=(256,1,1) block=(512,1,1) lds={LDS_BYTES}\n"
    s += DESC
    s += '.amdgcn_target "amdgcn-amd-amdhsa--gfx950"\n.text\n'
    s += body + "\n" + kd
    return s, npad

if __name__ == '__main__':
    cfg = Cfg()
    out = sys.argv[1]
    for kv in sys.argv[2:]:
        k, v = kv.split('=', 1)
        cur = getattr(cfg, k)
        setattr(cfg, k, type(cur)(int(v, 0)) if isinstance(cur, (bool, int)) else v)
    s, npad = full_file(cfg)
    open(out, 'w').write(s)
    print('written', out, len(s), 'bytes; nop pads', npad)
```

```python
import sys, os
sys.path.insert(0, os.path.dirname(os.path.abspath(__file__)))
from asmlib import Asm

KNAME = 'gated_mix__mha_block_cached__gqa_block_cached__decode_kernel'

class Cfg:
    D = 3
    PD = 3
    D0 = 0
    N0 = 2
    I0 = 8
    SPIN = 200000
    J_POLL = 4
    stopc = 20
    pre1 = 16; sleep1 = 8; pre2 = 22; sleep2 = 4
    PX = 8
    warm = 0
    rotA = 0
    natwait = True
    outfl = ''
    diag = False; tlog = False; xorid = 0
    name = KNAME

sRem, sStride = 0, 1
sW, sV = 2, 3
P_X, P_KA, P_VA, P_WQA, P_WOA, P_BX, P_KB, P_VB = 4, 6, 8, 10, 12, 14, 16, 18
P_WQB, P_WOB, P_GW, P_OUT = 20, 22, 24, 26
P_DBG, P_WS = 28, 30
R_IK, R_IV = 4, 8
sMrg, sMl0, sS2 = 12, 14, 16
sPhase, sBase, sKc, sBst = 18, 20, 21, 23
sK0, sK1, sK2 = 24, 25, 26
sLog = 27
R_KA, R_VA, R_KB, R_VB = 32, 36, 40, 44
R_WQA, R_WQB, R_WOA, R_WOB = 48, 52, 56, 60
R_X, R_GW, R_WS, R_OUT = 64, 68, 72, 76
sB, sOff, sJ, sClaim = 80, 81, 82, 83
sT0, sT1, sT2, sT3 = 85, 86, 87, 88
sBbase = 89
sScale, sL2E, sNL2E = 90, 91, 92
sSpin, sSlot, sIdx = 93, 94, 95
sSelLo, sSelHi = 96, 97
sStamp = 98
sCntB = 101
sAbase, sStr = 19, 22

vLane = 0
vKoff, vVoff, vKcur, vVcur = 1, 2, 3, 4
vMask0, vMask1 = 5, 6
vPoll, vOne = 7, 8
vRow, vBank, vQ, vC = 10, 11, 12, 13
vT = 14
RING = 16
QOP, QB = 80, 84
ACC, ACCA = 88, 96
vM, vL, vMA, vLA = 104, 105, 106, 107
DD = 108
Y = 124
PP = 128
WIN = 132
vAl, vAT, vNM, vMn = 138, 139, 140, 141
T0 = 142
WOA, WOB = 148, 156
TMP = 164
vW1, vW2, vRA, vML, vG, vGM, vBo, vBm, vAo, vAm, vS2r, vR1, vR2, vO1, vO2, vLA_, vGy, vF, vOut = range(228, 247)
NVGPR = 256

L_QBOP = 0
L_MLB, L_MLA = 1024, 1280
L_OT = 1536
L_G = 3584
L_FLAG = 3648
L_QA, L_QBP = 4096, 20480
L_BM, L_AM = 36864, 53248
L_YP = L_QA
L_G1B, L_G1A, L_G1MB, L_G1MA = L_QBP, L_QBP + 8192, L_QBP + 10240, L_QBP + 10496
LDS_BYTES = 69632

O_Y, O_OB, O_OA, O_MLB, O_MLA = 0, 2048, 4096, 4608, 4640
WS_QB = 2 << 20
WS_CNT = 3 << 20
WS_STAMP = (3 << 20) + (512 << 10)
WS_TLOG = 4 << 20

def vr(a, n): return f"v[{a}:{a+n-1}]"
def sr(a, n): return f"s[{a}:{a+n-1}]"
def kslot(st, u): return RING + 32 * st + 4 * u
def vslot(st, u): return RING + 32 * st + 16 + 4 * u
MFMA = 'v_mfma_f32_16x16x32_bf16'
FULL = 'row_mask:0xf bank_mask:0xf'
NS = 32

def build(cfg):
    a = Asm()
    c = a.comment
    N = cfg.name
    D = cfg.D
    WS_BYTES = (8 << 20) if (cfg.diag or cfg.tlog) else (4 << 20)
    def stamp(i):
        if not cfg.diag: return
        a(f"s_memrealtime s[{sStamp}:{sStamp+1}]")
        a("s_waitcnt lgkmcnt(0)")
        a(f"v_mov_b32 v{vT}, s{sStamp}")
        a(f"s_lshl_b32 s{sT3}, s{sW}, 3")
        a(f"s_add_u32 s{sT3}, s{sT3}, s{sV}")
        a(f"s_lshl_b32 s{sT3}, s{sT3}, 7")
        a(f"s_add_u32 s{sT3}, s{sT3}, {WS_STAMP + 4*i}")
        a(f"v_mov_b32 v{vT+1}, s{sT3}")
        a(f"buffer_store_dword v{vT}, v{vT+1}, {sr(R_WS,4)}, 0 offen")
    def tlog():
        if not cfg.tlog: return
        a(f"s_memrealtime s[{sStamp}:{sStamp+1}]")
        a("s_waitcnt lgkmcnt(0)")
        a(f"v_mov_b32 v{vT}, s{sStamp}")
        a(f"v_mov_b32 v{vT+1}, s{sLog}")
        a("s_mov_b64 exec, 1")
        a(f"buffer_store_dword v{vT}, v{vT+1}, {sr(R_WS,4)}, 0 offen")
        a("s_mov_b64 exec, -1")
        a(f"s_add_u32 s{sLog}, s{sLog}, 4")
    def srd(r, p, size):
        a(f"s_mov_b32 s{r}, s{p}")
        a(f"s_and_b32 s{r+1}, s{p+1}, 0xffff")
        a(f"s_mov_b32 s{r+2}, {hex(size)}")
        a(f"s_mov_b32 s{r+3}, 0x20000")
    def pv(data, acc0, acc1, first):
        c0 = '0' if first else vr(acc0, 4)
        c1 = '0' if first else vr(acc1, 4)
        a(f"{MFMA} {vr(acc0,4)}, {vr(WIN+2,4)}, {vr(data,4)}, {c0}")
        a(f"{MFMA} {vr(acc1,4)}, {vr(WIN,4)}, {vr(data,4)}, {c1}")
    def win_from(pp):
        a(f"v_and_b32 v{WIN+2}, v{pp}, v{vMask0}")
        a(f"v_and_b32 v{WIN+3}, v{pp}, v{vMask1}")
    def xrow(op, r, t):
        a(f"v_mov_b32 v{t}, v{r}")
        a(f"v_permlane16_swap_b32 v{r}, v{t}")
        a(f"{op} v{r}, v{r}, v{t}")
        a(f"v_mov_b32 v{t}, v{r}")
        a(f"v_permlane32_swap_b32 v{r}, v{t}")
        a(f"{op} v{r}, v{r}, v{t}")
    def spin_tail(lab_loop, lab_done, slp=2):
        a(f"s_add_u32 s{sSpin}, s{sSpin}, 1")
        a(f"s_cmp_gt_u32 s{sSpin}, {cfg.SPIN}")
        a(f"s_cbranch_scc1 {lab_done}")
        if slp: a(f"s_sleep {slp}")
        a(f"s_branch {lab_loop}")
    def tree_sum8(base):
        for step in (4, 2, 1):
            for g in range(step):
                for k in range(8):
                    a(f"v_add_f32 v{base+8*g+k}, v{base+8*g+k}, v{base+8*(g+step)+k}")
    def kv_load(st, isV, u, rk=R_KA, rv=R_VA):
        slot = vslot(st, u) if isV else kslot(st, u)
        r = rv if isV else rk
        va = vVcur if isV else vKcur
        a(f"buffer_load_dwordx4 {vr(slot,4)}, v{va}, {sr(r,4)}, 0 offen offset:{u*1024} nt")
    def adv_off():
        if not cfg.rotA:
            a(f"s_add_u32 s{sOff}, s{sOff}, 32768")
        else:
            a(f"s_add_u32 s{sStr}, s{sStr}, 1")
            a(f"s_and_b32 s{sStr}, s{sStr}, 31")
            a(f"s_lshl_b32 s{sOff}, s{sStr}, 15")
            a(f"s_add_u32 s{sOff}, s{sOff}, s{sAbase}")
    def pair_of(sp, st):
        if cfg.PX == 1:
            a(f"s_lshr_b32 s{sp}, s{sW}, 1")
            return
        n = {8: 0, 16: 1, 32: 2}[cfg.PX]
        a(f"s_lshr_b32 s{sp}, s{sW}, {4 + n}")
        a(f"s_lshl_b32 s{sp}, s{sp}, {3 + n}")
        a(f"s_and_b32 s{st}, s{sW}, 7")
        if n: a(f"s_lshl_b32 s{st}, s{st}, {n}")
        a(f"s_add_u32 s{sp}, s{sp}, s{st}")
        if n:
            a(f"s_lshr_b32 s{st}, s{sW}, 4")
            a(f"s_and_b32 s{st}, s{st}, {(1 << n) - 1}")
            a(f"s_add_u32 s{sp}, s{sp}, s{st}")
    def is_role(cst, lab_else):
        a(f"s_add_u32 s{sT0}, s{sW}, {cst}")
        a(f"s_and_b32 s{sT0}, s{sT0}, 7")
        a(f"s_cmp_eq_u32 s{sV}, s{sT0}")
        a(f"s_cbranch_scc0 {lab_else}")
    R_PUB, R_GATE, R_GATH = 0, 3, 5

    a(f".globl {N}")
    a(".p2align 8")
    a(f".type {N},@function")
    a.label(N)
    c("workgroups beyond the 256 that carry work leave at once")
    a(f"s_cmp_ge_u32 s{sW}, 256")
    a(f"s_cbranch_scc1 {N}_done")
    if cfg.xorid: a(f"s_xor_b32 s{sW}, s{sW}, {cfg.xorid}")
    if cfg.diag: a("s_memrealtime s[100:101]")
    a(f"s_load_dwordx16 s[4:19], s[0:1], 0")
    a(f"s_load_dwordx8 s[20:27], s[0:1], 64")
    a(f"s_load_dwordx4 s[28:31], s[0:1], 96")
    c("lane = 16*row + 4*bank + q ; c = lane & 15 ; wave id in s3")
    a(f"v_lshrrev_b32 v1, 6, v0")
    a(f"v_and_b32 v{vLane}, 63, v0")
    a(f"v_readfirstlane_b32 s{sV}, v1")
    a(f"v_lshrrev_b32 v{vRow}, 4, v{vLane}")
    a(f"v_lshrrev_b32 v{vBank}, 2, v{vLane}")
    a(f"v_and_b32 v{vBank}, 3, v{vBank}")
    a(f"v_and_b32 v{vQ}, 3, v{vLane}")
    a(f"v_and_b32 v{vC}, 15, v{vLane}")
    a(f"v_lshlrev_b32 v{vVoff}, 4, v{vLane}")
    WQA, WQB, XA, XB = 164, 228, 236, 244
    vWa, vWb, vWo = T0, T0 + 1, T0 + 3
    c("x offsets.  XA: bank*1024 + wave*128 + row*32 ; XB: bank*1024 + slice*128 + wave*16 + row*4")
    a(f"v_lshlrev_b32 v{vT+1}, 10, v{vBank}")
    a(f"s_lshl_b32 s{sT0}, s{sV}, 7")
    a(f"v_lshl_add_u32 v{vT}, v{vRow}, 5, v{vT+1}")
    a(f"v_add_u32 v{vT}, s{sT0}, v{vT}")
    a(f"s_and_b32 s{sT1}, s{sW}, 7")
    a(f"s_lshl_b32 s{sT2}, s{sT1}, 7")
    a(f"s_lshl_b32 s{sT3}, s{sV}, 4")
    a(f"s_add_u32 s{sT2}, s{sT2}, s{sT3}")
    a(f"v_lshl_add_u32 v{vT+1}, v{vRow}, 2, v{vT+1}")
    a(f"v_add_u32 v{vT+1}, s{sT2}, v{vT+1}")
    c("wq lane offsets.  A: 16 rows per DPP row ; B: 2 rows per DPP row ; + c*16")
    a(f"v_lshlrev_b32 v{vWa}, 4, v{vC}")
    a(f"v_lshl_add_u32 v{vWb}, v{vRow}, 14, v{vWa}")
    a(f"v_lshl_add_u32 v{vWo}, v{vRow}, 10, v{vWa}")
    a(f"v_lshl_add_u32 v{vWa}, v{vRow}, 17, v{vWa}")
    c("wq_A scalar offset (s85): wave*64 rows*8192 + head*256, head = (w>>1)&31")
    pair_of(sT0, sT2)
    a(f"s_and_b32 s{sT0}, s{sT0}, 31")
    a(f"s_lshl_b32 s{sT0}, s{sT0}, 8")
    a(f"s_lshl_b32 s{sT2}, s{sV}, 19")
    a(f"s_add_u32 s{sT0}, s{sT0}, s{sT2}")
    c("wq_B scalar offset (s86): (8*slice + wave)*8 rows*8192 + (w>>3)*256, slice = w&7")
    a(f"s_lshl_b32 s{sT1}, s{sT1}, 3")
    a(f"s_add_u32 s{sT1}, s{sT1}, s{sV}")
    a(f"s_lshl_b32 s{sT1}, s{sT1}, 16")
    a(f"s_lshr_b32 s{sT2}, s{sW}, 3")
    a(f"s_lshl_b32 s{sT2}, s{sT2}, 8")
    a(f"s_add_u32 s{sT1}, s{sT1}, s{sT2}")
    a(f"s_lshr_b32 s{sB}, s{sW}, 6")
    a(f"s_lshl_b32 s{sSlot}, s{sW}, 13")
    a("s_waitcnt lgkmcnt(0)")
    srd(R_X, P_X, 4096)
    srd(R_WQA, P_WQA, 4 << 20)
    c("x: group kk of a wave's 16 rows per DPP row is row group (kk + b) & 3, so the four workgroups of an XCD that share")
    c("a head first-touch different weight lines")
    for kk in range(4):
        a(f"s_add_u32 s{sT2}, s{sB}, {kk}")
        a(f"s_and_b32 s{sT2}, s{sT2}, 3")
        a(f"s_lshl_b32 s{sT2}, s{sT2}, 3")
        a(f"buffer_load_dwordx2 {vr(XA+2*kk,2)}, v{vT}, {sr(R_X,4)}, s{sT2} offen")
    a(f"buffer_load_dword v{XB}, v{vT+1}, {sr(R_X,4)}, 0 offen")
    for kk in range(4):
        a(f"s_add_u32 s{sT2}, s{sB}, {kk}")
        a(f"s_and_b32 s{sT2}, s{sT2}, 3")
        a(f"s_lshl_b32 s{sT2}, s{sT2}, 15")
        a(f"s_add_u32 s{sT2}, s{sT2}, s{sT0}")
        for q in range(4):
            i = 4 * kk + q
            a(f"buffer_load_dwordx4 {vr(WQA+4*i,4)}, v{vWa}, {sr(R_WQA,4)}, s{sT2} offen nt")
            if q < 3: a(f"s_add_u32 s{sT2}, s{sT2}, 8192")
    srd(R_WQB, P_WQB, 4 << 20)
    a(f"buffer_load_dwordx4 {vr(WQB,4)}, v{vWb}, {sr(R_WQB,4)}, s{sT1} offen nt")
    a(f"s_add_u32 s{sT1}, s{sT1}, 8192")
    a(f"buffer_load_dwordx4 {vr(WQB+4,4)}, v{vWb}, {sr(R_WQB,4)}, s{sT1} offen nt")
    c("wo rows of this workgroup's output unit: head hU = 4*(w&7) + ((w>>3)&3), column group w>>6, row half (w>>5)&1")
    srd(R_WOA, P_WOA, 4 << 20)
    srd(R_WOB, P_WOB, 4 << 20)
    a(f"s_and_b32 s{sT0}, s{sW}, 7")
    a(f"s_lshl_b32 s{sT0}, s{sT0}, 2")
    a(f"s_lshr_b32 s{sT1}, s{sW}, 3")
    a(f"s_and_b32 s{sT1}, s{sT1}, 3")
    a(f"s_add_u32 s{sT0}, s{sT0}, s{sT1}")
    a(f"s_lshl_b32 s{sT0}, s{sT0}, 4")
    a(f"s_lshr_b32 s{sT1}, s{sW}, 5")
    a(f"s_and_b32 s{sT1}, s{sT1}, 1")
    a(f"s_lshl_b32 s{sT1}, s{sT1}, 3")
    a(f"s_add_u32 s{sT0}, s{sT0}, s{sT1}")
    a(f"s_add_u32 s{sT0}, s{sT0}, s{sV}")
    a(f"s_lshl_b32 s{sT0}, s{sT0}, 13")
    a(f"s_lshr_b32 s{sT1}, s{sW}, 6")
    a(f"s_lshl_b32 s{sT1}, s{sT1}, 8")
    a(f"s_add_u32 s{sT0}, s{sT0}, s{sT1}")
    a(f"s_add_u32 s{sT1}, s{sT0}, 4096")
    a(f"buffer_load_dwordx4 {vr(WOA,4)}, v{vWo}, {sr(R_WOA,4)}, s{sT0} offen nt")
    a(f"buffer_load_dwordx4 {vr(WOA+4,4)}, v{vWo}, {sr(R_WOA,4)}, s{sT1} offen nt")
    a(f"buffer_load_dwordx4 {vr(WOB,4)}, v{vWo}, {sr(R_WOB,4)}, s{sT0} offen nt")
    a(f"buffer_load_dwordx4 {vr(WOB+4,4)}, v{vWo}, {sr(R_WOB,4)}, s{sT1} offen nt")
    srd(R_WS, P_WS, WS_BYTES)
    srd(R_GW, P_GW, 1024)
    extra = [0]
    c("lane constants and descriptors")
    a(f"v_lshlrev_b32 v{vKoff}, 8, v{vBank}")
    a(f"v_lshl_add_u32 v{vKoff}, v{vRow}, 6, v{vKoff}")
    a(f"v_lshl_add_u32 v{vKoff}, v{vQ}, 4, v{vKoff}")
    a(f"v_and_b32 v{vT}, 1, v{vQ}")
    a(f"v_cmp_eq_u32 vcc, 0, v{vT}")
    a(f"v_mov_b32 v{vT}, 0xffff0000")
    a(f"v_mov_b32 v{vT+1}, 0x0000ffff")
    a(f"v_cndmask_b32 v{vT}, v{vT}, v{vT+1}, vcc")
    a(f"v_cmp_gt_u32 vcc, 2, v{vQ}")
    a(f"v_cndmask_b32 v{vMask0}, 0, v{vT}, vcc")
    a(f"v_cndmask_b32 v{vMask1}, v{vT}, 0, vcc")
    for k in (0, 1, 4, 5): a(f"v_mov_b32 v{WIN+k}, 0")
    a(f"v_mov_b32 v{vOne}, 1")
    a(f"s_mov_b32 s{sScale}, 0x3db504f3")
    a(f"s_mov_b32 s{sL2E}, 0x3fb8aa3b")
    a(f"s_mov_b32 s{sNL2E}, 0xbfb8aa3b")
    a(f"s_mov_b32 s{sSelLo}, 0x01000100")
    a(f"s_mov_b32 s{sSelHi}, 0x03020302")
    srd(R_KA, P_KA, 256 << 20)
    srd(R_VA, P_VA, 256 << 20)
    srd(R_KB, P_KB, 64 << 20)
    srd(R_VB, P_VB, 64 << 20)
    srd(R_OUT, P_OUT, 4096)
    if cfg.tlog:
        a(f"s_lshl_b32 s{sLog}, s{sW}, 3")
        a(f"s_add_u32 s{sLog}, s{sLog}, s{sV}")
        a(f"s_lshl_b32 s{sLog}, s{sLog}, 8")
        a(f"s_add_u32 s{sLog}, s{sLog}, {WS_TLOG}")
    for k in range(3):
        a(f"s_mov_b32 s{R_IK+k}, s{R_KA+k}")
        a(f"s_mov_b32 s{R_IV+k}, s{R_VA+k}")
    a(f"s_mov_b32 s{R_IK+3}, 0x20000")
    a(f"s_mov_b32 s{R_IV+3}, 0x20000")
    c("A: this wave streams piece (stripe j, column wave) of the workgroup's 1 MiB: offset w*1M + j*32K + wave*4K")
    if cfg.PX == 1:
        a(f"s_lshl_b32 s{sOff}, s{sW}, 20")
    else:
        pair_of(sOff, sT1)
        a(f"s_lshl_b32 s{sOff}, s{sOff}, 21")
        a(f"s_lshr_b32 s{sT1}, s{sW}, 3")
        a(f"s_and_b32 s{sT1}, s{sT1}, 1")
        a(f"s_lshl_b32 s{sT1}, s{sT1}, 20")
        a(f"s_add_u32 s{sOff}, s{sOff}, s{sT1}")
    a(f"s_lshl_b32 s{sT1}, s{sV}, 12")
    a(f"s_add_u32 s{sOff}, s{sOff}, s{sT1}")
    if cfg.rotA:
        a(f"s_mov_b32 s{sAbase}, s{sOff}")
        if cfg.rotA == 1: a(f"s_and_b32 s{sStr}, s{sW}, 31")
        elif cfg.rotA == 2:
            a(f"s_lshr_b32 s{sStr}, s{sW}, 3"); a(f"s_and_b32 s{sStr}, s{sStr}, 31")
        elif cfg.rotA == 3:
            a(f"s_mul_i32 s{sStr}, s{sW}, 5"); a(f"s_and_b32 s{sStr}, s{sStr}, 31")
        elif cfg.rotA == 4:
            a(f"s_and_b32 s{sStr}, s{sW}, 7"); a(f"s_lshl_b32 s{sStr}, s{sStr}, 2")
        elif cfg.rotA == 5:
            a(f"s_lshr_b32 s{sStr}, s{sW}, 3"); a(f"s_and_b32 s{sStr}, s{sStr}, 7"); a(f"s_lshl_b32 s{sStr}, s{sStr}, 2")
        a(f"s_lshl_b32 s{sOff}, s{sStr}, 15")
        a(f"s_add_u32 s{sOff}, s{sOff}, s{sAbase}")
    c("B: column `wave` of group w>>3 (2 MiB, 64 stripes)")
    a(f"s_lshr_b32 s{sBbase}, s{sW}, 3")
    a(f"s_lshl_b32 s{sBbase}, s{sBbase}, 21")
    a(f"s_add_u32 s{sBbase}, s{sBbase}, s{sT1}")
    a(f"v_add_u32 v{vKcur}, s{sOff}, v{vKoff}")
    a(f"v_add_u32 v{vVcur}, s{sOff}, v{vVoff}")
    a(f"v_mov_b32 v{vT}, {L_FLAG}")
    a(f"v_mov_b32 v{vT+1}, 0")
    a(f"ds_write_b32 v{vT}, v{vT+1}")
    if cfg.diag:
        stamp(12)
        a(f"s_sub_u32 s{sT3}, s{sT3}, 4")
        a(f"v_mov_b32 v{vT+1}, s{sT3}")
        a(f"v_mov_b32 v{vT}, s100")
        a(f"buffer_store_dword v{vT}, v{vT+1}, {sr(R_WS,4)}, 0 offen")
    c("q_A partial over this wave's 64 rows.  Younger than wq_A item i: the later items, wq_B (2), wo (4), K/V loads")
    QA0, QA1 = DD, DD + 4
    QB0, QB1 = DD + 8, DD + 12
    nkv = 0
    kvseq = [(0, 0, u) for u in range(4)] + [(0, 1, u) for u in range(4)]
    for i in range(16):
        a(f"s_waitcnt vmcnt({(15 - i) + 6 + nkv})")
        if i == 0: stamp(13)
        sel = sSelLo if i % 2 == 0 else sSelHi
        x = XA + i // 2
        a(f"v_perm_b32 v{PP}, v{x}, v{x}, s{sel}")
        win_from(PP)
        pv(WQA + 4 * i, QA0, QA1, i == 0)
        if i >= cfg.I0 and nkv < 8:
            kv_load(*kvseq[nkv]); nkv += 1
    c("q_B partial over this wave's 8 rows of the slice")
    for i in range(2):
        a(f"s_waitcnt vmcnt({(1 - i) + 4 + nkv})")
        sel = sSelLo if i == 0 else sSelHi
        a(f"v_perm_b32 v{PP}, v{XB}, v{XB}, s{sel}")
        win_from(PP)
        pv(WQB + 4 * i, QB0, QB1, i == 0)
    a(f"s_lshl_b32 s{sT0}, s{sV}, 11")
    a(f"v_add_u32 v{vW1}, s{sT0}, v{vVoff}")
    a(f"ds_write_b128 v{vW1}, {vr(QA0,4)} offset:{L_QA}")
    a(f"ds_write_b128 v{vW1}, {vr(QA1,4)} offset:{L_QA+1024}")
    a(f"ds_write_b128 v{vW1}, {vr(QB0,4)} offset:{L_QBP}")
    a(f"ds_write_b128 v{vW1}, {vr(QB1,4)} offset:{L_QBP+1024}")
    while nkv < 8:
        kv_load(*kvseq[nkv]); nkv += 1
    a("s_waitcnt lgkmcnt(0)")
    stamp(14)
    a("s_barrier")
    c("q_A operand: lane (row, bank, q) sums QA[wave'][m][16*b + 4*row + q] over the 8 waves, rounds to bf16")
    a(f"s_lshl_b32 s{sT0}, s{sB}, 8")
    a(f"v_lshlrev_b32 v{vT}, 6, v{vRow}")
    a(f"v_lshl_add_u32 v{vT}, v{vQ}, 4, v{vT}")
    a(f"v_add_u32 v{vT}, s{sT0}, v{vT}")
    S = TMP
    for vv in range(8):
        for m in range(2):
            a(f"ds_read_b128 {vr(S + 8*vv + 4*m, 4)}, v{vT} offset:{L_QA + vv*2048 + m*1024}")
    adv_off()
    a(f"v_add_u32 v{vKcur}, s{sOff}, v{vKoff}")
    a(f"v_add_u32 v{vVcur}, s{sOff}, v{vVoff}")
    adv_off()
    a("s_waitcnt lgkmcnt(0)")
    tree_sum8(S)
    for k in range(4):
        a(f"v_cvt_pk_bf16_f32 v{QOP+k}, v{S+2*k}, v{S+2*k+1}")
    c("publisher wave: reduce and publish the q_B partial, clear, then stream on with the stores discounted")
    is_role(R_PUB, f"{N}_nopub")
    for vv in range(8):
        for m in range(2):
            a(f"ds_read_b128 {vr(S + 8*vv + 4*m, 4)}, v{vVoff} offset:{L_QBP + vv*2048 + m*1024}")
    a(f"s_lshl_b32 s{sT0}, s{sW}, 11")
    a(f"s_add_u32 s{sT0}, s{sT0}, {WS_QB}")
    a(f"v_lshlrev_b32 v{vT}, 5, v{vC}")
    a(f"v_lshl_add_u32 v{vT}, v{vRow}, 9, v{vT}")
    a(f"v_add_u32 v{vT}, s{sT0}, v{vT}")
    a("s_waitcnt lgkmcnt(0)")
    tree_sum8(S)
    a(f"buffer_store_dwordx4 {vr(S,4)}, v{vT}, {sr(R_WS,4)}, 0 offen sc1")
    a(f"buffer_store_dwordx4 {vr(S+4,4)}, v{vT}, {sr(R_WS,4)}, 0 offen offset:16 sc1")
    c("mark this workgroup's hand-off slots empty (all ones); workgroup 8k zeroes the claim counters of group k")
    for k in range(4): a(f"v_mov_b32 v{PP+k}, -1")
    a(f"v_add_u32 v{vT}, s{sSlot}, v{vVoff}")
    for k in range(4):
        a(f"buffer_store_dwordx4 {vr(PP,4)}, v{vT}, {sr(R_WS,4)}, 0 offen offset:{k*1024} sc1")
    a(f"v_add_u32 v{vT}, 4096, v{vT}")
    a(f"buffer_store_dwordx4 {vr(PP,4)}, v{vT}, {sr(R_WS,4)}, 0 offen sc1")
    a(f"s_and_b32 s{sT0}, s{sW}, 7")
    a(f"s_cmp_eq_u32 s{sT0}, 0")
    a(f"s_cbranch_scc0 {N}_noclr")
    a(f"s_lshl_b32 s{sT0}, s{sW}, 8")
    a(f"s_add_u32 s{sT0}, s{sT0}, {WS_CNT}")
    a(f"v_lshlrev_b32 v{vT}, 8, v{vLane}")
    a(f"v_add_u32 v{vT}, s{sT0}, v{vT}")
    a(f"v_mov_b32 v{vT+1}, 0")
    a("s_mov_b64 exec, 0xff")
    a(f"buffer_store_dword v{vT+1}, v{vT}, {sr(R_WS,4)}, 0 offen sc1")
    a("s_mov_b64 exec, -1")
    a.label(f"{N}_noclr")
    for isV in (0, 1):
        for u in range(4):
            a(f"s_waitcnt vmcnt({cfg.PD - 1 + 7})"); kv_load(1, isV, u)
    a(f"s_branch {N}_t1d")
    a.label(f"{N}_nopub")
    for isV in (0, 1):
        for u in range(4):
            a(f"s_waitcnt vmcnt({cfg.PD-1})"); kv_load(1, isV, u)
    a.label(f"{N}_t1d")
    for k in range(8): a(f"v_mov_b32 v{ACC+k}, 0")
    a(f"v_mov_b32 v{vM}, 0xff7fffff")
    a(f"v_mov_b32 v{vL}, 0")
    stamp(1)

    uid = [0]
    Dcur = [D]
    def issue(st, isV, u, rk, rv):
        D = Dcur[0]
        if rk == R_IK:
            uid[0] += 1
            a(f"s_cbranch_vccnz {N}_f{uid[0]}")
            a(f"s_waitcnt vmcnt({D-1})")
            a.label(f"{N}_f{uid[0]}")
        else:
            a(f"s_waitcnt vmcnt({D-1})")
        kv_load(st, isV, u, rk, rv)
    def diag(u0, u1):
        for cc in range(4):
            for u in (u0, u1):
                d = DD + 4 * u + cc
                qp = f"quad_perm:[{cc},{cc},{cc},{cc}]"
                if cc == 0: a(f"v_mov_b32_dpp v{Y+u}, v{d} {qp} {FULL}")
                else:       a(f"v_add_f32_dpp v{Y+u}, v{d}, v{Y+u} {qp} {FULL}")
    def round4():
        a(f"v_cvt_pk_bf16_f32 v{T0}, v{Y}, v{Y+1}")
        a(f"v_cvt_pk_bf16_f32 v{T0+1}, v{Y+2}, v{Y+3}")
        a(f"v_lshlrev_b32 v{Y}, 16, v{T0}")
        a(f"v_and_b32 v{Y+1}, 0xffff0000, v{T0}")
        a(f"v_lshlrev_b32 v{Y+2}, 16, v{T0+1}")
        a(f"v_and_b32 v{Y+3}, 0xffff0000, v{T0+1}")
    def body(st, rk, rv):
        c(f"--- mini-tile in ring set {st}: 16 keys.  QK^T, online softmax, PV; issues the tile two ahead")
        a("s_waitcnt vmcnt(12)")
        for u in range(4):
            a(f"{MFMA} {vr(DD+4*u,4)}, {vr(kslot(st,u),4)}, {vr(QOP,4)}, 0")
        issue(st, 0, 0, rk, rv)
        diag(0, 1)
        issue(st, 0, 1, rk, rv)
        diag(2, 3)
        round4()
        issue(st, 0, 2, rk, rv)
        for u in range(4): a(f"v_mul_f32 v{Y+u}, s{sScale}, v{Y+u}")
        round4()
        a(f"v_max3_f32 v{T0+2}, v{Y}, v{Y+1}, v{Y+2}")
        a(f"v_max_f32 v{T0+2}, v{T0+2}, v{Y+3}")
        xrow('v_max_f32', T0 + 2, T0 + 3)
        a(f"v_max_f32 v{vMn}, v{vM}, v{T0+2}")
        issue(st, 0, 3, rk, rv)
        a(f"v_sub_f32 v{vAl}, v{vM}, v{vMn}")
        a(f"v_mul_f32 v{vNM}, s{sNL2E}, v{vMn}")
        a(f"v_mul_f32 v{vAl}, s{sL2E}, v{vAl}")
        for u in range(4): a(f"v_fma_f32 v{Y+u}, v{Y+u}, s{sL2E}, v{vNM}")
        a(f"v_exp_f32 v{vAl}, v{vAl}")
        for u in range(4): a(f"v_exp_f32 v{Y+u}, v{Y+u}")
        a(f"v_mov_b32 v{vM}, v{vMn}")
        for h in range(4):
            a(f"v_mov_b32_dpp v{vAT}, v{vAl} row_newbcast:{4*h} row_mask:{hex(1<<h)} bank_mask:0xf")
        a(f"v_fma_f32 v{vL}, v{vL}, v{vAl}, v{Y}")
        for u in range(4): a(f"v_cvt_pk_bf16_f32 v{PP+u}, v{Y+u}, v{Y+u}")
        a(f"v_add_f32 v{T0}, v{Y+1}, v{Y+2}")
        a(f"v_add_f32 v{vL}, v{vL}, v{Y+3}")
        a(f"v_add_f32 v{vL}, v{vL}, v{T0}")
        for k in range(8): a(f"v_mul_f32 v{ACC+k}, v{ACC+k}, v{vAT}")
        a("s_waitcnt vmcnt(12)")
        for u in range(4):
            win_from(PP + u)
            pv(vslot(st, u), ACC, ACC + 4, False)
            issue(st, 1, u, rk, rv)
        tlog()
    def top_static():
        a(f"v_add_u32 v{vKcur}, s{sOff}, v{vKoff}")
        a(f"v_add_u32 v{vVcur}, s{sOff}, v{vVoff}")
        adv_off()
    def sclaim():
        a(f"s_mov_b32 s{sClaim}, 1")
        a(f"s_atomic_add s{sClaim}, s[{P_WS}:{P_WS+1}], s{sCntB} glc")
    def state_switch():
        a("s_nop 7")
        for k in range(8): a(f"v_mov_b32 v{ACCA+k}, v{ACC+k}")
        a(f"v_mov_b32 v{vMA}, v{vM}")
        a(f"v_mov_b32 v{vLA}, v{vL}")
        for k in range(8): a(f"v_mov_b32 v{ACC+k}, 0")
        a(f"v_mov_b32 v{vM}, 0xff7fffff")
        a(f"v_mov_b32 v{vL}, 0")
        for k in range(4): a(f"v_mov_b32 v{QOP+k}, v{QB+k}")
        a(f"s_mov_b32 s{sBst}, 1")
        stamp(2)
    def top_dyn(st):
        lab = f"{N}_d{st}"
        c("next B piece: the rest of the current chunk, else the chunk claimed one tile ago")
        a(f"s_cmp_eq_u32 s{sRem}, 0")
        a(f"s_cbranch_scc1 {lab}_new")
        a(f"s_add_u32 s{sIdx}, s{sIdx}, 1")
        a(f"s_sub_u32 s{sRem}, s{sRem}, 1")
        a.label(f"{lab}_have")
        a(f"s_lshl_b32 s{sT0}, s{sIdx}, 15")
        a(f"s_add_u32 s{sT0}, s{sT0}, s{sBbase}")
        a(f"s_mov_b32 s{sK2}, s{sKc}")
        a(f"s_mov_b32 s{sKc}, 3")
        a(f"s_cmp_eq_u32 s{sRem}, 0")
        a(f"s_cbranch_scc0 {lab}_go2")
        a(f"s_cmp_ge_u32 s{sClaim}, {cfg.stopc}")
        a(f"s_cbranch_scc1 {lab}_skip")
        sclaim()
        a.label(f"{lab}_go2")
        a(f"v_add_u32 v{vKcur}, s{sT0}, v{vKoff}")
        a(f"v_add_u32 v{vVcur}, s{sT0}, v{vVoff}")
        a(f"s_cmp_eq_u32 s{sK0}, 2")
        a(f"s_cbranch_scc1 {lab}_sw")
        a.label(f"{lab}_body")
    def top_dyn_cold(st):
        lab = f"{N}_d{st}"
        a.label(f"{lab}_new")
        c("chunks of a column (64 stripes, 8 waves): claims 0..7 -> 5 stripes, 8..15 -> 2, 16..23 -> 1")
        a("s_waitcnt lgkmcnt(0)")
        a(f"s_mul_i32 s{sIdx}, s{sClaim}, 5")
        a(f"s_mov_b32 s{sRem}, 4")
        a(f"s_cmp_lt_u32 s{sClaim}, 8")
        a(f"s_cbranch_scc1 {lab}_have")
        a(f"s_lshl_b32 s{sIdx}, s{sClaim}, 1")
        a(f"s_add_u32 s{sIdx}, s{sIdx}, 24")
        a(f"s_mov_b32 s{sRem}, 1")
        a(f"s_cmp_lt_u32 s{sClaim}, 16")
        a(f"s_cbranch_scc1 {lab}_have")
        a(f"s_add_u32 s{sIdx}, s{sClaim}, 40")
        a(f"s_mov_b32 s{sRem}, 0")
        a(f"s_cmp_lt_u32 s{sClaim}, 24")
        a(f"s_cbranch_scc1 {lab}_have")
        c("column exhausted: out-of-range (zero-fill) dummy tile, no throttle, no further claims")
        a(f"s_mov_b32 s{sT0}, 0x7f000000")
        a(f"s_mov_b32 s{sK2}, 0")
        a("s_mov_b64 vcc, -1")
        a(f"s_branch {lab}_go2")
        a.label(f"{lab}_skip")
        c("a wave that got one of the last four pieces does not claim again; every wave makes exactly one claim >= 20,")
        c("so the eight such claims hand out pieces 20..23")
        a(f"s_mov_b32 s{sClaim}, 0x7fffffff")
        a(f"s_branch {lab}_go2")
        a.label(f"{lab}_sw")
        state_switch()
        a("s_nop 1")
        a(f"s_branch {lab}_body")

    a(f"s_mov_b32 s{sJ}, 0")
    if cfg.D0:
        c("first tiles with a wider window: the workgroup catches up the time its q projection took")
        is_role(R_PUB, f"{N}_j0r")
        a("s_waitcnt vmcnt(8)")
        a(f"s_mov_b32 s{sT0}, 1")
        a(f"s_atomic_add s{sT0}, s[{P_DBG}:{P_DBG+1}], 0x0")
        a("s_waitcnt lgkmcnt(0)")
        stamp(19)
        a.label(f"{N}_j0r")
        Dcur[0] = cfg.D0
        for jj in range(0, cfg.N0, 2):
            top_static(); body(0, R_KA, R_VA)
            top_static(); body(1, R_KA, R_VA)
        Dcur[0] = D
        a(f"s_mov_b32 s{sJ}, {cfg.N0}")
        assert cfg.N0 == 2
    a.label(f"{N}_sloop")
    a(f"s_cmp_eq_u32 s{sJ}, 0")
    a(f"s_cbranch_scc1 {N}_job0")
    a(f"s_cmp_eq_u32 s{sJ}, 2")
    a(f"s_cbranch_scc1 {N}_job2")
    a(f"s_cmp_eq_u32 s{sJ}, {cfg.J_POLL}")
    a(f"s_cbranch_scc1 {N}_jobp")
    a(f"s_cmp_eq_u32 s{sJ}, {cfg.J_POLL + 2}")
    a(f"s_cbranch_scc1 {N}_jobg")
    if cfg.warm:
        a(f"s_cmp_eq_u32 s{sJ}, 16")
        a(f"s_cbranch_scc1 {N}_jobw")
    a.label(f"{N}_jobret")
    top_static(); body(0, R_KA, R_VA)
    top_static(); body(1, R_KA, R_VA)
    a(f"s_add_u32 s{sJ}, s{sJ}, 2")
    a(f"s_cmp_lt_u32 s{sJ}, {NS-4}")
    a(f"s_cbranch_scc1 {N}_sloop")
    c("address registers of the tail, computed while streaming")
    a(f"s_lshl_b32 s{sT0}, s{sV}, 5")
    a(f"v_lshlrev_b32 v{vW2}, 3, v{vBank}")
    a(f"v_add_u32 v{vW2}, s{sT0}, v{vW2}")
    vTid, vI32, vHH = T0, T0 + 1, T0 + 2
    a(f"s_lshl_b32 s{sT0}, s{sV}, 6")
    a(f"v_add_u32 v{vTid}, s{sT0}, v{vLane}")
    a(f"v_and_b32 v{vI32}, 31, v{vTid}")
    a(f"v_lshrrev_b32 v{vHH}, 5, v{vTid}")
    a(f"v_and_b32 v{vHH}, 3, v{vHH}")
    a(f"v_and_b32 v{vT}, 1, v{vI32}")
    a(f"v_lshlrev_b32 v{vT}, 10, v{vT}")
    a(f"v_lshrrev_b32 v{vT+1}, 1, v{vI32}")
    a(f"v_lshl_add_u32 v{vT+1}, v{vHH}, 4, v{vT+1}")
    a(f"v_lshl_add_u32 v{vLA_}, v{vT+1}, 4, v{vT}")
    a(f"s_cmp_eq_u32 s{sV}, 2")
    for (sr_, va, vb) in ((sT0, L_AM, L_BM), (sT1, L_MLA, L_MLB), (sT2, O_OA, O_OB), (sT3, O_MLA, O_MLB)):
        a(f"s_mov_b32 s{sr_}, {vb}")
        a(f"s_cmov_b32 s{sr_}, {va}")
    a(f"s_cselect_b32 s{sMrg+1}, 0, -1")
    a(f"s_mov_b32 s{sMrg}, -1")
    a(f"v_add_u32 v{vRA}, s{sT0}, v{vLA_}")
    a(f"v_lshlrev_b32 v{vML}, 3, v{vHH}")
    a(f"v_add_u32 v{vGM}, s{sT3}, v{vML}")
    a(f"v_add_u32 v{vGM}, s{sSlot}, v{vGM}")
    a(f"v_add_u32 v{vML}, s{sT1}, v{vML}")
    a(f"v_lshlrev_b32 v{vGy}, 9, v{vHH}")
    a(f"v_lshl_add_u32 v{vGy}, v{vI32}, 4, v{vGy}")
    a(f"v_add_u32 v{vGy}, s{sSlot}, v{vGy}")
    a(f"v_add_u32 v{vG}, s{sT2}, v{vGy}")
    a(f"v_cmp_eq_u32 s[{sMl0}:{sMl0+1}], 0, v{vI32}")
    a(f"s_and_b64 s[{sMl0}:{sMl0+1}], s[{sMl0}:{sMl0+1}], s[{sMrg}:{sMrg+1}]")
    a(f"s_and_b32 s{sT0}, s{sW}, 7")
    a(f"s_lshr_b32 s{sT1}, s{sW}, 3")
    a(f"s_and_b32 s{sT1}, s{sT1}, 3")
    a(f"s_lshr_b32 s{sT3}, s{sW}, 5")
    a(f"s_and_b32 s{sT3}, s{sT3}, 1")
    a(f"s_lshl_b32 s{sT3}, s{sT3}, 8")
    a(f"s_lshl_b32 s{sT2}, s{sT0}, 3")
    a(f"s_add_u32 s{sT2}, s{sT2}, s{sV}")
    a(f"v_lshlrev_b32 v{vT}, 6, v{vRow}")
    a(f"v_add_u32 v{vBm}, s{sT2}, v{vT}")
    a(f"v_lshlrev_b32 v{vBm}, 13, v{vBm}")
    a(f"s_lshl_b32 s{sT2}, s{sT1}, 9")
    a(f"s_add_u32 s{sT2}, s{sT2}, s{sT3}")
    a(f"s_add_u32 s{sT2}, s{sT2}, {O_OB}")
    a(f"v_lshl_add_u32 v{vBo}, v{vC}, 4, v{vBm}")
    a(f"v_add_u32 v{vBo}, s{sT2}, v{vBo}")
    a(f"s_lshl_b32 s{sT2}, s{sT1}, 3")
    a(f"s_add_u32 s{sT2}, s{sT2}, {O_MLB}")
    a(f"v_add_u32 v{vBm}, s{sT2}, v{vBm}")
    a(f"s_lshl_b32 s{sT2}, s{sT0}, 2")
    a(f"s_add_u32 s{sT2}, s{sT2}, s{sT1}")
    if cfg.PX == 1:
        a(f"s_lshl_b32 s{sT2}, s{sT2}, 1")
        a(f"s_add_u32 s{sT2}, s{sT2}, s{sV}")
    else:
        n = {8: 0, 16: 1, 32: 2}[cfg.PX]
        a(f"s_lshr_b32 s{sIdx}, s{sT2}, {n}")
        a(f"s_and_b32 s{sIdx}, s{sIdx}, 7")
        a(f"s_and_b32 s{sJ}, s{sT2}, {(1 << n) - 1}")
        a(f"s_lshl_b32 s{sJ}, s{sJ}, 4")
        a(f"s_add_u32 s{sIdx}, s{sIdx}, s{sJ}")
        a(f"s_lshr_b32 s{sT2}, s{sT2}, {3 + n}")
        a(f"s_lshl_b32 s{sT2}, s{sT2}, {4 + n}")
        a(f"s_add_u32 s{sT2}, s{sT2}, s{sIdx}")
        a(f"s_lshl_b32 s{sIdx}, s{sV}, 3")
        a(f"s_add_u32 s{sT2}, s{sT2}, s{sIdx}")
    a(f"v_add_u32 v{vAm}, s{sT2}, v{vT}")
    a(f"v_lshlrev_b32 v{vAm}, 13, v{vAm}")
    a(f"s_add_u32 s{sT3}, s{sT3}, {O_OA}")
    a(f"v_lshl_add_u32 v{vAo}, v{vC}, 4, v{vAm}")
    a(f"v_add_u32 v{vAo}, s{sT3}, v{vAo}")
    a(f"v_add_u32 v{vAm}, {O_MLA}, v{vAm}")
    a(f"s_lshl_b32 s{sT2}, s{sV}, 5")
    a(f"v_lshlrev_b32 v{vS2r}, 3, v{vRow}")
    a(f"v_add_u32 v{vS2r}, s{sT2}, v{vS2r}")
    vS, vMm = T0, T0 + 1
    a(f"v_lshrrev_b32 v{vS}, 1, v{vLane}")
    a(f"v_and_b32 v{vS}, 7, v{vS}")
    a(f"v_and_b32 v{vMm}, 1, v{vLane}")
    a(f"v_lshlrev_b32 v{vR1}, 10, v{vS}")
    a(f"v_lshl_add_u32 v{vR1}, v{vRow}, 8, v{vR1}")
    a(f"v_lshl_add_u32 v{vR1}, v{vMm}, 4, v{vR1}")
    a(f"v_add_u32 v{vR1}, s{sT2}, v{vR1}")
    a(f"v_lshlrev_b32 v{vR2}, 5, v{vS}")
    a(f"v_lshl_add_u32 v{vR2}, v{vRow}, 3, v{vR2}")
    a(f"v_cmp_gt_u32 s[{sS2}:{sS2+1}], 2, v{vS}")
    a(f"s_lshl_b32 s{sT0}, s{sV}, 8")
    a(f"v_lshlrev_b32 v{vO1}, 5, v{vRow}")
    a(f"v_lshl_add_u32 v{vO1}, v{vMm}, 4, v{vO1}")
    a(f"v_add_u32 v{vO1}, s{sT0}, v{vO1}")
    a(f"v_lshlrev_b32 v{vO2}, 5, v{vBank}")
    a(f"v_lshl_add_u32 v{vO2}, v{vRow}, 2, v{vO2}")
    a(f"v_add_u32 v{vO2}, s{sT0}, v{vO2}")
    a(f"s_and_b32 s{sT0}, s{sW}, 7")
    a(f"s_lshr_b32 s{sT1}, s{sW}, 3")
    a(f"s_and_b32 s{sT1}, s{sT1}, 7")
    a(f"s_lshr_b32 s{sT2}, s{sT0}, 1")
    a(f"s_lshl_b32 s{sT2}, s{sT2}, 19")
    a(f"s_lshl_b32 s{sT3}, s{sB}, 9")
    a(f"s_add_u32 s{sT2}, s{sT2}, s{sT3}")
    a(f"s_and_b32 s{sT3}, s{sT0}, 1")
    a(f"s_lshl_b32 s{sT3}, s{sT3}, 8")
    a(f"s_add_u32 s{sT2}, s{sT2}, s{sT3}")
    a(f"s_lshl_b32 s{sT3}, s{sT1}, 5")
    a(f"s_add_u32 s{sT2}, s{sT2}, s{sT3}")
    a(f"v_lshlrev_b32 v{vF}, 13, v{vLane}")
    a(f"v_add_u32 v{vF}, s{sT2}, v{vF}")
    a(f"v_and_b32 v{vT}, 1, v{vRow}")
    a(f"v_lshlrev_b32 v{vT}, 1, v{vT}")
    a(f"v_lshrrev_b32 v{vT+1}, 1, v{vRow}")
    a(f"v_add_u32 v{vT}, v{vT}, v{vT+1}")
    a(f"v_lshlrev_b32 v{vT}, 1, v{vT}")
    a(f"s_lshl_b32 s{sT2}, s{sB}, 10")
    a(f"s_lshl_b32 s{sT0}, s{sT0}, 7")
    a(f"s_lshl_b32 s{sT1}, s{sT1}, 4")
    a(f"s_add_u32 s{sT2}, s{sT2}, s{sT0}")
    a(f"s_add_u32 s{sT2}, s{sT2}, s{sT1}")
    a(f"v_add_u32 v{vOut}, s{sT2}, v{vT}")
    a(f"s_and_b32 s{sT0}, s{sW}, 0xf8")
    a(f"s_add_u32 s{sT0}, s{sT0}, s{sV}")
    a(f"s_lshl_b32 s{sT0}, s{sT0}, 8")
    a(f"s_add_u32 s{sCntB}, s{sT0}, {WS_CNT}")
    c("the q_B operand must be in LDS (its flag also says that every workgroup has cleared its slots and counters)")
    a(f"s_mov_b32 s{sSpin}, 0")
    a(f"v_mov_b32 v{vT}, {L_FLAG}")
    a.label(f"{N}_fl")
    a(f"ds_read_b32 v{vT+1}, v{vT}")
    a("s_waitcnt lgkmcnt(0)")
    a(f"v_readfirstlane_b32 s{sT0}, v{vT+1}")
    a(f"s_cmp_eq_u32 s{sT0}, 1")
    a(f"s_cbranch_scc1 {N}_fld")
    spin_tail(f"{N}_fl", f"{N}_fld")
    a.label(f"{N}_fld")
    a(f"ds_read_b128 {vr(QB,4)}, v{vVoff} offset:{L_QBOP}")
    a("s_waitcnt lgkmcnt(0)")
    top_static(); body(0, R_KA, R_VA)
    top_static(); sclaim(); body(1, R_KA, R_VA)
    c("from here on the issue side runs on branch B; kinds: 1 = A tile, 2 = first B tile, 3 = B tile, 0 = none")
    for k in range(3):
        a(f"s_mov_b32 s{R_IK+k}, s{R_KB+k}")
        a(f"s_mov_b32 s{R_IV+k}, s{R_VB+k}")
    a(f"s_mov_b32 s{sKc}, 2")
    a(f"s_mov_b32 s{sRem}, 0")
    a(f"s_mov_b32 s{sK0}, 1")
    a(f"s_mov_b32 s{sK1}, 1")
    a(f"s_mov_b32 s{sBst}, 0")
    a("s_mov_b64 vcc, 0")
    a.label(f"{N}_dloop")
    for st in range(2):
        top_dyn(st); body(st, R_IK, R_IV)
        a(f"s_mov_b32 s{sK0}, s{sK1}")
        a(f"s_mov_b32 s{sK1}, s{sK2}")
        a(f"s_cmp_eq_u32 s{sK0}, 0")
        a(f"s_cbranch_scc1 {N}_dend")
    a(f"s_branch {N}_dloop")
    for st in range(2): top_dyn_cold(st)
    a.label(f"{N}_dend")
    a(f"s_cmp_eq_u32 s{sBst}, 0")
    a(f"s_cbranch_scc0 {N}_dend2")
    state_switch()
    a.label(f"{N}_dend2")
    a("s_nop 7")
    stamp(3)

    c("=== tail: per-wave softmax states to LDS")
    a(f"ds_write_b128 v{vW1}, {vr(ACC,4)} offset:{L_BM}")
    a(f"ds_write_b128 v{vW1}, {vr(ACC+4,4)} offset:{L_BM+1024}")
    a(f"ds_write_b128 v{vW1}, {vr(ACCA,4)} offset:{L_AM}")
    a(f"ds_write_b128 v{vW1}, {vr(ACCA+4,4)} offset:{L_AM+1024}")
    for perm in ('v_permlane16_swap_b32', 'v_permlane32_swap_b32'):
        a(f"v_mov_b32 v{T0}, v{vL}")
        a(f"v_mov_b32 v{T0+1}, v{vLA}")
        a(f"{perm} v{vL}, v{T0}")
        a(f"{perm} v{vLA}, v{T0+1}")
        a(f"v_add_f32 v{vL}, v{vL}, v{T0}")
        a(f"v_add_f32 v{vLA}, v{vLA}, v{T0+1}")
    a(f"ds_write_b64 v{vW2}, {vr(vM,2)} offset:{L_MLB}")
    a(f"ds_write_b64 v{vW2}, {vr(vMA,2)} offset:{L_MLA}")
    a("s_waitcnt lgkmcnt(0)")
    a("s_barrier")
    stamp(4)
    c("waves 0,1 merge the four B heads, wave 2 (32 lanes) merges A; results are published (slots were all-ones)")
    a(f"s_cmp_lt_u32 s{sV}, 3")
    a(f"s_cbranch_scc0 {N}_nomerge")
    a(f"s_mov_b64 exec, s[{sMrg}:{sMrg+1}]")
    MLr, AC = 172, 188
    for vv in range(8):
        a(f"ds_read_b64 {vr(MLr+2*vv,2)}, v{vML} offset:{vv*32}")
    for vv in range(8):
        a(f"ds_read_b128 {vr(AC+4*vv,4)}, v{vRA} offset:{vv*2048}")
    a("s_waitcnt lgkmcnt(8)")
    Ms = 220
    a(f"v_max3_f32 v{Ms}, v{MLr}, v{MLr+2}, v{MLr+4}")
    a(f"v_max3_f32 v{Ms+1}, v{MLr+6}, v{MLr+8}, v{MLr+10}")
    a(f"v_max3_f32 v{Ms}, v{Ms}, v{MLr+12}, v{MLr+14}")
    a(f"v_max_f32 v{Ms}, v{Ms}, v{Ms+1}")
    for vv in range(8): a(f"v_sub_f32 v{MLr+2*vv}, v{MLr+2*vv}, v{Ms}")
    for vv in range(8): a(f"v_mul_f32 v{MLr+2*vv}, s{sL2E}, v{MLr+2*vv}")
    for vv in range(8): a(f"v_exp_f32 v{MLr+2*vv}, v{MLr+2*vv}")
    a("s_waitcnt lgkmcnt(0)")
    O4 = 224
    for r in range(4): a(f"v_mul_f32 v{O4+r}, v{MLr}, v{AC+r}")
    for vv in range(1, 8):
        for r in range(4): a(f"v_fma_f32 v{O4+r}, v{MLr+2*vv}, v{AC+4*vv+r}, v{O4+r}")
    a(f"buffer_store_dwordx4 {vr(O4,4)}, v{vG}, {sr(R_WS,4)}, 0 offen sc1")
    a(f"v_mul_f32 v{Ms+1}, v{MLr}, v{MLr+1}")
    for vv in range(1, 8): a(f"v_fma_f32 v{Ms+1}, v{MLr+2*vv}, v{MLr+2*vv+1}, v{Ms+1}")
    a(f"s_mov_b64 exec, s[{sMl0}:{sMl0+1}]")
    a(f"buffer_store_dwordx2 {vr(Ms,2)}, v{vGM}, {sr(R_WS,4)}, 0 offen sc1")
    a("s_mov_b64 exec, -1")
    stamp(5)
    a("s_nop 7")
    a.label(f"{N}_nomerge")

    c("=== hand-off 1: wave v fetches split v of the four batches (B) and, for v < 2, half v (A); any all-ones word = not yet")
    OB4, MLB2, OA4, MLA2 = 180, 184, 188, 192
    PB = RING
    a(f"s_lshl_b32 s{sT2}, s{sV}, 10")
    a(f"v_add_u32 v{T0}, s{sT2}, v{vVoff}")
    a(f"s_mov_b32 s{sSpin}, 0")
    a("s_waitcnt vmcnt(0)")
    for k in range(4): a(f"v_mov_b32 v{PB+8+k}, 0")
    a(f"v_mov_b32 v{PB+12}, 0")
    a(f"v_mov_b32 v{PB+13}, 0")
    if cfg.natwait:
        c("polling starts once this workgroup's own partials are acknowledged")
        a("s_barrier")
    elif cfg.pre1: a(f"s_sleep {cfg.pre1}")
    a.label(f"{N}_p1")
    a(f"buffer_load_dwordx4 {vr(PB,4)}, v{vBo}, {sr(R_WS,4)}, 0 offen sc1")
    a(f"buffer_load_dwordx2 {vr(PB+4,2)}, v{vBm}, {sr(R_WS,4)}, 0 offen sc1")
    a(f"s_cmp_lt_u32 s{sV}, 2")
    a(f"s_cbranch_scc0 {N}_p1n")
    a(f"buffer_load_dwordx4 {vr(PB+8,4)}, v{vAo}, {sr(R_WS,4)}, 0 offen sc1")
    a(f"buffer_load_dwordx2 {vr(PB+12,2)}, v{vAm}, {sr(R_WS,4)}, 0 offen sc1")
    a.label(f"{N}_p1n")
    a("s_waitcnt vmcnt(0)")
    a(f"v_max3_u32 v{vT}, v{PB}, v{PB+1}, v{PB+2}")
    a(f"v_max3_u32 v{vT+1}, v{PB+3}, v{PB+4}, v{PB+5}")
    a(f"v_max3_u32 v{vT}, v{vT}, v{PB+8}, v{PB+9}")
    a(f"v_max3_u32 v{vT+1}, v{vT+1}, v{PB+10}, v{PB+11}")
    a(f"v_max3_u32 v{vT}, v{vT}, v{PB+12}, v{PB+13}")
    a(f"v_max_u32 v{vT}, v{vT}, v{vT+1}")
    a(f"v_cmp_eq_u32 vcc, -1, v{vT}")
    a("s_cmp_eq_u64 vcc, 0")
    a(f"s_cbranch_scc1 {N}_p1d")
    spin_tail(f"{N}_p1", f"{N}_p1d", cfg.sleep1)
    a.label(f"{N}_p1d")
    a(f"ds_write_b128 v{T0}, {vr(PB,4)} offset:{L_G1B}")
    a(f"ds_write_b64 v{vS2r}, {vr(PB+4,2)} offset:{L_G1MB}")
    a(f"s_cmp_lt_u32 s{sV}, 2")
    a(f"s_cbranch_scc0 {N}_g1n")
    a(f"ds_write_b128 v{T0}, {vr(PB+8,4)} offset:{L_G1A}")
    a(f"ds_write_b64 v{vS2r}, {vr(PB+12,2)} offset:{L_G1MA}")
    a.label(f"{N}_g1n")
    stamp(6)
    for k in range(4): a(f"v_mov_b32 v{OA4+k}, 0")
    a(f"v_mov_b32 v{MLA2}, 0xff7fffff")
    a(f"v_mov_b32 v{MLA2+1}, 0")
    a("s_waitcnt lgkmcnt(0)")
    a("s_barrier")
    c("each wave takes its 8 dims: lane (row = batch, split = (lane>>1)&7, m = lane&1); softmax-combine the splits")
    a(f"ds_read_b128 {vr(OB4,4)}, v{vR1} offset:{L_G1B}")
    a(f"ds_read_b64 {vr(MLB2,2)}, v{vR2} offset:{L_G1MB}")
    a(f"s_mov_b64 exec, s[{sS2}:{sS2+1}]")
    a(f"ds_read_b128 {vr(OA4,4)}, v{vR1} offset:{L_G1A}")
    a(f"ds_read_b64 {vr(MLA2,2)}, v{vR2} offset:{L_G1MA}")
    a("s_mov_b64 exec, -1")
    GG = 204
    a(f"v_lshlrev_b32 v{vT}, 3, v{vRow}")
    a(f"ds_read_b64 {vr(GG,2)}, v{vT} offset:{L_G}")
    a("s_waitcnt lgkmcnt(0)")
    pairs = ((OB4, MLB2, 196, 197), (OA4, MLA2, 198, 199))
    for (o4, ml, Mx, sc) in pairs: a(f"v_max_f32_dpp v{Mx}, v{ml}, v{ml} row_ror:8 {FULL}")
    for n in (4, 2):
        for (o4, ml, Mx, sc) in pairs: a(f"v_max_f32_dpp v{Mx}, v{Mx}, v{Mx} row_ror:{n} {FULL}")
    for (o4, ml, Mx, sc) in pairs: a(f"v_sub_f32 v{sc}, v{ml}, v{Mx}")
    for (o4, ml, Mx, sc) in pairs: a(f"v_mul_f32 v{sc}, s{sL2E}, v{sc}")
    for (o4, ml, Mx, sc) in pairs: a(f"v_exp_f32 v{sc}, v{sc}")
    for (o4, ml, Mx, sc) in pairs: a(f"v_mul_f32 v{ml+1}, v{ml+1}, v{sc}")
    for (o4, ml, Mx, sc) in pairs:
        for r in range(4): a(f"v_mul_f32 v{o4+r}, v{o4+r}, v{sc}")
    for n in (8, 4, 2):
        for (o4, ml, Mx, sc) in pairs:
            for r in [ml + 1] + [o4 + k for k in range(4)]:
                a(f"v_add_f32_dpp v{r}, v{r}, v{r} row_ror:{n} {FULL}")
    for (o4, ml, Mx, sc) in pairs: a(f"v_rcp_f32 v{sc}, v{ml+1}")
    for (o4, ml, Mx, sc) in reversed(pairs):
        for r in range(4): a(f"v_mul_f32 v{o4+r}, v{o4+r}, v{sc}")
    a(f"ds_write_b128 v{vO1}, {vr(OA4,4)} offset:{L_OT}")
    a(f"ds_write_b128 v{vO1}, {vr(OB4,4)} offset:{L_OT+128}")
    XO = 200
    a("s_waitcnt lgkmcnt(0)")
    a(f"ds_read_b32 v{XO}, v{vO2} offset:{L_OT}")
    a(f"ds_read_b32 v{XO+1}, v{vO2} offset:{L_OT+16}")
    a(f"ds_read_b32 v{XO+2}, v{vO2} offset:{L_OT+128}")
    a(f"ds_read_b32 v{XO+3}, v{vO2} offset:{L_OT+144}")
    a("s_waitcnt lgkmcnt(0)")
    for k in range(4): a(f"v_cvt_pk_bf16_f32 v{XO+k}, v{XO+k}, v{XO+k}")
    c("o (bf16) times the prefetched wo rows, gate mix, partial y to LDS")
    YA, YB = DD, DD + 8
    for k, (wo, acc) in enumerate(((WOA, YA), (WOB, YB), (WOA + 4, YA), (WOB + 4, YB))):
        win_from(XO + (0, 2, 1, 3)[k])
        pv(wo, acc, acc + 4, k < 2)
    for k in range(8): a(f"v_mul_f32 v{YA+k}, v{YA+k}, v{GG}")
    for k in range(8): a(f"v_fma_f32 v{YA+k}, v{YB+k}, v{GG+1}, v{YA+k}")
    a(f"ds_write_b128 v{vW1}, {vr(YA,4)} offset:{L_YP}")
    a(f"ds_write_b128 v{vW1}, {vr(YA+4,4)} offset:{L_YP+1024}")
    a("s_waitcnt lgkmcnt(0)")
    a("s_barrier")
    stamp(7)
    c("waves 0,1: sum the 8 partial y and publish; final reduction of 8 output columns by one wave; the others are done")
    a(f"s_cmp_lt_u32 s{sV}, 2")
    a(f"s_cbranch_scc0 {N}_noy")
    for vv in range(8):
        a(f"ds_read_b128 {vr(AC+4*vv,4)}, v{vLA_} offset:{L_YP + vv*2048}")
    for step in (4, 2, 1):
        if step == 4: a("s_waitcnt lgkmcnt(0)")
        for g in range(step):
            for r in range(4):
                a(f"v_add_f32 v{AC+4*g+r}, v{AC+4*g+r}, v{AC+4*(g+step)+r}")
    a(f"buffer_store_dwordx4 {vr(AC,4)}, v{vGy}, {sr(R_WS,4)}, 0 offen offset:{O_Y} sc1")
    stamp(8)
    if cfg.natwait:
        a(f"s_cmp_eq_u32 s{sV}, 0")
        a(f"s_cbranch_scc0 {N}_done")
        c("wave 0 goes on to the final reduction once its own part of y is acknowledged")
        a("s_waitcnt vmcnt(0)")
        a(f"s_branch {N}_fin")
        a.label(f"{N}_noy")
        a(f"s_branch {N}_done")
        a.label(f"{N}_fin")
    else:
        a(f"s_branch {N}_done")
        a.label(f"{N}_noy")
        a(f"s_cmp_eq_u32 s{sV}, 2")
        a(f"s_cbranch_scc0 {N}_done")
    c("=== hand-off 2: lane i fetches 8 columns of unit 64*cg + i")
    F = 180
    a(f"s_mov_b32 s{sSpin}, 0")
    if cfg.pre2 and not cfg.natwait: a(f"s_sleep {cfg.pre2}")
    a.label(f"{N}_p2")
    a(f"buffer_load_dwordx4 {vr(F,4)}, v{vF}, {sr(R_WS,4)}, 0 offen offset:{O_Y} sc1")
    a(f"buffer_load_dwordx4 {vr(F+4,4)}, v{vF}, {sr(R_WS,4)}, 0 offen offset:{O_Y+16} sc1")
    a("s_waitcnt vmcnt(0)")
    a(f"v_max3_u32 v{vT}, v{F}, v{F+1}, v{F+2}")
    a(f"v_max3_u32 v{vT+1}, v{F+3}, v{F+4}, v{F+5}")
    a(f"v_max3_u32 v{vT}, v{vT}, v{F+6}, v{F+7}")
    a(f"v_max_u32 v{vT}, v{vT}, v{vT+1}")
    a(f"v_cmp_eq_u32 vcc, -1, v{vT}")
    a("s_cmp_eq_u64 vcc, 0")
    a(f"s_cbranch_scc1 {N}_p2d")
    spin_tail(f"{N}_p2", f"{N}_p2d", cfg.sleep2)
    a.label(f"{N}_p2d")
    stamp(9)
    for k in range(4): a(f"v_permlane32_swap_b32 v{F+2*k}, v{F+2*k+1}")
    for k in range(4): a(f"v_add_f32 v{F+2*k}, v{F+2*k}, v{F+2*k+1}")
    a(f"v_permlane16_swap_b32 v{F}, v{F+2}")
    a(f"v_permlane16_swap_b32 v{F+4}, v{F+6}")
    a(f"v_add_f32 v{F}, v{F}, v{F+2}")
    a(f"v_add_f32 v{F+4}, v{F+4}, v{F+6}")
    for n in (8, 4, 2, 1):
        a(f"v_add_f32_dpp v{F}, v{F}, v{F} row_ror:{n} {FULL}")
        a(f"v_add_f32_dpp v{F+4}, v{F+4}, v{F+4} row_ror:{n} {FULL}")
    a(f"v_cvt_pk_bf16_f32 v{F}, v{F}, v{F+4}")
    a("s_mov_b32 exec_lo, 0x00010001")
    a("s_mov_b32 exec_hi, 0x00010001")
    a(f"buffer_store_short v{F}, v{vOut}, {sr(R_OUT,4)}, 0 offen {cfg.outfl}".rstrip())
    a(f"buffer_store_short_d16_hi v{F}, v{vOut}, {sr(R_OUT,4)}, 0 offen offset:8 {cfg.outfl}".rstrip())
    a("s_mov_b64 exec, -1")
    stamp(10)
    a(f"s_branch {N}_done")

    a.label(f"{N}_job0")
    c("publisher: its clears and q_B partial are older than its last 8 loads, so they are complete: count this workgroup in")
    is_role(R_PUB, f"{N}_jobret")
    a("s_waitcnt vmcnt(8)")
    a(f"s_mov_b32 s{sT0}, 1")
    a(f"s_atomic_add s{sT0}, s[{P_DBG}:{P_DBG+1}], 0x0")
    a("s_waitcnt lgkmcnt(0)")
    stamp(19)
    a(f"s_branch {N}_jobret")
    a.label(f"{N}_job2")
    c("gate wave: g = bf16(sigmoid(bf16(sum bf16(x*gate_w)))), 1-g in bf16 -> LDS")
    is_role(R_GATE, f"{N}_jobret")
    GX, GW = TMP, TMP + 16
    a(f"v_lshlrev_b32 v{vT+1}, 6, v{vC}")
    a(f"v_lshl_add_u32 v{vT}, v{vRow}, 10, v{vT+1}")
    for k in range(4):
        a(f"buffer_load_dwordx4 {vr(GX+4*k,4)}, v{vT}, {sr(R_X,4)}, 0 offen offset:{16*k}")
        a(f"buffer_load_dwordx4 {vr(GW+4*k,4)}, v{vT+1}, {sr(R_GW,4)}, 0 offen offset:{16*k}")
    a("s_waitcnt vmcnt(0)")
    z, t0, t1, t2, t3 = TMP + 32, TMP + 33, TMP + 34, TMP + 35, TMP + 36
    a(f"v_mov_b32 v{z}, 0")
    for k in range(16):
        a(f"v_lshlrev_b32 v{t0}, 16, v{GX+k}")
        a(f"v_lshlrev_b32 v{t1}, 16, v{GW+k}")
        a(f"v_and_b32 v{t2}, 0xffff0000, v{GX+k}")
        a(f"v_and_b32 v{t3}, 0xffff0000, v{GW+k}")
        a(f"v_mul_f32 v{t0}, v{t0}, v{t1}")
        a(f"v_mul_f32 v{t2}, v{t2}, v{t3}")
        a(f"v_cvt_pk_bf16_f32 v{t0}, v{t0}, v{t2}")
        a(f"v_lshlrev_b32 v{t1}, 16, v{t0}")
        a(f"v_and_b32 v{t0}, 0xffff0000, v{t0}")
        a(f"v_add_f32 v{z}, v{z}, v{t1}")
        a(f"v_add_f32 v{z}, v{z}, v{t0}")
    for n in (8, 4, 2, 1):
        a(f"v_add_f32_dpp v{z}, v{z}, v{z} row_ror:{n} {FULL}")
    a(f"v_cvt_pk_bf16_f32 v{z}, v{z}, v{z}")
    a(f"v_and_b32 v{z}, 0xffff0000, v{z}")
    a(f"v_mul_f32 v{z}, s{sNL2E}, v{z}")
    a(f"v_exp_f32 v{z}, v{z}")
    a(f"v_add_f32 v{z}, 1.0, v{z}")
    a(f"v_rcp_f32 v{z}, v{z}")
    g0 = TMP + 38
    a(f"v_cvt_pk_bf16_f32 v{g0}, v{z}, v{z}")
    a(f"v_and_b32 v{g0}, 0xffff0000, v{g0}")
    a(f"v_sub_f32 v{g0+1}, 1.0, v{g0}")
    a(f"v_cvt_pk_bf16_f32 v{g0+1}, v{g0+1}, v{g0+1}")
    a(f"v_and_b32 v{g0+1}, 0xffff0000, v{g0+1}")
    a(f"v_lshlrev_b32 v{vT}, 3, v{vRow}")
    a(f"ds_write_b64 v{vT}, {vr(g0,2)} offset:{L_G}")
    a("s_waitcnt lgkmcnt(0)")
    a("s_nop 7")
    a(f"s_branch {N}_jobret")
    if cfg.warm:
        a.label(f"{N}_jobw")
        c("one wave touches the pages that are first needed late (output, branch-B K/V) so that their translation is cached")
        is_role(R_GATE, f"{N}_jobret")
        a("s_mov_b64 exec, 1")
        if cfg.warm & 1:
            a(f"s_lshl_b32 s{sT0}, s{sW}, 4")
            a(f"v_mov_b32 v{vT}, s{sT0}")
            a(f"buffer_load_dword v{TMP}, v{vT}, {sr(R_OUT,4)}, 0 offen")
        if cfg.warm & 2:
            a(f"v_mov_b32 v{vT+1}, s{sBbase}")
            a(f"buffer_load_dword v{TMP+1}, v{vT+1}, {sr(R_KB,4)}, 0 offen nt")
            a(f"buffer_load_dword v{TMP+2}, v{vT+1}, {sr(R_VB,4)}, 0 offen nt")
        a("s_mov_b64 exec, -1")
        a(f"s_branch {N}_jobret")
    a.label(f"{N}_jobp")
    c("gather wave: look at the arrival counter (result is used two tiles later)")
    is_role(R_GATH, f"{N}_jobret")
    a(f"v_mov_b32 v{vT}, 0")
    a(f"global_load_dword v{vPoll}, v{vT}, s[{P_DBG}:{P_DBG+1}] sc1")
    a(f"s_branch {N}_jobret")
    a.label(f"{N}_jobg")
    c("gather wave: once all 256 workgroups have arrived, sum the 8 partials of the group's four q_B heads into LDS")
    is_role(R_GATH, f"{N}_jobret")
    a(f"s_mov_b32 s{sSpin}, 0")
    a("s_waitcnt vmcnt(16)")
    a.label(f"{N}_c0")
    a(f"v_readfirstlane_b32 s{sT0}, v{vPoll}")
    a(f"s_cmp_ge_u32 s{sT0}, 256")
    a(f"s_cbranch_scc1 {N}_c0d")
    a(f"s_add_u32 s{sSpin}, s{sSpin}, 1")
    a(f"s_cmp_gt_u32 s{sSpin}, {cfg.SPIN}")
    a(f"s_cbranch_scc1 {N}_c0d")
    a("s_sleep 16")
    a(f"v_mov_b32 v{vT}, 0")
    a(f"global_load_dword v{vPoll}, v{vT}, s[{P_DBG}:{P_DBG+1}] sc1")
    a("s_waitcnt vmcnt(0)")
    a(f"s_branch {N}_c0")
    a.label(f"{N}_c0d")
    stamp(15)
    a(f"s_lshr_b32 s{sT0}, s{sW}, 3")
    a(f"s_and_b32 s{sT0}, s{sT0}, 7")
    a(f"s_lshl_b32 s{sT0}, s{sT0}, 16")
    a(f"s_lshl_b32 s{sT1}, s{sB}, 9")
    a(f"s_add_u32 s{sT0}, s{sT0}, s{sT1}")
    a(f"s_add_u32 s{sT0}, s{sT0}, {WS_QB}")
    a(f"v_lshlrev_b32 v{vT}, 14, v{vBank}")
    a(f"v_lshl_add_u32 v{vT}, v{vRow}, 7, v{vT}")
    a(f"v_lshl_add_u32 v{vT}, v{vQ}, 5, v{vT}")
    a(f"v_add_u32 v{vT}, s{sT0}, v{vT}")
    S2 = TMP
    for sl in range(8):
        a(f"s_mov_b32 s{sT1}, {(sl // 2) * 4096}")
        for m in range(2):
            a(f"buffer_load_dwordx4 {vr(S2 + 8*sl + 4*m, 4)}, v{vT}, {sr(R_WS,4)}, s{sT1} offen offset:{(sl % 2) * 2048 + 16*m} sc1")
    a("s_waitcnt vmcnt(0)")
    tree_sum8(S2)
    for k in range(4):
        a(f"v_cvt_pk_bf16_f32 v{S2+8+k}, v{S2+2*k}, v{S2+2*k+1}")
    a(f"ds_write_b128 v{vVoff}, {vr(S2+8,4)} offset:{L_QBOP}")
    a("s_waitcnt lgkmcnt(0)")
    a(f"v_mov_b32 v{vT}, {L_FLAG}")
    a(f"ds_write_b32 v{vT}, v{vOne}")
    a("s_waitcnt lgkmcnt(0)")
    stamp(18)
    a("s_nop 7")
    a(f"s_branch {N}_jobret")

    a.label(f"{N}_done")
    a("s_endpgm")
    body_text, npad = a.text()
    kd = f"""
.section .rodata,"a"
.p2align 6
.amdhsa_kernel {N}
  .amdhsa_next_free_vgpr {NVGPR}
  .amdhsa_next_free_sgpr 102
  .amdhsa_accum_offset {NVGPR}
  .amdhsa_group_segment_fixed_size 0
  .amdhsa_kernarg_size 112
  .amdhsa_user_sgpr_count 2
  .amdhsa_user_sgpr_kernarg_segment_ptr 1
  .amdhsa_system_sgpr_workgroup_id_x 1
  .amdhsa_float_denorm_mode_32 3
.end_amdhsa_kernel
"""
    return body_text, kd, npad

HEADER = open('gated_mix__mha_block_cached__gqa_block_cached__decode.s.ref').read().split('; Override launch geometry')[0]


DESC = """;
;
"""

def full_file(cfg):
    body, kd, npad = build(cfg)
    s = HEADER
    s += f"; @launch grid=(256,1,1) block=(512,1,1) lds={LDS_BYTES}\n"
    s += DESC
    s += '.amdgcn_target "amdgcn-amd-amdhsa--gfx950"\n.text\n'
    s += body + "\n" + kd
    return s, npad

if __name__ == '__main__':
    cfg = Cfg()
    out = sys.argv[1]
    for kv in sys.argv[2:]:
        k, v = kv.split('=', 1)
        cur = getattr(cfg, k)
        setattr(cfg, k, type(cur)(int(v, 0)) if isinstance(cur, (bool, int)) else v)
    s, npad = full_file(cfg)
    open(out, 'w').write(s)
    print('written', out, len(s), 'bytes; nop pads', npad)
```

```python
import sys, os
sys.path.insert(0, os.path.dirname(os.path.abspath(__file__)))
from asmlib import Asm

KNAME = 'gated_mix__mha_block_cached__gqa_block_cached__decode_kernel'

class Cfg:
    D = 3
    PD = 3
    D0 = 0
    N0 = 2
    I0 = 8
    SPIN = 200000
    J_POLL = 4
    stopc = 20
    pre1 = 16; sleep1 = 8; pre2 = 22; sleep2 = 4
    PX = 8
    warm = 0
    rotA = 0
    natwait = True
    outfl = ''
    diag = False; tlog = False; xorid = 0
    name = KNAME

sRem, sStride = 0, 1
sW, sV = 2, 3
P_X, P_KA, P_VA, P_WQA, P_WOA, P_BX, P_KB, P_VB = 4, 6, 8, 10, 12, 14, 16, 18
P_WQB, P_WOB, P_GW, P_OUT = 20, 22, 24, 26
P_DBG, P_WS = 28, 30
R_IK, R_IV = 4, 8
sMrg, sMl0, sS2 = 12, 14, 16
sPhase, sBase, sKc, sBst = 18, 20, 21, 23
sK0, sK1, sK2 = 24, 25, 26
sLog = 27
R_KA, R_VA, R_KB, R_VB = 32, 36, 40, 44
R_WQA, R_WQB, R_WOA, R_WOB = 48, 52, 56, 60
R_X, R_GW, R_WS, R_OUT = 64, 68, 72, 76
sB, sOff, sJ, sClaim = 80, 81, 82, 83
sT0, sT1, sT2, sT3 = 85, 86, 87, 88
sBbase = 89
sScale, sL2E, sNL2E = 90, 91, 92
sSpin, sSlot, sIdx = 93, 94, 95
sSelLo, sSelHi = 96, 97
sStamp = 98
sCntB = 101
sAbase, sStr = 19, 22

vLane = 0
vKoff, vVoff, vKcur, vVcur = 1, 2, 3, 4
vMask0, vMask1 = 5, 6
vPoll, vOne = 7, 8
vRow, vBank, vQ, vC = 10, 11, 12, 13
vT = 14
RING = 16
QOP, QB = 80, 84
ACC, ACCA = 88, 96
vM, vL, vMA, vLA = 104, 105, 106, 107
DD = 108
Y = 124
PP = 128
WIN = 132
vAl, vAT, vNM, vMn = 138, 139, 140, 141
T0 = 142
WOA, WOB = 148, 156
TMP = 164
vW1, vW2, vRA, vML, vG, vGM, vBo, vBm, vAo, vAm, vS2r, vR1, vR2, vO1, vO2, vLA_, vGy, vF, vOut = range(228, 247)
NVGPR = 256

L_QBOP = 0
L_MLB, L_MLA = 1024, 1280
L_OT = 1536
L_G = 3584
L_FLAG = 3648
L_QA, L_QBP = 4096, 20480
L_BM, L_AM = 36864, 53248
L_YP = L_QA
L_G1B, L_G1A, L_G1MB, L_G1MA = L_QBP, L_QBP + 8192, L_QBP + 10240, L_QBP + 10496
LDS_BYTES = 69632

O_Y, O_OB, O_OA, O_MLB, O_MLA = 0, 2048, 4096, 4608, 4640
WS_QB = 2 << 20
WS_CNT = 3 << 20
WS_STAMP = (3 << 20) + (512 << 10)
WS_TLOG = 4 << 20

def vr(a, n): return f"v[{a}:{a+n-1}]"
def sr(a, n): return f"s[{a}:{a+n-1}]"
def kslot(st, u): return RING + 32 * st + 4 * u
def vslot(st, u): return RING + 32 * st + 16 + 4 * u
MFMA = 'v_mfma_f32_16x16x32_bf16'
FULL = 'row_mask:0xf bank_mask:0xf'
NS = 32

def build(cfg):
    a = Asm()
    c = a.comment
    N = cfg.name
    D = cfg.D
    WS_BYTES = (8 << 20) if (cfg.diag or cfg.tlog) else (4 << 20)
    def stamp(i):
        if not cfg.diag: return
        a(f"s_memrealtime s[{sStamp}:{sStamp+1}]")
        a("s_waitcnt lgkmcnt(0)")
        a(f"v_mov_b32 v{vT}, s{sStamp}")
        a(f"s_lshl_b32 s{sT3}, s{sW}, 3")
        a(f"s_add_u32 s{sT3}, s{sT3}, s{sV}")
        a(f"s_lshl_b32 s{sT3}, s{sT3}, 7")
        a(f"s_add_u32 s{sT3}, s{sT3}, {WS_STAMP + 4*i}")
        a(f"v_mov_b32 v{vT+1}, s{sT3}")
        a(f"buffer_store_dword v{vT}, v{vT+1}, {sr(R_WS,4)}, 0 offen")
    def tlog():
        if not cfg.tlog: return
        a(f"s_memrealtime s[{sStamp}:{sStamp+1}]")
        a("s_waitcnt lgkmcnt(0)")
        a(f"v_mov_b32 v{vT}, s{sStamp}")
        a(f"v_mov_b32 v{vT+1}, s{sLog}")
        a("s_mov_b64 exec, 1")
        a(f"buffer_store_dword v{vT}, v{vT+1}, {sr(R_WS,4)}, 0 offen")
        a("s_mov_b64 exec, -1")
        a(f"s_add_u32 s{sLog}, s{sLog}, 4")
    def srd(r, p, size):
        a(f"s_mov_b32 s{r}, s{p}")
        a(f"s_and_b32 s{r+1}, s{p+1}, 0xffff")
        a(f"s_mov_b32 s{r+2}, {hex(size)}")
        a(f"s_mov_b32 s{r+3}, 0x20000")
    def pv(data, acc0, acc1, first):
        c0 = '0' if first else vr(acc0, 4)
        c1 = '0' if first else vr(acc1, 4)
        a(f"{MFMA} {vr(acc0,4)}, {vr(WIN+2,4)}, {vr(data,4)}, {c0}")
        a(f"{MFMA} {vr(acc1,4)}, {vr(WIN,4)}, {vr(data,4)}, {c1}")
    def win_from(pp):
        a(f"v_and_b32 v{WIN+2}, v{pp}, v{vMask0}")
        a(f"v_and_b32 v{WIN+3}, v{pp}, v{vMask1}")
    def xrow(op, r, t):
        a(f"v_mov_b32 v{t}, v{r}")
        a(f"v_permlane16_swap_b32 v{r}, v{t}")
        a(f"{op} v{r}, v{r}, v{t}")
        a(f"v_mov_b32 v{t}, v{r}")
        a(f"v_permlane32_swap_b32 v{r}, v{t}")
        a(f"{op} v{r}, v{r}, v{t}")
    def spin_tail(lab_loop, lab_done, slp=2):
        a(f"s_add_u32 s{sSpin}, s{sSpin}, 1")
        a(f"s_cmp_gt_u32 s{sSpin}, {cfg.SPIN}")
        a(f"s_cbranch_scc1 {lab_done}")
        if slp: a(f"s_sleep {slp}")
        a(f"s_branch {lab_loop}")
    def tree_sum8(base):
        for step in (4, 2, 1):
            for g in range(step):
                for k in range(8):
                    a(f"v_add_f32 v{base+8*g+k}, v{base+8*g+k}, v{base+8*(g+step)+k}")
    def kv_load(st, isV, u, rk=R_KA, rv=R_VA):
        slot = vslot(st, u) if isV else kslot(st, u)
        r = rv if isV else rk
        va = vVcur if isV else vKcur
        a(f"buffer_load_dwordx4 {vr(slot,4)}, v{va}, {sr(r,4)}, 0 offen offset:{u*1024} nt")
    def adv_off():
        if not cfg.rotA:
            a(f"s_add_u32 s{sOff}, s{sOff}, 32768")
        else:
            a(f"s_add_u32 s{sStr}, s{sStr}, 1")
            a(f"s_and_b32 s{sStr}, s{sStr}, 31")
            a(f"s_lshl_b32 s{sOff}, s{sStr}, 15")
            a(f"s_add_u32 s{sOff}, s{sOff}, s{sAbase}")
    def pair_of(sp, st):
        if cfg.PX == 1:
            a(f"s_lshr_b32 s{sp}, s{sW}, 1")
            return
        n = {8: 0, 16: 1, 32: 2}[cfg.PX]
        a(f"s_lshr_b32 s{sp}, s{sW}, {4 + n}")
        a(f"s_lshl_b32 s{sp}, s{sp}, {3 + n}")
        a(f"s_and_b32 s{st}, s{sW}, 7")
        if n: a(f"s_lshl_b32 s{st}, s{st}, {n}")
        a(f"s_add_u32 s{sp}, s{sp}, s{st}")
        if n:
            a(f"s_lshr_b32 s{st}, s{sW}, 4")
            a(f"s_and_b32 s{st}, s{st}, {(1 << n) - 1}")
            a(f"s_add_u32 s{sp}, s{sp}, s{st}")
    def is_role(cst, lab_else):
        a(f"s_add_u32 s{sT0}, s{sW}, {cst}")
        a(f"s_and_b32 s{sT0}, s{sT0}, 7")
        a(f"s_cmp_eq_u32 s{sV}, s{sT0}")
        a(f"s_cbranch_scc0 {lab_else}")
    R_PUB, R_GATE, R_GATH = 0, 3, 5

    a(f".globl {N}")
    a(".p2align 8")
    a(f".type {N},@function")
    a.label(N)
    c("workgroups beyond the 256 that carry work leave at once")
    a(f"s_cmp_ge_u32 s{sW}, 256")
    a(f"s_cbranch_scc1 {N}_done")
    if cfg.xorid: a(f"s_xor_b32 s{sW}, s{sW}, {cfg.xorid}")
    if cfg.diag: a("s_memrealtime s[100:101]")
    a(f"s_load_dwordx16 s[4:19], s[0:1], 0")
    a(f"s_load_dwordx8 s[20:27], s[0:1], 64")
    a(f"s_load_dwordx4 s[28:31], s[0:1], 96")
    c("lane = 16*row + 4*bank + q ; c = lane & 15 ; wave id in s3")
    a(f"v_lshrrev_b32 v1, 6, v0")
    a(f"v_and_b32 v{vLane}, 63, v0")
    a(f"v_readfirstlane_b32 s{sV}, v1")
    a(f"v_lshrrev_b32 v{vRow}, 4, v{vLane}")
    a(f"v_lshrrev_b32 v{vBank}, 2, v{vLane}")
    a(f"v_and_b32 v{vBank}, 3, v{vBank}")
    a(f"v_and_b32 v{vQ}, 3, v{vLane}")
    a(f"v_and_b32 v{vC}, 15, v{vLane}")
    a(f"v_lshlrev_b32 v{vVoff}, 4, v{vLane}")
    WQA, WQB, XA, XB = 164, 228, 236, 244
    vWa, vWb, vWo = T0, T0 + 1, T0 + 3
    c("x offsets.  XA: bank*1024 + wave*128 + row*32 ; XB: bank*1024 + slice*128 + wave*16 + row*4")
    a(f"v_lshlrev_b32 v{vT+1}, 10, v{vBank}")
    a(f"s_lshl_b32 s{sT0}, s{sV}, 7")
    a(f"v_lshl_add_u32 v{vT}, v{vRow}, 5, v{vT+1}")
    a(f"v_add_u32 v{vT}, s{sT0}, v{vT}")
    a(f"s_and_b32 s{sT1}, s{sW}, 7")
    a(f"s_lshl_b32 s{sT2}, s{sT1}, 7")
    a(f"s_lshl_b32 s{sT3}, s{sV}, 4")
    a(f"s_add_u32 s{sT2}, s{sT2}, s{sT3}")
    a(f"v_lshl_add_u32 v{vT+1}, v{vRow}, 2, v{vT+1}")
    a(f"v_add_u32 v{vT+1}, s{sT2}, v{vT+1}")
    c("wq lane offsets.  A: 16 rows per DPP row ; B: 2 rows per DPP row ; + c*16")
    a(f"v_lshlrev_b32 v{vWa}, 4, v{vC}")
    a(f"v_lshl_add_u32 v{vWb}, v{vRow}, 14, v{vWa}")
    a(f"v_lshl_add_u32 v{vWo}, v{vRow}, 10, v{vWa}")
    a(f"v_lshl_add_u32 v{vWa}, v{vRow}, 17, v{vWa}")
    c("wq_A scalar offset (s85): wave*64 rows*8192 + head*256; A pair = 8*(w>>4) + (w&7), head = pair & 31, half = (w>>3)&1")
    pair_of(sT0, sT2)
    a(f"s_and_b32 s{sT0}, s{sT0}, 31")
    a(f"s_lshl_b32 s{sT0}, s{sT0}, 8")
    a(f"s_lshl_b32 s{sT2}, s{sV}, 19")
    a(f"s_add_u32 s{sT0}, s{sT0}, s{sT2}")
    c("wq_B scalar offset (s86): (8*slice + wave)*8 rows*8192 + (w>>3)*256, slice = w&7")
    a(f"s_lshl_b32 s{sT1}, s{sT1}, 3")
    a(f"s_add_u32 s{sT1}, s{sT1}, s{sV}")
    a(f"s_lshl_b32 s{sT1}, s{sT1}, 16")
    a(f"s_lshr_b32 s{sT2}, s{sW}, 3")
    a(f"s_lshl_b32 s{sT2}, s{sT2}, 8")
    a(f"s_add_u32 s{sT1}, s{sT1}, s{sT2}")
    a(f"s_lshr_b32 s{sB}, s{sW}, 6")
    a(f"s_lshl_b32 s{sSlot}, s{sW}, 13")
    a("s_waitcnt lgkmcnt(0)")
    srd(R_X, P_X, 4096)
    srd(R_WQA, P_WQA, 4 << 20)
    c("x: group kk of a wave's 16 rows per DPP row is row group (kk + b) & 3, so the workgroups that share a head (and, for")
    c("speed only, an XCD) first-touch different weight lines")
    for kk in range(4):
        a(f"s_add_u32 s{sT2}, s{sB}, {kk}")
        a(f"s_and_b32 s{sT2}, s{sT2}, 3")
        a(f"s_lshl_b32 s{sT2}, s{sT2}, 3")
        a(f"buffer_load_dwordx2 {vr(XA+2*kk,2)}, v{vT}, {sr(R_X,4)}, s{sT2} offen")
    a(f"buffer_load_dword v{XB}, v{vT+1}, {sr(R_X,4)}, 0 offen")
    for kk in range(4):
        a(f"s_add_u32 s{sT2}, s{sB}, {kk}")
        a(f"s_and_b32 s{sT2}, s{sT2}, 3")
        a(f"s_lshl_b32 s{sT2}, s{sT2}, 15")
        a(f"s_add_u32 s{sT2}, s{sT2}, s{sT0}")
        for q in range(4):
            i = 4 * kk + q
            a(f"buffer_load_dwordx4 {vr(WQA+4*i,4)}, v{vWa}, {sr(R_WQA,4)}, s{sT2} offen nt")
            if q < 3: a(f"s_add_u32 s{sT2}, s{sT2}, 8192")
    srd(R_WQB, P_WQB, 4 << 20)
    a(f"buffer_load_dwordx4 {vr(WQB,4)}, v{vWb}, {sr(R_WQB,4)}, s{sT1} offen nt")
    a(f"s_add_u32 s{sT1}, s{sT1}, 8192")
    a(f"buffer_load_dwordx4 {vr(WQB+4,4)}, v{vWb}, {sr(R_WQB,4)}, s{sT1} offen nt")
    c("wo rows of this workgroup's output unit: head hU = 4*(w&7) + ((w>>3)&3), column group w>>6, row half (w>>5)&1")
    srd(R_WOA, P_WOA, 4 << 20)
    srd(R_WOB, P_WOB, 4 << 20)
    a(f"s_and_b32 s{sT0}, s{sW}, 7")
    a(f"s_lshl_b32 s{sT0}, s{sT0}, 2")
    a(f"s_lshr_b32 s{sT1}, s{sW}, 3")
    a(f"s_and_b32 s{sT1}, s{sT1}, 3")
    a(f"s_add_u32 s{sT0}, s{sT0}, s{sT1}")
    a(f"s_lshl_b32 s{sT0}, s{sT0}, 4")
    a(f"s_lshr_b32 s{sT1}, s{sW}, 5")
    a(f"s_and_b32 s{sT1}, s{sT1}, 1")
    a(f"s_lshl_b32 s{sT1}, s{sT1}, 3")
    a(f"s_add_u32 s{sT0}, s{sT0}, s{sT1}")
    a(f"s_add_u32 s{sT0}, s{sT0}, s{sV}")
    a(f"s_lshl_b32 s{sT0}, s{sT0}, 13")
    a(f"s_lshr_b32 s{sT1}, s{sW}, 6")
    a(f"s_lshl_b32 s{sT1}, s{sT1}, 8")
    a(f"s_add_u32 s{sT0}, s{sT0}, s{sT1}")
    a(f"s_add_u32 s{sT1}, s{sT0}, 4096")
    a(f"buffer_load_dwordx4 {vr(WOA,4)}, v{vWo}, {sr(R_WOA,4)}, s{sT0} offen nt")
    a(f"buffer_load_dwordx4 {vr(WOA+4,4)}, v{vWo}, {sr(R_WOA,4)}, s{sT1} offen nt")
    a(f"buffer_load_dwordx4 {vr(WOB,4)}, v{vWo}, {sr(R_WOB,4)}, s{sT0} offen nt")
    a(f"buffer_load_dwordx4 {vr(WOB+4,4)}, v{vWo}, {sr(R_WOB,4)}, s{sT1} offen nt")
    srd(R_WS, P_WS, WS_BYTES)
    srd(R_GW, P_GW, 1024)
    extra = [0]
    c("lane constants and descriptors")
    a(f"v_lshlrev_b32 v{vKoff}, 8, v{vBank}")
    a(f"v_lshl_add_u32 v{vKoff}, v{vRow}, 6, v{vKoff}")
    a(f"v_lshl_add_u32 v{vKoff}, v{vQ}, 4, v{vKoff}")
    a(f"v_and_b32 v{vT}, 1, v{vQ}")
    a(f"v_cmp_eq_u32 vcc, 0, v{vT}")
    a(f"v_mov_b32 v{vT}, 0xffff0000")
    a(f"v_mov_b32 v{vT+1}, 0x0000ffff")
    a(f"v_cndmask_b32 v{vT}, v{vT}, v{vT+1}, vcc")
    a(f"v_cmp_gt_u32 vcc, 2, v{vQ}")
    a(f"v_cndmask_b32 v{vMask0}, 0, v{vT}, vcc")
    a(f"v_cndmask_b32 v{vMask1}, v{vT}, 0, vcc")
    for k in (0, 1, 4, 5): a(f"v_mov_b32 v{WIN+k}, 0")
    a(f"v_mov_b32 v{vOne}, 1")
    a(f"s_mov_b32 s{sScale}, 0x3db504f3")
    a(f"s_mov_b32 s{sL2E}, 0x3fb8aa3b")
    a(f"s_mov_b32 s{sNL2E}, 0xbfb8aa3b")
    a(f"s_mov_b32 s{sSelLo}, 0x01000100")
    a(f"s_mov_b32 s{sSelHi}, 0x03020302")
    srd(R_KA, P_KA, 256 << 20)
    srd(R_VA, P_VA, 256 << 20)
    srd(R_KB, P_KB, 64 << 20)
    srd(R_VB, P_VB, 64 << 20)
    srd(R_OUT, P_OUT, 4096)
    if cfg.tlog:
        a(f"s_lshl_b32 s{sLog}, s{sW}, 3")
        a(f"s_add_u32 s{sLog}, s{sLog}, s{sV}")
        a(f"s_lshl_b32 s{sLog}, s{sLog}, 8")
        a(f"s_add_u32 s{sLog}, s{sLog}, {WS_TLOG}")
    for k in range(3):
        a(f"s_mov_b32 s{R_IK+k}, s{R_KA+k}")
        a(f"s_mov_b32 s{R_IV+k}, s{R_VA+k}")
    a(f"s_mov_b32 s{R_IK+3}, 0x20000")
    a(f"s_mov_b32 s{R_IV+3}, 0x20000")
    c("A: this wave streams piece (stripe j, column wave) of the workgroup's 1 MiB: pair*2M + half*1M + j*32K + wave*4K")
    if cfg.PX == 1:
        a(f"s_lshl_b32 s{sOff}, s{sW}, 20")
    else:
        pair_of(sOff, sT1)
        a(f"s_lshl_b32 s{sOff}, s{sOff}, 21")
        a(f"s_lshr_b32 s{sT1}, s{sW}, 3")
        a(f"s_and_b32 s{sT1}, s{sT1}, 1")
        a(f"s_lshl_b32 s{sT1}, s{sT1}, 20")
        a(f"s_add_u32 s{sOff}, s{sOff}, s{sT1}")
    a(f"s_lshl_b32 s{sT1}, s{sV}, 12")
    a(f"s_add_u32 s{sOff}, s{sOff}, s{sT1}")
    if cfg.rotA:
        a(f"s_mov_b32 s{sAbase}, s{sOff}")
        if cfg.rotA == 1: a(f"s_and_b32 s{sStr}, s{sW}, 31")
        elif cfg.rotA == 2:
            a(f"s_lshr_b32 s{sStr}, s{sW}, 3"); a(f"s_and_b32 s{sStr}, s{sStr}, 31")
        elif cfg.rotA == 3:
            a(f"s_mul_i32 s{sStr}, s{sW}, 5"); a(f"s_and_b32 s{sStr}, s{sStr}, 31")
        elif cfg.rotA == 4:
            a(f"s_and_b32 s{sStr}, s{sW}, 7"); a(f"s_lshl_b32 s{sStr}, s{sStr}, 2")
        elif cfg.rotA == 5:
            a(f"s_lshr_b32 s{sStr}, s{sW}, 3"); a(f"s_and_b32 s{sStr}, s{sStr}, 7"); a(f"s_lshl_b32 s{sStr}, s{sStr}, 2")
        a(f"s_lshl_b32 s{sOff}, s{sStr}, 15")
        a(f"s_add_u32 s{sOff}, s{sOff}, s{sAbase}")
    c("B: column `wave` of group w>>3 (2 MiB, 64 stripes)")
    a(f"s_lshr_b32 s{sBbase}, s{sW}, 3")
    a(f"s_lshl_b32 s{sBbase}, s{sBbase}, 21")
    a(f"s_add_u32 s{sBbase}, s{sBbase}, s{sT1}")
    a(f"v_add_u32 v{vKcur}, s{sOff}, v{vKoff}")
    a(f"v_add_u32 v{vVcur}, s{sOff}, v{vVoff}")
    a(f"v_mov_b32 v{vT}, {L_FLAG}")
    a(f"v_mov_b32 v{vT+1}, 0")
    a(f"ds_write_b32 v{vT}, v{vT+1}")
    if cfg.diag:
        stamp(12)
        a(f"s_sub_u32 s{sT3}, s{sT3}, 4")
        a(f"v_mov_b32 v{vT+1}, s{sT3}")
        a(f"v_mov_b32 v{vT}, s100")
        a(f"buffer_store_dword v{vT}, v{vT+1}, {sr(R_WS,4)}, 0 offen")
    c("q_A partial over this wave's 64 rows.  Younger than wq_A item i: the later items, wq_B (2), wo (4), K/V loads")
    QA0, QA1 = DD, DD + 4
    QB0, QB1 = DD + 8, DD + 12
    nkv = 0
    kvseq = [(0, 0, u) for u in range(4)] + [(0, 1, u) for u in range(4)]
    for i in range(16):
        a(f"s_waitcnt vmcnt({(15 - i) + 6 + nkv})")
        if i == 0: stamp(13)
        sel = sSelLo if i % 2 == 0 else sSelHi
        x = XA + i // 2
        a(f"v_perm_b32 v{PP}, v{x}, v{x}, s{sel}")
        win_from(PP)
        pv(WQA + 4 * i, QA0, QA1, i == 0)
        if i >= cfg.I0 and nkv < 8:
            kv_load(*kvseq[nkv]); nkv += 1
    c("q_B partial over this wave's 8 rows of the slice")
    for i in range(2):
        a(f"s_waitcnt vmcnt({(1 - i) + 4 + nkv})")
        sel = sSelLo if i == 0 else sSelHi
        a(f"v_perm_b32 v{PP}, v{XB}, v{XB}, s{sel}")
        win_from(PP)
        pv(WQB + 4 * i, QB0, QB1, i == 0)
    a(f"s_lshl_b32 s{sT0}, s{sV}, 11")
    a(f"v_add_u32 v{vW1}, s{sT0}, v{vVoff}")
    a(f"ds_write_b128 v{vW1}, {vr(QA0,4)} offset:{L_QA}")
    a(f"ds_write_b128 v{vW1}, {vr(QA1,4)} offset:{L_QA+1024}")
    a(f"ds_write_b128 v{vW1}, {vr(QB0,4)} offset:{L_QBP}")
    a(f"ds_write_b128 v{vW1}, {vr(QB1,4)} offset:{L_QBP+1024}")
    while nkv < 8:
        kv_load(*kvseq[nkv]); nkv += 1
    a("s_waitcnt lgkmcnt(0)")
    stamp(14)
    a("s_barrier")
    c("q_A operand: lane (row, bank, q) sums QA[wave'][m][16*b + 4*row + q] over the 8 waves, rounds to bf16")
    a(f"s_lshl_b32 s{sT0}, s{sB}, 8")
    a(f"v_lshlrev_b32 v{vT}, 6, v{vRow}")
    a(f"v_lshl_add_u32 v{vT}, v{vQ}, 4, v{vT}")
    a(f"v_add_u32 v{vT}, s{sT0}, v{vT}")
    S = TMP
    for vv in range(8):
        for m in range(2):
            a(f"ds_read_b128 {vr(S + 8*vv + 4*m, 4)}, v{vT} offset:{L_QA + vv*2048 + m*1024}")
    adv_off()
    a(f"v_add_u32 v{vKcur}, s{sOff}, v{vKoff}")
    a(f"v_add_u32 v{vVcur}, s{sOff}, v{vVoff}")
    adv_off()
    a("s_waitcnt lgkmcnt(0)")
    tree_sum8(S)
    for k in range(4):
        a(f"v_cvt_pk_bf16_f32 v{QOP+k}, v{S+2*k}, v{S+2*k+1}")
    c("publisher wave: reduce and publish the q_B partial, clear, then stream on with the stores discounted")
    is_role(R_PUB, f"{N}_nopub")
    for vv in range(8):
        for m in range(2):
            a(f"ds_read_b128 {vr(S + 8*vv + 4*m, 4)}, v{vVoff} offset:{L_QBP + vv*2048 + m*1024}")
    a(f"s_lshl_b32 s{sT0}, s{sW}, 11")
    a(f"s_add_u32 s{sT0}, s{sT0}, {WS_QB}")
    a(f"v_lshlrev_b32 v{vT}, 5, v{vC}")
    a(f"v_lshl_add_u32 v{vT}, v{vRow}, 9, v{vT}")
    a(f"v_add_u32 v{vT}, s{sT0}, v{vT}")
    a("s_waitcnt lgkmcnt(0)")
    tree_sum8(S)
    a(f"buffer_store_dwordx4 {vr(S,4)}, v{vT}, {sr(R_WS,4)}, 0 offen sc1")
    a(f"buffer_store_dwordx4 {vr(S+4,4)}, v{vT}, {sr(R_WS,4)}, 0 offen offset:16 sc1")
    c("mark this workgroup's hand-off slots empty (all ones); workgroup 8k zeroes the claim counters of group k")
    for k in range(4): a(f"v_mov_b32 v{PP+k}, -1")
    a(f"v_add_u32 v{vT}, s{sSlot}, v{vVoff}")
    for k in range(4):
        a(f"buffer_store_dwordx4 {vr(PP,4)}, v{vT}, {sr(R_WS,4)}, 0 offen offset:{k*1024} sc1")
    a(f"v_add_u32 v{vT}, 4096, v{vT}")
    a(f"buffer_store_dwordx4 {vr(PP,4)}, v{vT}, {sr(R_WS,4)}, 0 offen sc1")
    a(f"s_and_b32 s{sT0}, s{sW}, 7")
    a(f"s_cmp_eq_u32 s{sT0}, 0")
    a(f"s_cbranch_scc0 {N}_noclr")
    a(f"s_lshl_b32 s{sT0}, s{sW}, 8")
    a(f"s_add_u32 s{sT0}, s{sT0}, {WS_CNT}")
    a(f"v_lshlrev_b32 v{vT}, 8, v{vLane}")
    a(f"v_add_u32 v{vT}, s{sT0}, v{vT}")
    a(f"v_mov_b32 v{vT+1}, 0")
    a("s_mov_b64 exec, 0xff")
    a(f"buffer_store_dword v{vT+1}, v{vT}, {sr(R_WS,4)}, 0 offen sc1")
    a("s_mov_b64 exec, -1")
    a.label(f"{N}_noclr")
    for isV in (0, 1):
        for u in range(4):
            a(f"s_waitcnt vmcnt({cfg.PD - 1 + 7})"); kv_load(1, isV, u)
    a(f"s_branch {N}_t1d")
    a.label(f"{N}_nopub")
    for isV in (0, 1):
        for u in range(4):
            a(f"s_waitcnt vmcnt({cfg.PD-1})"); kv_load(1, isV, u)
    a.label(f"{N}_t1d")
    for k in range(8): a(f"v_mov_b32 v{ACC+k}, 0")
    a(f"v_mov_b32 v{vM}, 0xff7fffff")
    a(f"v_mov_b32 v{vL}, 0")
    stamp(1)

    uid = [0]
    Dcur = [D]
    def issue(st, isV, u, rk, rv):
        D = Dcur[0]
        if rk == R_IK:
            uid[0] += 1
            a(f"s_cbranch_vccnz {N}_f{uid[0]}")
            a(f"s_waitcnt vmcnt({D-1})")
            a.label(f"{N}_f{uid[0]}")
        else:
            a(f"s_waitcnt vmcnt({D-1})")
        kv_load(st, isV, u, rk, rv)
    def diag(u0, u1):
        for cc in range(4):
            for u in (u0, u1):
                d = DD + 4 * u + cc
                qp = f"quad_perm:[{cc},{cc},{cc},{cc}]"
                if cc == 0: a(f"v_mov_b32_dpp v{Y+u}, v{d} {qp} {FULL}")
                else:       a(f"v_add_f32_dpp v{Y+u}, v{d}, v{Y+u} {qp} {FULL}")
    def round4():
        a(f"v_cvt_pk_bf16_f32 v{T0}, v{Y}, v{Y+1}")
        a(f"v_cvt_pk_bf16_f32 v{T0+1}, v{Y+2}, v{Y+3}")
        a(f"v_lshlrev_b32 v{Y}, 16, v{T0}")
        a(f"v_and_b32 v{Y+1}, 0xffff0000, v{T0}")
        a(f"v_lshlrev_b32 v{Y+2}, 16, v{T0+1}")
        a(f"v_and_b32 v{Y+3}, 0xffff0000, v{T0+1}")
    def body(st, rk, rv):
        c(f"--- mini-tile in ring set {st}: 16 keys.  QK^T, online softmax, PV; issues the tile two ahead")
        a("s_waitcnt vmcnt(12)")
        for u in range(4):
            a(f"{MFMA} {vr(DD+4*u,4)}, {vr(kslot(st,u),4)}, {vr(QOP,4)}, 0")
        issue(st, 0, 0, rk, rv)
        diag(0, 1)
        issue(st, 0, 1, rk, rv)
        diag(2, 3)
        round4()
        issue(st, 0, 2, rk, rv)
        for u in range(4): a(f"v_mul_f32 v{Y+u}, s{sScale}, v{Y+u}")
        round4()
        a(f"v_max3_f32 v{T0+2}, v{Y}, v{Y+1}, v{Y+2}")
        a(f"v_max_f32 v{T0+2}, v{T0+2}, v{Y+3}")
        xrow('v_max_f32', T0 + 2, T0 + 3)
        a(f"v_max_f32 v{vMn}, v{vM}, v{T0+2}")
        issue(st, 0, 3, rk, rv)
        a(f"v_sub_f32 v{vAl}, v{vM}, v{vMn}")
        a(f"v_mul_f32 v{vNM}, s{sNL2E}, v{vMn}")
        a(f"v_mul_f32 v{vAl}, s{sL2E}, v{vAl}")
        for u in range(4): a(f"v_fma_f32 v{Y+u}, v{Y+u}, s{sL2E}, v{vNM}")
        a(f"v_exp_f32 v{vAl}, v{vAl}")
        for u in range(4): a(f"v_exp_f32 v{Y+u}, v{Y+u}")
        a(f"v_mov_b32 v{vM}, v{vMn}")
        for h in range(4):
            a(f"v_mov_b32_dpp v{vAT}, v{vAl} row_newbcast:{4*h} row_mask:{hex(1<<h)} bank_mask:0xf")
        a(f"v_fma_f32 v{vL}, v{vL}, v{vAl}, v{Y}")
        for u in range(4): a(f"v_cvt_pk_bf16_f32 v{PP+u}, v{Y+u}, v{Y+u}")
        a(f"v_add_f32 v{T0}, v{Y+1}, v{Y+2}")
        a(f"v_add_f32 v{vL}, v{vL}, v{Y+3}")
        a(f"v_add_f32 v{vL}, v{vL}, v{T0}")
        for k in range(8): a(f"v_mul_f32 v{ACC+k}, v{ACC+k}, v{vAT}")
        a("s_waitcnt vmcnt(12)")
        for u in range(4):
            win_from(PP + u)
            pv(vslot(st, u), ACC, ACC + 4, False)
            issue(st, 1, u, rk, rv)
        tlog()
    def top_static():
        a(f"v_add_u32 v{vKcur}, s{sOff}, v{vKoff}")
        a(f"v_add_u32 v{vVcur}, s{sOff}, v{vVoff}")
        adv_off()
    def sclaim():
        a(f"s_mov_b32 s{sClaim}, 1")
        a(f"s_atomic_add s{sClaim}, s[{P_WS}:{P_WS+1}], s{sCntB} glc")
    def state_switch():
        a("s_nop 7")
        for k in range(8): a(f"v_mov_b32 v{ACCA+k}, v{ACC+k}")
        a(f"v_mov_b32 v{vMA}, v{vM}")
        a(f"v_mov_b32 v{vLA}, v{vL}")
        for k in range(8): a(f"v_mov_b32 v{ACC+k}, 0")
        a(f"v_mov_b32 v{vM}, 0xff7fffff")
        a(f"v_mov_b32 v{vL}, 0")
        for k in range(4): a(f"v_mov_b32 v{QOP+k}, v{QB+k}")
        a(f"s_mov_b32 s{sBst}, 1")
        stamp(2)
    def top_dyn(st):
        lab = f"{N}_d{st}"
        c("next B piece: the rest of the current chunk, else the chunk claimed one tile ago")
        a(f"s_cmp_eq_u32 s{sRem}, 0")
        a(f"s_cbranch_scc1 {lab}_new")
        a(f"s_add_u32 s{sIdx}, s{sIdx}, 1")
        a(f"s_sub_u32 s{sRem}, s{sRem}, 1")
        a.label(f"{lab}_have")
        a(f"s_lshl_b32 s{sT0}, s{sIdx}, 15")
        a(f"s_add_u32 s{sT0}, s{sT0}, s{sBbase}")
        a(f"s_mov_b32 s{sK2}, s{sKc}")
        a(f"s_mov_b32 s{sKc}, 3")
        a(f"s_cmp_eq_u32 s{sRem}, 0")
        a(f"s_cbranch_scc0 {lab}_go2")
        a(f"s_cmp_ge_u32 s{sClaim}, {cfg.stopc}")
        a(f"s_cbranch_scc1 {lab}_skip")
        sclaim()
        a.label(f"{lab}_go2")
        a(f"v_add_u32 v{vKcur}, s{sT0}, v{vKoff}")
        a(f"v_add_u32 v{vVcur}, s{sT0}, v{vVoff}")
        a(f"s_cmp_eq_u32 s{sK0}, 2")
        a(f"s_cbranch_scc1 {lab}_sw")
        a.label(f"{lab}_body")
    def top_dyn_cold(st):
        lab = f"{N}_d{st}"
        a.label(f"{lab}_new")
        c("chunks of a column (64 stripes, 8 waves): claims 0..7 -> 5 stripes, 8..15 -> 2, 16..23 -> 1")
        a("s_waitcnt lgkmcnt(0)")
        a(f"s_mul_i32 s{sIdx}, s{sClaim}, 5")
        a(f"s_mov_b32 s{sRem}, 4")
        a(f"s_cmp_lt_u32 s{sClaim}, 8")
        a(f"s_cbranch_scc1 {lab}_have")
        a(f"s_lshl_b32 s{sIdx}, s{sClaim}, 1")
        a(f"s_add_u32 s{sIdx}, s{sIdx}, 24")
        a(f"s_mov_b32 s{sRem}, 1")
        a(f"s_cmp_lt_u32 s{sClaim}, 16")
        a(f"s_cbranch_scc1 {lab}_have")
        a(f"s_add_u32 s{sIdx}, s{sClaim}, 40")
        a(f"s_mov_b32 s{sRem}, 0")
        a(f"s_cmp_lt_u32 s{sClaim}, 24")
        a(f"s_cbranch_scc1 {lab}_have")
        c("column exhausted: out-of-range (zero-fill) dummy tile, no throttle, no further claims")
        a(f"s_mov_b32 s{sT0}, 0x7f000000")
        a(f"s_mov_b32 s{sK2}, 0")
        a("s_mov_b64 vcc, -1")
        a(f"s_branch {lab}_go2")
        a.label(f"{lab}_skip")
        c("a wave that got one of the last four pieces does not claim again; every wave makes exactly one claim >= 20,")
        c("so the eight such claims hand out pieces 20..23")
        a(f"s_mov_b32 s{sClaim}, 0x7fffffff")
        a(f"s_branch {lab}_go2")
        a.label(f"{lab}_sw")
        state_switch()
        a("s_nop 1")
        a(f"s_branch {lab}_body")

    a(f"s_mov_b32 s{sJ}, 0")
    if cfg.D0:
        c("first tiles with a wider window: the workgroup catches up the time its q projection took")
        is_role(R_PUB, f"{N}_j0r")
        a("s_waitcnt vmcnt(8)")
        a(f"s_mov_b32 s{sT0}, 1")
        a(f"s_atomic_add s{sT0}, s[{P_DBG}:{P_DBG+1}], 0x0")
        a("s_waitcnt lgkmcnt(0)")
        stamp(19)
        a.label(f"{N}_j0r")
        Dcur[0] = cfg.D0
        for jj in range(0, cfg.N0, 2):
            top_static(); body(0, R_KA, R_VA)
            top_static(); body(1, R_KA, R_VA)
        Dcur[0] = D
        a(f"s_mov_b32 s{sJ}, {cfg.N0}")
        assert cfg.N0 == 2
    a.label(f"{N}_sloop")
    a(f"s_cmp_eq_u32 s{sJ}, 0")
    a(f"s_cbranch_scc1 {N}_job0")
    a(f"s_cmp_eq_u32 s{sJ}, 2")
    a(f"s_cbranch_scc1 {N}_job2")
    a(f"s_cmp_eq_u32 s{sJ}, {cfg.J_POLL}")
    a(f"s_cbranch_scc1 {N}_jobp")
    a(f"s_cmp_eq_u32 s{sJ}, {cfg.J_POLL + 2}")
    a(f"s_cbranch_scc1 {N}_jobg")
    if cfg.warm:
        a(f"s_cmp_eq_u32 s{sJ}, 16")
        a(f"s_cbranch_scc1 {N}_jobw")
    a.label(f"{N}_jobret")
    top_static(); body(0, R_KA, R_VA)
    top_static(); body(1, R_KA, R_VA)
    a(f"s_add_u32 s{sJ}, s{sJ}, 2")
    a(f"s_cmp_lt_u32 s{sJ}, {NS-4}")
    a(f"s_cbranch_scc1 {N}_sloop")
    c("address registers of the tail, computed while streaming")
    a(f"s_lshl_b32 s{sT0}, s{sV}, 5")
    a(f"v_lshlrev_b32 v{vW2}, 3, v{vBank}")
    a(f"v_add_u32 v{vW2}, s{sT0}, v{vW2}")
    vTid, vI32, vHH = T0, T0 + 1, T0 + 2
    a(f"s_lshl_b32 s{sT0}, s{sV}, 6")
    a(f"v_add_u32 v{vTid}, s{sT0}, v{vLane}")
    a(f"v_and_b32 v{vI32}, 31, v{vTid}")
    a(f"v_lshrrev_b32 v{vHH}, 5, v{vTid}")
    a(f"v_and_b32 v{vHH}, 3, v{vHH}")
    a(f"v_and_b32 v{vT}, 1, v{vI32}")
    a(f"v_lshlrev_b32 v{vT}, 10, v{vT}")
    a(f"v_lshrrev_b32 v{vT+1}, 1, v{vI32}")
    a(f"v_lshl_add_u32 v{vT+1}, v{vHH}, 4, v{vT+1}")
    a(f"v_lshl_add_u32 v{vLA_}, v{vT+1}, 4, v{vT}")
    a(f"s_cmp_eq_u32 s{sV}, 2")
    for (sr_, va, vb) in ((sT0, L_AM, L_BM), (sT1, L_MLA, L_MLB), (sT2, O_OA, O_OB), (sT3, O_MLA, O_MLB)):
        a(f"s_mov_b32 s{sr_}, {vb}")
        a(f"s_cmov_b32 s{sr_}, {va}")
    a(f"s_cselect_b32 s{sMrg+1}, 0, -1")
    a(f"s_mov_b32 s{sMrg}, -1")
    a(f"v_add_u32 v{vRA}, s{sT0}, v{vLA_}")
    a(f"v_lshlrev_b32 v{vML}, 3, v{vHH}")
    a(f"v_add_u32 v{vGM}, s{sT3}, v{vML}")
    a(f"v_add_u32 v{vGM}, s{sSlot}, v{vGM}")
    a(f"v_add_u32 v{vML}, s{sT1}, v{vML}")
    a(f"v_lshlrev_b32 v{vGy}, 9, v{vHH}")
    a(f"v_lshl_add_u32 v{vGy}, v{vI32}, 4, v{vGy}")
    a(f"v_add_u32 v{vGy}, s{sSlot}, v{vGy}")
    a(f"v_add_u32 v{vG}, s{sT2}, v{vGy}")
    a(f"v_cmp_eq_u32 s[{sMl0}:{sMl0+1}], 0, v{vI32}")
    a(f"s_and_b64 s[{sMl0}:{sMl0+1}], s[{sMl0}:{sMl0+1}], s[{sMrg}:{sMrg+1}]")
    a(f"s_and_b32 s{sT0}, s{sW}, 7")
    a(f"s_lshr_b32 s{sT1}, s{sW}, 3")
    a(f"s_and_b32 s{sT1}, s{sT1}, 3")
    a(f"s_lshr_b32 s{sT3}, s{sW}, 5")
    a(f"s_and_b32 s{sT3}, s{sT3}, 1")
    a(f"s_lshl_b32 s{sT3}, s{sT3}, 8")
    a(f"s_lshl_b32 s{sT2}, s{sT0}, 3")
    a(f"s_add_u32 s{sT2}, s{sT2}, s{sV}")
    a(f"v_lshlrev_b32 v{vT}, 6, v{vRow}")
    a(f"v_add_u32 v{vBm}, s{sT2}, v{vT}")
    a(f"v_lshlrev_b32 v{vBm}, 13, v{vBm}")
    a(f"s_lshl_b32 s{sT2}, s{sT1}, 9")
    a(f"s_add_u32 s{sT2}, s{sT2}, s{sT3}")
    a(f"s_add_u32 s{sT2}, s{sT2}, {O_OB}")
    a(f"v_lshl_add_u32 v{vBo}, v{vC}, 4, v{vBm}")
    a(f"v_add_u32 v{vBo}, s{sT2}, v{vBo}")
    a(f"s_lshl_b32 s{sT2}, s{sT1}, 3")
    a(f"s_add_u32 s{sT2}, s{sT2}, {O_MLB}")
    a(f"v_add_u32 v{vBm}, s{sT2}, v{vBm}")
    a(f"s_lshl_b32 s{sT2}, s{sT0}, 2")
    a(f"s_add_u32 s{sT2}, s{sT2}, s{sT1}")
    if cfg.PX == 1:
        a(f"s_lshl_b32 s{sT2}, s{sT2}, 1")
        a(f"s_add_u32 s{sT2}, s{sT2}, s{sV}")
    else:
        n = {8: 0, 16: 1, 32: 2}[cfg.PX]
        a(f"s_lshr_b32 s{sIdx}, s{sT2}, {n}")
        a(f"s_and_b32 s{sIdx}, s{sIdx}, 7")
        a(f"s_and_b32 s{sJ}, s{sT2}, {(1 << n) - 1}")
        a(f"s_lshl_b32 s{sJ}, s{sJ}, 4")
        a(f"s_add_u32 s{sIdx}, s{sIdx}, s{sJ}")
        a(f"s_lshr_b32 s{sT2}, s{sT2}, {3 + n}")
        a(f"s_lshl_b32 s{sT2}, s{sT2}, {4 + n}")
        a(f"s_add_u32 s{sT2}, s{sT2}, s{sIdx}")
        a(f"s_lshl_b32 s{sIdx}, s{sV}, 3")
        a(f"s_add_u32 s{sT2}, s{sT2}, s{sIdx}")
    a(f"v_add_u32 v{vAm}, s{sT2}, v{vT}")
    a(f"v_lshlrev_b32 v{vAm}, 13, v{vAm}")
    a(f"s_add_u32 s{sT3}, s{sT3}, {O_OA}")
    a(f"v_lshl_add_u32 v{vAo}, v{vC}, 4, v{vAm}")
    a(f"v_add_u32 v{vAo}, s{sT3}, v{vAo}")
    a(f"v_add_u32 v{vAm}, {O_MLA}, v{vAm}")
    a(f"s_lshl_b32 s{sT2}, s{sV}, 5")
    a(f"v_lshlrev_b32 v{vS2r}, 3, v{vRow}")
    a(f"v_add_u32 v{vS2r}, s{sT2}, v{vS2r}")
    vS, vMm = T0, T0 + 1
    a(f"v_lshrrev_b32 v{vS}, 1, v{vLane}")
    a(f"v_and_b32 v{vS}, 7, v{vS}")
    a(f"v_and_b32 v{vMm}, 1, v{vLane}")
    a(f"v_lshlrev_b32 v{vR1}, 10, v{vS}")
    a(f"v_lshl_add_u32 v{vR1}, v{vRow}, 8, v{vR1}")
    a(f"v_lshl_add_u32 v{vR1}, v{vMm}, 4, v{vR1}")
    a(f"v_add_u32 v{vR1}, s{sT2}, v{vR1}")
    a(f"v_lshlrev_b32 v{vR2}, 5, v{vS}")
    a(f"v_lshl_add_u32 v{vR2}, v{vRow}, 3, v{vR2}")
    a(f"v_cmp_gt_u32 s[{sS2}:{sS2+1}], 2, v{vS}")
    a(f"s_lshl_b32 s{sT0}, s{sV}, 8")
    a(f"v_lshlrev_b32 v{vO1}, 5, v{vRow}")
    a(f"v_lshl_add_u32 v{vO1}, v{vMm}, 4, v{vO1}")
    a(f"v_add_u32 v{vO1}, s{sT0}, v{vO1}")
    a(f"v_lshlrev_b32 v{vO2}, 5, v{vBank}")
    a(f"v_lshl_add_u32 v{vO2}, v{vRow}, 2, v{vO2}")
    a(f"v_add_u32 v{vO2}, s{sT0}, v{vO2}")
    a(f"s_and_b32 s{sT0}, s{sW}, 7")
    a(f"s_lshr_b32 s{sT1}, s{sW}, 3")
    a(f"s_and_b32 s{sT1}, s{sT1}, 7")
    a(f"s_lshr_b32 s{sT2}, s{sT0}, 1")
    a(f"s_lshl_b32 s{sT2}, s{sT2}, 19")
    a(f"s_lshl_b32 s{sT3}, s{sB}, 9")
    a(f"s_add_u32 s{sT2}, s{sT2}, s{sT3}")
    a(f"s_and_b32 s{sT3}, s{sT0}, 1")
    a(f"s_lshl_b32 s{sT3}, s{sT3}, 8")
    a(f"s_add_u32 s{sT2}, s{sT2}, s{sT3}")
    a(f"s_lshl_b32 s{sT3}, s{sT1}, 5")
    a(f"s_add_u32 s{sT2}, s{sT2}, s{sT3}")
    a(f"v_lshlrev_b32 v{vF}, 13, v{vLane}")
    a(f"v_add_u32 v{vF}, s{sT2}, v{vF}")
    a(f"v_and_b32 v{vT}, 1, v{vRow}")
    a(f"v_lshlrev_b32 v{vT}, 1, v{vT}")
    a(f"v_lshrrev_b32 v{vT+1}, 1, v{vRow}")
    a(f"v_add_u32 v{vT}, v{vT}, v{vT+1}")
    a(f"v_lshlrev_b32 v{vT}, 1, v{vT}")
    a(f"s_lshl_b32 s{sT2}, s{sB}, 10")
    a(f"s_lshl_b32 s{sT0}, s{sT0}, 7")
    a(f"s_lshl_b32 s{sT1}, s{sT1}, 4")
    a(f"s_add_u32 s{sT2}, s{sT2}, s{sT0}")
    a(f"s_add_u32 s{sT2}, s{sT2}, s{sT1}")
    a(f"v_add_u32 v{vOut}, s{sT2}, v{vT}")
    a(f"s_and_b32 s{sT0}, s{sW}, 0xf8")
    a(f"s_add_u32 s{sT0}, s{sT0}, s{sV}")
    a(f"s_lshl_b32 s{sT0}, s{sT0}, 8")
    a(f"s_add_u32 s{sCntB}, s{sT0}, {WS_CNT}")
    c("the q_B operand must be in LDS (its flag also says that every workgroup has cleared its slots and counters)")
    a(f"s_mov_b32 s{sSpin}, 0")
    a(f"v_mov_b32 v{vT}, {L_FLAG}")
    a.label(f"{N}_fl")
    a(f"ds_read_b32 v{vT+1}, v{vT}")
    a("s_waitcnt lgkmcnt(0)")
    a(f"v_readfirstlane_b32 s{sT0}, v{vT+1}")
    a(f"s_cmp_eq_u32 s{sT0}, 1")
    a(f"s_cbranch_scc1 {N}_fld")
    spin_tail(f"{N}_fl", f"{N}_fld")
    a.label(f"{N}_fld")
    a(f"ds_read_b128 {vr(QB,4)}, v{vVoff} offset:{L_QBOP}")
    a("s_waitcnt lgkmcnt(0)")
    top_static(); body(0, R_KA, R_VA)
    top_static(); sclaim(); body(1, R_KA, R_VA)
    c("from here on the issue side runs on branch B; kinds: 1 = A tile, 2 = first B tile, 3 = B tile, 0 = none")
    for k in range(3):
        a(f"s_mov_b32 s{R_IK+k}, s{R_KB+k}")
        a(f"s_mov_b32 s{R_IV+k}, s{R_VB+k}")
    a(f"s_mov_b32 s{sKc}, 2")
    a(f"s_mov_b32 s{sRem}, 0")
    a(f"s_mov_b32 s{sK0}, 1")
    a(f"s_mov_b32 s{sK1}, 1")
    a(f"s_mov_b32 s{sBst}, 0")
    a("s_mov_b64 vcc, 0")
    a.label(f"{N}_dloop")
    for st in range(2):
        top_dyn(st); body(st, R_IK, R_IV)
        a(f"s_mov_b32 s{sK0}, s{sK1}")
        a(f"s_mov_b32 s{sK1}, s{sK2}")
        a(f"s_cmp_eq_u32 s{sK0}, 0")
        a(f"s_cbranch_scc1 {N}_dend")
    a(f"s_branch {N}_dloop")
    for st in range(2): top_dyn_cold(st)
    a.label(f"{N}_dend")
    a(f"s_cmp_eq_u32 s{sBst}, 0")
    a(f"s_cbranch_scc0 {N}_dend2")
    state_switch()
    a.label(f"{N}_dend2")
    a("s_nop 7")
    stamp(3)

    c("=== tail: per-wave softmax states to LDS")
    a(f"ds_write_b128 v{vW1}, {vr(ACC,4)} offset:{L_BM}")
    a(f"ds_write_b128 v{vW1}, {vr(ACC+4,4)} offset:{L_BM+1024}")
    a(f"ds_write_b128 v{vW1}, {vr(ACCA,4)} offset:{L_AM}")
    a(f"ds_write_b128 v{vW1}, {vr(ACCA+4,4)} offset:{L_AM+1024}")
    for perm in ('v_permlane16_swap_b32', 'v_permlane32_swap_b32'):
        a(f"v_mov_b32 v{T0}, v{vL}")
        a(f"v_mov_b32 v{T0+1}, v{vLA}")
        a(f"{perm} v{vL}, v{T0}")
        a(f"{perm} v{vLA}, v{T0+1}")
        a(f"v_add_f32 v{vL}, v{vL}, v{T0}")
        a(f"v_add_f32 v{vLA}, v{vLA}, v{T0+1}")
    a(f"ds_write_b64 v{vW2}, {vr(vM,2)} offset:{L_MLB}")
    a(f"ds_write_b64 v{vW2}, {vr(vMA,2)} offset:{L_MLA}")
    a("s_waitcnt lgkmcnt(0)")
    a("s_barrier")
    stamp(4)
    c("waves 0,1 merge the four B heads, wave 2 (32 lanes) merges A; results are published (slots were all-ones)")
    a(f"s_cmp_lt_u32 s{sV}, 3")
    a(f"s_cbranch_scc0 {N}_nomerge")
    a(f"s_mov_b64 exec, s[{sMrg}:{sMrg+1}]")
    MLr, AC = 172, 188
    for vv in range(8):
        a(f"ds_read_b64 {vr(MLr+2*vv,2)}, v{vML} offset:{vv*32}")
    for vv in range(8):
        a(f"ds_read_b128 {vr(AC+4*vv,4)}, v{vRA} offset:{vv*2048}")
    a("s_waitcnt lgkmcnt(8)")
    Ms = 220
    a(f"v_max3_f32 v{Ms}, v{MLr}, v{MLr+2}, v{MLr+4}")
    a(f"v_max3_f32 v{Ms+1}, v{MLr+6}, v{MLr+8}, v{MLr+10}")
    a(f"v_max3_f32 v{Ms}, v{Ms}, v{MLr+12}, v{MLr+14}")
    a(f"v_max_f32 v{Ms}, v{Ms}, v{Ms+1}")
    for vv in range(8): a(f"v_sub_f32 v{MLr+2*vv}, v{MLr+2*vv}, v{Ms}")
    for vv in range(8): a(f"v_mul_f32 v{MLr+2*vv}, s{sL2E}, v{MLr+2*vv}")
    for vv in range(8): a(f"v_exp_f32 v{MLr+2*vv}, v{MLr+2*vv}")
    a("s_waitcnt lgkmcnt(0)")
    O4 = 224
    for r in range(4): a(f"v_mul_f32 v{O4+r}, v{MLr}, v{AC+r}")
    for vv in range(1, 8):
        for r in range(4): a(f"v_fma_f32 v{O4+r}, v{MLr+2*vv}, v{AC+4*vv+r}, v{O4+r}")
    a(f"buffer_store_dwordx4 {vr(O4,4)}, v{vG}, {sr(R_WS,4)}, 0 offen sc1")
    a(f"v_mul_f32 v{Ms+1}, v{MLr}, v{MLr+1}")
    for vv in range(1, 8): a(f"v_fma_f32 v{Ms+1}, v{MLr+2*vv}, v{MLr+2*vv+1}, v{Ms+1}")
    a(f"s_mov_b64 exec, s[{sMl0}:{sMl0+1}]")
    a(f"buffer_store_dwordx2 {vr(Ms,2)}, v{vGM}, {sr(R_WS,4)}, 0 offen sc1")
    a("s_mov_b64 exec, -1")
    stamp(5)
    a("s_nop 7")
    a.label(f"{N}_nomerge")

    c("=== hand-off 1: wave v fetches split v of the four batches (B) and, for v < 2, half v (A); any all-ones word = not yet")
    OB4, MLB2, OA4, MLA2 = 180, 184, 188, 192
    PB = RING
    a(f"s_lshl_b32 s{sT2}, s{sV}, 10")
    a(f"v_add_u32 v{T0}, s{sT2}, v{vVoff}")
    a(f"s_mov_b32 s{sSpin}, 0")
    a("s_waitcnt vmcnt(0)")
    for k in range(4): a(f"v_mov_b32 v{PB+8+k}, 0")
    a(f"v_mov_b32 v{PB+12}, 0")
    a(f"v_mov_b32 v{PB+13}, 0")
    if cfg.natwait:
        c("polling starts once this workgroup's own partials are acknowledged")
        a("s_barrier")
    elif cfg.pre1: a(f"s_sleep {cfg.pre1}")
    a.label(f"{N}_p1")
    a(f"buffer_load_dwordx4 {vr(PB,4)}, v{vBo}, {sr(R_WS,4)}, 0 offen sc1")
    a(f"buffer_load_dwordx2 {vr(PB+4,2)}, v{vBm}, {sr(R_WS,4)}, 0 offen sc1")
    a(f"s_cmp_lt_u32 s{sV}, 2")
    a(f"s_cbranch_scc0 {N}_p1n")
    a(f"buffer_load_dwordx4 {vr(PB+8,4)}, v{vAo}, {sr(R_WS,4)}, 0 offen sc1")
    a(f"buffer_load_dwordx2 {vr(PB+12,2)}, v{vAm}, {sr(R_WS,4)}, 0 offen sc1")
    a.label(f"{N}_p1n")
    a("s_waitcnt vmcnt(0)")
    a(f"v_max3_u32 v{vT}, v{PB}, v{PB+1}, v{PB+2}")
    a(f"v_max3_u32 v{vT+1}, v{PB+3}, v{PB+4}, v{PB+5}")
    a(f"v_max3_u32 v{vT}, v{vT}, v{PB+8}, v{PB+9}")
    a(f"v_max3_u32 v{vT+1}, v{vT+1}, v{PB+10}, v{PB+11}")
    a(f"v_max3_u32 v{vT}, v{vT}, v{PB+12}, v{PB+13}")
    a(f"v_max_u32 v{vT}, v{vT}, v{vT+1}")
    a(f"v_cmp_eq_u32 vcc, -1, v{vT}")
    a("s_cmp_eq_u64 vcc, 0")
    a(f"s_cbranch_scc1 {N}_p1d")
    spin_tail(f"{N}_p1", f"{N}_p1d", cfg.sleep1)
    a.label(f"{N}_p1d")
    a(f"ds_write_b128 v{T0}, {vr(PB,4)} offset:{L_G1B}")
    a(f"ds_write_b64 v{vS2r}, {vr(PB+4,2)} offset:{L_G1MB}")
    a(f"s_cmp_lt_u32 s{sV}, 2")
    a(f"s_cbranch_scc0 {N}_g1n")
    a(f"ds_write_b128 v{T0}, {vr(PB+8,4)} offset:{L_G1A}")
    a(f"ds_write_b64 v{vS2r}, {vr(PB+12,2)} offset:{L_G1MA}")
    a.label(f"{N}_g1n")
    stamp(6)
    for k in range(4): a(f"v_mov_b32 v{OA4+k}, 0")
    a(f"v_mov_b32 v{MLA2}, 0xff7fffff")
    a(f"v_mov_b32 v{MLA2+1}, 0")
    a("s_waitcnt lgkmcnt(0)")
    a("s_barrier")
    c("each wave takes its 8 dims: lane (row = batch, split = (lane>>1)&7, m = lane&1); softmax-combine the splits")
    a(f"ds_read_b128 {vr(OB4,4)}, v{vR1} offset:{L_G1B}")
    a(f"ds_read_b64 {vr(MLB2,2)}, v{vR2} offset:{L_G1MB}")
    a(f"s_mov_b64 exec, s[{sS2}:{sS2+1}]")
    a(f"ds_read_b128 {vr(OA4,4)}, v{vR1} offset:{L_G1A}")
    a(f"ds_read_b64 {vr(MLA2,2)}, v{vR2} offset:{L_G1MA}")
    a("s_mov_b64 exec, -1")
    GG = 204
    a(f"v_lshlrev_b32 v{vT}, 3, v{vRow}")
    a(f"ds_read_b64 {vr(GG,2)}, v{vT} offset:{L_G}")
    a("s_waitcnt lgkmcnt(0)")
    pairs = ((OB4, MLB2, 196, 197), (OA4, MLA2, 198, 199))
    for (o4, ml, Mx, sc) in pairs: a(f"v_max_f32_dpp v{Mx}, v{ml}, v{ml} row_ror:8 {FULL}")
    for n in (4, 2):
        for (o4, ml, Mx, sc) in pairs: a(f"v_max_f32_dpp v{Mx}, v{Mx}, v{Mx} row_ror:{n} {FULL}")
    for (o4, ml, Mx, sc) in pairs: a(f"v_sub_f32 v{sc}, v{ml}, v{Mx}")
    for (o4, ml, Mx, sc) in pairs: a(f"v_mul_f32 v{sc}, s{sL2E}, v{sc}")
    for (o4, ml, Mx, sc) in pairs: a(f"v_exp_f32 v{sc}, v{sc}")
    for (o4, ml, Mx, sc) in pairs: a(f"v_mul_f32 v{ml+1}, v{ml+1}, v{sc}")
    for (o4, ml, Mx, sc) in pairs:
        for r in range(4): a(f"v_mul_f32 v{o4+r}, v{o4+r}, v{sc}")
    for n in (8, 4, 2):
        for (o4, ml, Mx, sc) in pairs:
            for r in [ml + 1] + [o4 + k for k in range(4)]:
                a(f"v_add_f32_dpp v{r}, v{r}, v{r} row_ror:{n} {FULL}")
    for (o4, ml, Mx, sc) in pairs: a(f"v_rcp_f32 v{sc}, v{ml+1}")
    for (o4, ml, Mx, sc) in reversed(pairs):
        for r in range(4): a(f"v_mul_f32 v{o4+r}, v{o4+r}, v{sc}")
    a(f"ds_write_b128 v{vO1}, {vr(OA4,4)} offset:{L_OT}")
    a(f"ds_write_b128 v{vO1}, {vr(OB4,4)} offset:{L_OT+128}")
    XO = 200
    a("s_waitcnt lgkmcnt(0)")
    a(f"ds_read_b32 v{XO}, v{vO2} offset:{L_OT}")
    a(f"ds_read_b32 v{XO+1}, v{vO2} offset:{L_OT+16}")
    a(f"ds_read_b32 v{XO+2}, v{vO2} offset:{L_OT+128}")
    a(f"ds_read_b32 v{XO+3}, v{vO2} offset:{L_OT+144}")
    a("s_waitcnt lgkmcnt(0)")
    for k in range(4): a(f"v_cvt_pk_bf16_f32 v{XO+k}, v{XO+k}, v{XO+k}")
    c("o (bf16) times the prefetched wo rows, gate mix, partial y to LDS")
    YA, YB = DD, DD + 8
    for k, (wo, acc) in enumerate(((WOA, YA), (WOB, YB), (WOA + 4, YA), (WOB + 4, YB))):
        win_from(XO + (0, 2, 1, 3)[k])
        pv(wo, acc, acc + 4, k < 2)
    for k in range(8): a(f"v_mul_f32 v{YA+k}, v{YA+k}, v{GG}")
    for k in range(8): a(f"v_fma_f32 v{YA+k}, v{YB+k}, v{GG+1}, v{YA+k}")
    a(f"ds_write_b128 v{vW1}, {vr(YA,4)} offset:{L_YP}")
    a(f"ds_write_b128 v{vW1}, {vr(YA+4,4)} offset:{L_YP+1024}")
    a("s_waitcnt lgkmcnt(0)")
    a("s_barrier")
    stamp(7)
    c("waves 0,1: sum the 8 partial y and publish; final reduction of 8 output columns by one wave; the others are done")
    a(f"s_cmp_lt_u32 s{sV}, 2")
    a(f"s_cbranch_scc0 {N}_noy")
    for vv in range(8):
        a(f"ds_read_b128 {vr(AC+4*vv,4)}, v{vLA_} offset:{L_YP + vv*2048}")
    for step in (4, 2, 1):
        if step == 4: a("s_waitcnt lgkmcnt(0)")
        for g in range(step):
            for r in range(4):
                a(f"v_add_f32 v{AC+4*g+r}, v{AC+4*g+r}, v{AC+4*(g+step)+r}")
    a(f"buffer_store_dwordx4 {vr(AC,4)}, v{vGy}, {sr(R_WS,4)}, 0 offen offset:{O_Y} sc1")
    stamp(8)
    if cfg.natwait:
        a(f"s_cmp_eq_u32 s{sV}, 0")
        a(f"s_cbranch_scc0 {N}_done")
        c("wave 0 goes on to the final reduction once its own part of y is acknowledged")
        a("s_waitcnt vmcnt(0)")
        a(f"s_branch {N}_fin")
        a.label(f"{N}_noy")
        a(f"s_branch {N}_done")
        a.label(f"{N}_fin")
    else:
        a(f"s_branch {N}_done")
        a.label(f"{N}_noy")
        a(f"s_cmp_eq_u32 s{sV}, 2")
        a(f"s_cbranch_scc0 {N}_done")
    c("=== hand-off 2: lane i fetches 8 columns of unit 64*cg + i")
    F = 180
    a(f"s_mov_b32 s{sSpin}, 0")
    if cfg.pre2 and not cfg.natwait: a(f"s_sleep {cfg.pre2}")
    a.label(f"{N}_p2")
    a(f"buffer_load_dwordx4 {vr(F,4)}, v{vF}, {sr(R_WS,4)}, 0 offen offset:{O_Y} sc1")
    a(f"buffer_load_dwordx4 {vr(F+4,4)}, v{vF}, {sr(R_WS,4)}, 0 offen offset:{O_Y+16} sc1")
    a("s_waitcnt vmcnt(0)")
    a(f"v_max3_u32 v{vT}, v{F}, v{F+1}, v{F+2}")
    a(f"v_max3_u32 v{vT+1}, v{F+3}, v{F+4}, v{F+5}")
    a(f"v_max3_u32 v{vT}, v{vT}, v{F+6}, v{F+7}")
    a(f"v_max_u32 v{vT}, v{vT}, v{vT+1}")
    a(f"v_cmp_eq_u32 vcc, -1, v{vT}")
    a("s_cmp_eq_u64 vcc, 0")
    a(f"s_cbranch_scc1 {N}_p2d")
    spin_tail(f"{N}_p2", f"{N}_p2d", cfg.sleep2)
    a.label(f"{N}_p2d")
    stamp(9)
    for k in range(4): a(f"v_permlane32_swap_b32 v{F+2*k}, v{F+2*k+1}")
    for k in range(4): a(f"v_add_f32 v{F+2*k}, v{F+2*k}, v{F+2*k+1}")
    a(f"v_permlane16_swap_b32 v{F}, v{F+2}")
    a(f"v_permlane16_swap_b32 v{F+4}, v{F+6}")
    a(f"v_add_f32 v{F}, v{F}, v{F+2}")
    a(f"v_add_f32 v{F+4}, v{F+4}, v{F+6}")
    for n in (8, 4, 2, 1):
        a(f"v_add_f32_dpp v{F}, v{F}, v{F} row_ror:{n} {FULL}")
        a(f"v_add_f32_dpp v{F+4}, v{F+4}, v{F+4} row_ror:{n} {FULL}")
    a(f"v_cvt_pk_bf16_f32 v{F}, v{F}, v{F+4}")
    a("s_mov_b32 exec_lo, 0x00010001")
    a("s_mov_b32 exec_hi, 0x00010001")
    a(f"buffer_store_short v{F}, v{vOut}, {sr(R_OUT,4)}, 0 offen {cfg.outfl}".rstrip())
    a(f"buffer_store_short_d16_hi v{F}, v{vOut}, {sr(R_OUT,4)}, 0 offen offset:8 {cfg.outfl}".rstrip())
    a("s_mov_b64 exec, -1")
    stamp(10)
    a(f"s_branch {N}_done")

    a.label(f"{N}_job0")
    c("publisher: its clears and q_B partial are older than its last 8 loads, so they are complete: count this workgroup in")
    is_role(R_PUB, f"{N}_jobret")
    a("s_waitcnt vmcnt(8)")
    a(f"s_mov_b32 s{sT0}, 1")
    a(f"s_atomic_add s{sT0}, s[{P_DBG}:{P_DBG+1}], 0x0")
    a("s_waitcnt lgkmcnt(0)")
    stamp(19)
    a(f"s_branch {N}_jobret")
    a.label(f"{N}_job2")
    c("gate wave: g = bf16(sigmoid(bf16(sum bf16(x*gate_w)))), 1-g in bf16 -> LDS")
    is_role(R_GATE, f"{N}_jobret")
    GX, GW = TMP, TMP + 16
    a(f"v_lshlrev_b32 v{vT+1}, 6, v{vC}")
    a(f"v_lshl_add_u32 v{vT}, v{vRow}, 10, v{vT+1}")
    for k in range(4):
        a(f"buffer_load_dwordx4 {vr(GX+4*k,4)}, v{vT}, {sr(R_X,4)}, 0 offen offset:{16*k}")
        a(f"buffer_load_dwordx4 {vr(GW+4*k,4)}, v{vT+1}, {sr(R_GW,4)}, 0 offen offset:{16*k}")
    a("s_waitcnt vmcnt(0)")
    z, t0, t1, t2, t3 = TMP + 32, TMP + 33, TMP + 34, TMP + 35, TMP + 36
    a(f"v_mov_b32 v{z}, 0")
    for k in range(16):
        a(f"v_lshlrev_b32 v{t0}, 16, v{GX+k}")
        a(f"v_lshlrev_b32 v{t1}, 16, v{GW+k}")
        a(f"v_and_b32 v{t2}, 0xffff0000, v{GX+k}")
        a(f"v_and_b32 v{t3}, 0xffff0000, v{GW+k}")
        a(f"v_mul_f32 v{t0}, v{t0}, v{t1}")
        a(f"v_mul_f32 v{t2}, v{t2}, v{t3}")
        a(f"v_cvt_pk_bf16_f32 v{t0}, v{t0}, v{t2}")
        a(f"v_lshlrev_b32 v{t1}, 16, v{t0}")
        a(f"v_and_b32 v{t0}, 0xffff0000, v{t0}")
        a(f"v_add_f32 v{z}, v{z}, v{t1}")
        a(f"v_add_f32 v{z}, v{z}, v{t0}")
    for n in (8, 4, 2, 1):
        a(f"v_add_f32_dpp v{z}, v{z}, v{z} row_ror:{n} {FULL}")
    a(f"v_cvt_pk_bf16_f32 v{z}, v{z}, v{z}")
    a(f"v_and_b32 v{z}, 0xffff0000, v{z}")
    a(f"v_mul_f32 v{z}, s{sNL2E}, v{z}")
    a(f"v_exp_f32 v{z}, v{z}")
    a(f"v_add_f32 v{z}, 1.0, v{z}")
    a(f"v_rcp_f32 v{z}, v{z}")
    g0 = TMP + 38
    a(f"v_cvt_pk_bf16_f32 v{g0}, v{z}, v{z}")
    a(f"v_and_b32 v{g0}, 0xffff0000, v{g0}")
    a(f"v_sub_f32 v{g0+1}, 1.0, v{g0}")
    a(f"v_cvt_pk_bf16_f32 v{g0+1}, v{g0+1}, v{g0+1}")
    a(f"v_and_b32 v{g0+1}, 0xffff0000, v{g0+1}")
    a(f"v_lshlrev_b32 v{vT}, 3, v{vRow}")
    a(f"ds_write_b64 v{vT}, {vr(g0,2)} offset:{L_G}")
    a("s_waitcnt lgkmcnt(0)")
    a("s_nop 7")
    a(f"s_branch {N}_jobret")
    if cfg.warm:
        a.label(f"{N}_jobw")
        c("one wave touches the pages that are first needed late (output, branch-B K/V) so that their translation is cached")
        is_role(R_GATE, f"{N}_jobret")
        a("s_mov_b64 exec, 1")
        if cfg.warm & 1:
            a(f"s_lshl_b32 s{sT0}, s{sW}, 4")
            a(f"v_mov_b32 v{vT}, s{sT0}")
            a(f"buffer_load_dword v{TMP}, v{vT}, {sr(R_OUT,4)}, 0 offen")
        if cfg.warm & 2:
            a(f"v_mov_b32 v{vT+1}, s{sBbase}")
            a(f"buffer_load_dword v{TMP+1}, v{vT+1}, {sr(R_KB,4)}, 0 offen nt")
            a(f"buffer_load_dword v{TMP+2}, v{vT+1}, {sr(R_VB,4)}, 0 offen nt")
        a("s_mov_b64 exec, -1")
        a(f"s_branch {N}_jobret")
    a.label(f"{N}_jobp")
    c("gather wave: look at the arrival counter (result is used two tiles later)")
    is_role(R_GATH, f"{N}_jobret")
    a(f"v_mov_b32 v{vT}, 0")
    a(f"global_load_dword v{vPoll}, v{vT}, s[{P_DBG}:{P_DBG+1}] sc1")
    a(f"s_branch {N}_jobret")
    a.label(f"{N}_jobg")
    c("gather wave: once all 256 workgroups have arrived, sum the 8 partials of the group's four q_B heads into LDS")
    is_role(R_GATH, f"{N}_jobret")
    a(f"s_mov_b32 s{sSpin}, 0")
    a("s_waitcnt vmcnt(16)")
    a.label(f"{N}_c0")
    a(f"v_readfirstlane_b32 s{sT0}, v{vPoll}")
    a(f"s_cmp_ge_u32 s{sT0}, 256")
    a(f"s_cbranch_scc1 {N}_c0d")
    a(f"s_add_u32 s{sSpin}, s{sSpin}, 1")
    a(f"s_cmp_gt_u32 s{sSpin}, {cfg.SPIN}")
    a(f"s_cbranch_scc1 {N}_c0d")
    a("s_sleep 16")
    a(f"v_mov_b32 v{vT}, 0")
    a(f"global_load_dword v{vPoll}, v{vT}, s[{P_DBG}:{P_DBG+1}] sc1")
    a("s_waitcnt vmcnt(0)")
    a(f"s_branch {N}_c0")
    a.label(f"{N}_c0d")
    stamp(15)
    a(f"s_lshr_b32 s{sT0}, s{sW}, 3")
    a(f"s_and_b32 s{sT0}, s{sT0}, 7")
    a(f"s_lshl_b32 s{sT0}, s{sT0}, 16")
    a(f"s_lshl_b32 s{sT1}, s{sB}, 9")
    a(f"s_add_u32 s{sT0}, s{sT0}, s{sT1}")
    a(f"s_add_u32 s{sT0}, s{sT0}, {WS_QB}")
    a(f"v_lshlrev_b32 v{vT}, 14, v{vBank}")
    a(f"v_lshl_add_u32 v{vT}, v{vRow}, 7, v{vT}")
    a(f"v_lshl_add_u32 v{vT}, v{vQ}, 5, v{vT}")
    a(f"v_add_u32 v{vT}, s{sT0}, v{vT}")
    S2 = TMP
    for sl in range(8):
        a(f"s_mov_b32 s{sT1}, {(sl // 2) * 4096}")
        for m in range(2):
            a(f"buffer_load_dwordx4 {vr(S2 + 8*sl + 4*m, 4)}, v{vT}, {sr(R_WS,4)}, s{sT1} offen offset:{(sl % 2) * 2048 + 16*m} sc1")
    a("s_waitcnt vmcnt(0)")
    tree_sum8(S2)
    for k in range(4):
        a(f"v_cvt_pk_bf16_f32 v{S2+8+k}, v{S2+2*k}, v{S2+2*k+1}")
    a(f"ds_write_b128 v{vVoff}, {vr(S2+8,4)} offset:{L_QBOP}")
    a("s_waitcnt lgkmcnt(0)")
    a(f"v_mov_b32 v{vT}, {L_FLAG}")
    a(f"ds_write_b32 v{vT}, v{vOne}")
    a("s_waitcnt lgkmcnt(0)")
    stamp(18)
    a("s_nop 7")
    a(f"s_branch {N}_jobret")

    a.label(f"{N}_done")
    a("s_endpgm")
    body_text, npad = a.text()
    kd = f"""
.section .rodata,"a"
.p2align 6
.amdhsa_kernel {N}
  .amdhsa_next_free_vgpr {NVGPR}
  .amdhsa_next_free_sgpr 102
  .amdhsa_accum_offset {NVGPR}
  .amdhsa_group_segment_fixed_size 0
  .amdhsa_kernarg_size 112
  .amdhsa_user_sgpr_count 2
  .amdhsa_user_sgpr_kernarg_segment_ptr 1
  .amdhsa_system_sgpr_workgroup_id_x 1
  .amdhsa_float_denorm_mode_32 3
.end_amdhsa_kernel
"""
    return body_text, kd, npad

HEADER = open('gated_mix__mha_block_cached__gqa_block_cached__decode.s.ref').read().split('; Override launch geometry')[0]


DESC = """;
;
"""

def full_file(cfg):
    body, kd, npad = build(cfg)
    s = HEADER
    s += f"; @launch grid=(256,1,1) block=(512,1,1) lds={LDS_BYTES}\n"
    s += DESC
    s += '.amdgcn_target "amdgcn-amd-amdhsa--gfx950"\n.text\n'
    s += body + "\n" + kd
    return s, npad

if __name__ == '__main__':
    cfg = Cfg()
    out = sys.argv[1]
    for kv in sys.argv[2:]:
        k, v = kv.split('=', 1)
        cur = getattr(cfg, k)
        setattr(cfg, k, type(cur)(int(v, 0)) if isinstance(cur, (bool, int)) else v)
    s, npad = full_file(cfg)
    open(out, 'w').write(s)
    print('written', out, len(s), 'bytes; nop pads', npad)
```
